```python
import torch

def _softmax(x, axis=-1):
    return torch.softmax(x, dim=axis)
def _gelu(x):
    return torch.nn.functional.gelu(x, approximate="tanh")
def _silu(x):
    return torch.nn.functional.silu(x)
def _sigmoid(x):
    return torch.sigmoid(x)
def _layernorm(x, axis=-1, eps=1e-5):
    m = x.mean(dim=axis, keepdim=True)
    v = x.var(dim=axis, keepdim=True, unbiased=False)
    return (x - m) / torch.sqrt(v + eps)
def _scatter_add(tgt, idx, src, axis=0):
    return tgt.clone().index_add_(axis, idx, src)
def _segment_sum(src, seg, n):
    out = torch.zeros((n,) + src.shape[1:], dtype=src.dtype)
    return out.index_add_(0, seg, src)
def _pad(x, pw):
    flat = tuple(v for pair in reversed(pw) for v in pair)
    return torch.nn.functional.pad(x, flat)

kernel_name = 'parallel_sum__sliding_block__mixer_token_mlp__prompt'

def setup_inputs():

    _w = (lambda a: (lambda t: t.to(torch.bfloat16) if t.is_floating_point() else t)(torch.as_tensor(a)))
    def _A_setup():
        B, S, D = 1, 2048, 512
        return {
            "x": _w((lambda *s: torch.randn(*s, dtype=torch.bfloat16) * 0.05)(B, S, D)),
            "wqkv": _w((lambda *s: torch.randn(*s, dtype=torch.bfloat16) * 0.05)(D, 3 * D)),
            "wo": _w((lambda *s: torch.randn(*s, dtype=torch.bfloat16) * 0.05)(D, D)),
        }
    _A_in = _A_setup()

    def _B_setup():
        B, S, D, F = 1, 2048, 512, 1376
        return {
            "x": _w((lambda *s: torch.randn(*s, dtype=torch.bfloat16) * 0.05)(B, S, D)),
            "w1": _w((lambda *s: torch.randn(*s, dtype=torch.bfloat16) * 1.6)(S, F) * (S ** -0.5)),
            "b1": _w((lambda *s: torch.randn(*s, dtype=torch.bfloat16) * 12.8)(F) * 0.02),
            "w2": _w((lambda *s: torch.randn(*s, dtype=torch.bfloat16) * 0.4)(F, S) * (F ** -0.5)),
            "b2": _w((lambda *s: torch.randn(*s, dtype=torch.bfloat16) * 6.4)(S) * 0.02),
        }
    _B_in = _B_setup()

    return {
        "A_x": _A_in["x"],
        "A_wqkv": _A_in["wqkv"],
        "A_wo": _A_in["wo"],
        "B_x": _B_in["x"],
        "B_w1": _B_in["w1"],
        "B_b1": _B_in["b1"],
        "B_w2": _B_in["w2"],
        "B_b2": _B_in["b2"],
    }

def reference(A_x, A_wqkv, A_wo, B_x, B_w1, B_b1, B_w2, B_b2):
    def _A_ref(x, wqkv, wo):
        B, S, D = x.shape
        H = 32; Dh = D // H; W = 256
        qkv = (lambda x, *d: x.permute(*d))((x @ wqkv).reshape(B, S, 3, H, Dh), 2, 0, 3, 1, 4)
        q, k, v = qkv[0], qkv[1], qkv[2]
        scores = torch.einsum("bhqd,bhkd->bhqk", q, k) * (Dh ** -0.5)
        idx = torch.arange(S)
        mask = (idx[:, None] - idx[None, :] >= 0) & (idx[:, None] - idx[None, :] < W)
        scores = torch.where(mask[None, None], scores, -1e9)
        p = _softmax(scores, axis=-1)
        o = torch.einsum("bhqk,bhkd->bhqd", p, v)
        return (lambda x, *d: x.permute(*d))(o, 0, 2, 1, 3).reshape(B, S, D) @ wo

    def _B_ref(x, w1, b1, w2, b2):
        B, S, D = x.shape
        h = _layernorm(x, axis=-1)
        u = torch.einsum("bsd,sf->bdf", h, w1) + b1
        u = _gelu(u)
        y = torch.einsum("bdf,fs->bds", u, w2) + b2
        return (lambda x, *d: x.permute(*d))(y, 0, 2, 1)

    x = A_x
    xn = _layernorm(x, axis=-1)
    return x + _A_ref(xn, A_wqkv, A_wo) + _B_ref(xn, B_w1, B_b1, B_w2, B_b2)
```

```python
import re

TRANS = ("v_exp_f32", "v_log_f32", "v_rcp_f32", "v_rsq_f32", "v_sqrt_f32", "v_sin_f32", "v_cos_f32", "v_rcp_iflag_f32")

def _regs(tok):
    tok = tok.strip()
    t = tok
    if t.startswith("-"): t = t[1:]
    m = re.match(r"^abs\((.*)\)$", t)
    if m: t = m.group(1)
    if t.startswith("|") and t.endswith("|"): t = t[1:-1]
    m = re.match(r"^([vsa])\[(\d+):(\d+)\]$", t)
    if m: return {(m.group(1), i) for i in range(int(m.group(2)), int(m.group(3)) + 1)}
    m = re.match(r"^([vsa])(\d+)$", t)
    if m: return {(m.group(1), int(m.group(2)))}
    if t in ("vcc", "vcc_lo", "vcc_hi"): return {("x", "vcc")}
    if t in ("exec", "exec_lo", "exec_hi"): return {("x", "exec")}
    if t == "m0": return {("x", "m0")}
    return set()

class Ins:
    def __init__(self, text):
        self.text = text
        body = text.split(";")[0].strip()
        self.label = None
        self.op = None
        self.w = set(); self.r = set()
        self.cls = "other"; self.states = 1
        self.srcc = set(); self.srcab = set(); self.sdata = set(); self.passes = 0
        self.target = None
        if not body:
            self.states = 0; self.cls = "blank"; return
        if body.endswith(":"):
            self.label = body[:-1]; self.states = 0; self.cls = "label"; return
        if body.startswith("."):
            self.states = 0; self.cls = "directive"; return
        parts = body.split(None, 1)
        op = parts[0]; self.op = op
        rest = parts[1] if len(parts) > 1 else ""
        ops = []; depth = 0; cur = ""
        for ch in rest:
            if ch in "[(": depth += 1
            if ch in "])": depth -= 1
            if ch == "," and depth == 0: ops.append(cur.strip()); cur = ""
            else: cur += ch
        mods = ""
        if cur.strip():
            last = cur.strip().split(None, 1)
            ops.append(last[0]); mods = last[1] if len(last) > 1 else ""
        self.ops = ops; self.mods = mods
        R = [_regs(o) for o in ops]
        allr = set().union(*R) if R else set()
        base = re.sub(r"_(e32|e64|dpp|sdwa)$", "", op)
        self.base = base
        if op == "s_nop":
            self.states = int(ops[0], 0) + 1; self.cls = "nop"
        elif op.startswith("s_cbranch") or op == "s_branch":
            self.cls = "branch"; self.target = ops[0]
        elif op in ("s_waitcnt", "s_barrier", "s_endpgm", "s_setprio", "s_sleep", "buffer_wbl2", "buffer_inv"):
            self.cls = "other"
        elif op.startswith("s_load") or op.startswith("s_memtime") or op.startswith("s_memrealtime") or op.startswith("s_buffer_load"):
            self.cls = "smem"; self.w = R[0]; self.r = set().union(*R[1:]) if len(R) > 1 else set()
        elif op.startswith("s_cmp") or op.startswith("s_bitcmp"):
            self.cls = "salu"; self.r = allr
        elif op.startswith("s_"):
            self.cls = "salu"; self.w = set(R[0]); self.r = set().union(*R[1:]) if len(R) > 1 else set()
            if "saveexec" in op: self.w |= {("x", "exec")}; self.r |= {("x", "exec")}
            if op in ("s_addk_i32", "s_mulk_i32"): self.r |= R[0]
        elif op.startswith("v_mfma"):
            self.cls = "mfma"; self.w = R[0]; self.srcab = R[1] | R[2]; self.srcc = R[3]; self.r = self.srcab | self.srcc
            self.passes = 8 if "32x32x16" in op else (4 if "16x16x32" in op else 16)
        elif op.startswith("v_"):
            self.cls = "valu"
            if base.startswith("v_cmp"):
                self.w = set(R[0]); self.r = set().union(*R[1:])
                if base.startswith("v_cmpx"): self.w |= {("x", "exec")}
            elif base.startswith("v_permlane") and "swap" in base:
                self.w = allr; self.r = allr
            elif base in ("v_add_co_u32", "v_sub_co_u32", "v_addc_co_u32", "v_subb_co_u32"):
                self.w = R[0] | R[1]; self.r = set().union(*R[2:])
            else:
                self.w = set(R[0]); self.r = set().union(*R[1:]) if len(R) > 1 else set()
                if base in ("v_fmac_f32", "v_dot2c_f32_bf16", "v_pk_fmac_f16", "v_writelane_b32"): self.r |= R[0]
                if "dpp" in op or "row_" in mods or "quad_perm" in mods: self.r |= R[0]
            self.dpp = ("dpp" in op) or ("row_" in mods) or ("quad_perm" in mods)
        elif op.startswith("buffer_") or op.startswith("global_"):
            self.cls = "vmem"
            lds = (" lds" in " " + mods) or ("_lds_" in op)
            self.lds = lds
            if "load" in op and not lds:
                self.w = R[0]; self.r = set().union(*R[1:])
            elif "store" in op or "atomic" in op:
                self.r = allr
                if op.startswith("buffer_"): self.sdata = R[0]
                else: self.sdata = R[1]
                if not (op.endswith("x3") or op.endswith("x4")): self.sdata = set()
                if "atomic" in op and "sc0" in mods:
                    self.w = R[0]
            else:
                self.r = allr | {("x", "m0")}
        elif op.startswith("ds_"):
            self.cls = "ds"
            if op.startswith("ds_read") or "permute" in op or "swizzle" in op or "_rtn" in op:
                self.w = R[0]; self.r = set().union(*R[1:]) if len(R) > 1 else set()
            else:
                self.r = allr
        else:
            raise ValueError("unknown op " + text)

def vg(s): return {x for x in s if x[0] in "va"}
def sg(s): return {x for x in s if x[0] == "s" or x == ("x", "vcc")}

def need(p, c):
    n = 0
    if p.cls == "valu":
        pw_v = vg(p.w); pw_s = sg(p.w)
        if c.cls == "mfma" and pw_v & c.r: n = max(n, 2)
        if c.cls == "mfma" and ("x", "exec") in p.w: n = max(n, 4)
        if c.cls == "valu":
            if getattr(c, "dpp", False) and pw_v & c.r: n = max(n, 2)
            if c.base.startswith("v_permlane") and pw_v & c.r: n = max(n, 2)
            if c.base in ("v_readlane_b32", "v_readfirstlane_b32") and pw_v & c.r: n = max(n, 1)
            if p.base in TRANS and pw_v & (c.r | c.w): n = max(n, 1)
            if pw_s & c.r: n = max(n, 4 if c.base in ("v_readlane_b32", "v_writelane_b32") else 2)
            if p.base.startswith("v_dot") and pw_v & (c.r | c.w):
                if c.base == p.base:
                    ab = set().union(*[_regs(o) for o in (c.ops[1:3])])
                    if pw_v & ab: n = max(n, 3)
                else: n = max(n, 3)
            if ("x", "exec") in p.w: n = max(n, 5)
            if "sdwa" in p.op and pw_v & (c.r | c.w): n = max(n, 1)
        if c.cls in ("vmem", "ds", "mfma") and p.base.startswith("v_dot") and pw_v & c.r: n = max(n, 3)
        if c.cls in ("vmem", "ds") and p.base in TRANS and pw_v & c.r: n = max(n, 1)
        if c.cls == "vmem" and pw_s & c.r: n = max(n, 5)
        if c.cls in ("salu", "smem", "branch") and pw_s & (c.r if c.cls != "branch" else {("x", "vcc")} if "vcc" in c.op else set()): n = max(n, 4)
    if p.cls == "salu":
        if ("x", "m0") in p.w and c.cls == "vmem" and getattr(c, "lds", False): n = max(n, 1)
    if p.cls == "vmem" and p.sdata:
        if c.cls in ("valu", "mfma") and p.sdata & c.w: n = max(n, 2)
        elif p.sdata & c.w: n = max(n, 1)
    if p.cls == "mfma":
        P = p.passes
        t_ab = {2: 5, 4: 8, 8: 12, 16: 20}[P]; t_c = {2: 4, 4: 6, 8: 10, 16: 18}[P]; t_war = {2: 1, 4: 3, 8: 7, 16: 15}[P]
        if c.cls == "mfma":
            if p.w & c.srcab: n = max(n, t_ab)
            if p.w & c.srcc and not (p.w == c.srcc and P == c.passes): n = max(n, t_c)
            if p.w & c.w and not (p.w == c.srcc): n = max(n, t_c)
        elif c.cls in ("valu", "vmem", "ds"):
            if p.w & (c.r | c.w): n = max(n, t_ab)
            if c.cls == "valu" and p.srcc & c.w: n = max(n, t_war)
            if c.cls in ("vmem", "ds") and p.srcc & c.w: n = max(n, t_war)
    return n

class Prog:
    def __init__(self):
        self.lines = []
    def I(self, text):
        for t in text.split("\n"):
            t = t.strip()
            if t: self.lines.append(t)
    def C(self, text): self.lines.append("; " + text)
    def L(self, name): self.lines.append(name + ":")
    def finalize(self, verbose=False):
        out = []
        added = 0
        for t in self.lines:
            c = Ins(t)
            if c.states and c.cls != "nop":
                dist = 0; req = 0
                for p in reversed(out):
                    if p.op in ("s_branch", "s_endpgm"): break
                    if p.states == 0: continue
                    n = need(p, c)
                    if n > dist: req = max(req, n - dist)
                    dist += p.states
                    if dist >= 20: break
                while req > 0:
                    k = min(req, 16)
                    out.append(Ins(f"s_nop {k-1}")); req -= k; added += 1
            out.append(c)
        labels = {x.label: i for i, x in enumerate(out) if x.label}
        for i, b in enumerate(out):
            if b.cls == "branch" and b.target in labels:
                prods = []; d = 0
                for p in reversed(out[:i + 1]):
                    if p.states == 0: continue
                    if p is not b and p.op in ("s_branch", "s_endpgm"): break
                    prods.append((p, d)); d += p.states
                    if d >= 20: break
                d2 = 0
                for c in out[labels[b.target]:]:
                    if c.states == 0: continue
                    for p, dp in prods:
                        n = need(p, c)
                        if n > dp + d2:
                            raise SystemExit(f"HAZARD across branch to {b.target}: '{p.text}' -> '{c.text}' need {n} have {dp + d2}")
                    d2 += c.states
                    if d2 >= 20 or c.op in ("s_branch", "s_endpgm"): break
        txt = []
        for x in out:
            if x.cls in ("label", "directive") or x.text.startswith(";"): txt.append(x.text)
            else: txt.append("  " + x.text)
        return "\n".join(txt) + "\n"
```

```python
import sys, math, struct
from asmlib import Prog

QF, KF, VF, HF, GF, OF, WS_USED = 0x0, 0x200000, 0x400000, 0x600000, 0x800000, 0xA00000, 0xC00000
GFS = 88
def f32(x): return "0x%08x" % struct.unpack("<I", struct.pack("<f", x))[0]
LOG2E = 1.4426950408889634
MFMA = "v_mfma_f32_32x32x16_bf16"
def vr(a, n): return f"v[{a}:{a+n-1}]"

def kd(name, vgpr, sgpr=96):
    acc = (vgpr + 3) // 4 * 4
    return f""".amdhsa_kernel {name}
  .amdhsa_next_free_vgpr {vgpr}
  .amdhsa_next_free_sgpr {sgpr}
  .amdhsa_accum_offset {acc}
  .amdhsa_group_segment_fixed_size 0
  .amdhsa_kernarg_size 88
  .amdhsa_user_sgpr_count 2
  .amdhsa_user_sgpr_kernarg_segment_ptr 1
  .amdhsa_system_sgpr_workgroup_id_x 1
.end_amdhsa_kernel
"""

def head(p, name):
    p.I(f".globl {name}\n.p2align 8\n.type {name},@function")
    p.L(name)

def allreduce32(p, v, t):
    for m in ("quad_perm:[1,0,3,2]", "quad_perm:[2,3,0,1]", "row_half_mirror", "row_mirror"):
        p.I(f"v_add_f32_dpp v{v}, v{v}, v{v} {m} row_mask:0xf bank_mask:0xf")
    p.I(f"v_mov_b32 v{t}, v{v}")
    p.I(f"v_permlane16_swap_b32 v{v}, v{t}")
    p.I(f"v_add_f32 v{v}, v{v}, v{t}")

def interleave(main, fill):
    out = []; n = len(main); k = 0
    for i, m in enumerate(main):
        out.append(m)
        tgt = (len(fill) * (i + 1)) // n
        while k < tgt: out.append(fill[k]); k += 1
    return out

def stamp(p, idx, sreg=90):
    pass

K1_RING = 131072; K1_PITCH = 1088; K1_LNS = K1_RING; K1_STAT = K1_LNS + 8 * K1_PITCH; K1_PRIV = K1_STAT + 1280
K1_LDS = K1_PRIV + 1024
def gen_k1(p):
    head(p, "k1_kernel")
    p.I("""s_cmp_ge_u32 s2, 256
    s_cbranch_scc1 K1_end
    s_load_dwordx4 s[4:7], s[0:1], 0
    s_load_dwordx2 s[16:17], s[0:1], 80
    v_lshrrev_b32 v2, 6, v0
    v_and_b32 v1, 63, v0
    v_readfirstlane_b32 s24, v2
    s_and_b32 s39, s2, 7
    s_lshr_b32 s43, s2, 3
    s_lshr_b32 s25, s39, 1
    s_and_b32 s26, s39, 1
    s_lshr_b32 s27, s43, 2
    s_and_b32 s28, s43, 3
    s_lshl_b32 s29, s25, 9
    s_lshl_b32 s39, s27, 6
    s_add_u32 s29, s29, s39
    s_lshl_b32 s30, s26, 2
    s_add_u32 s30, s30, s28
    s_lshl_b32 s39, s28, 1
    s_add_u32 s34, s27, s39
    s_and_b32 s34, s34, 7
    s_and_b32 s40, s24, 1
    s_lshr_b32 s41, s24, 1
    s_mov_b32 s38, 0x3f803f80
    s_mov_b32 s11, 0x00020000
    s_mov_b32 s15, 0x00020000
    s_mov_b32 s23, 0x00020000
    s_mov_b32 s22, 0x200000
    """)
    p.I(f"s_mov_b32 s14, {WS_USED}")
    p.I("""s_lshl_b32 s44, s30, 3
    s_add_u32 s44, s44, s29
    s_lshl_b32 s39, s24, 1
    s_add_u32 s39, s39, s44
    v_lshrrev_b32 v23, 5, v1
    v_and_b32 v24, 31, v1
    v_add_u32 v25, s39, v23
    v_lshlrev_b32 v25, 10, v25
    v_lshl_add_u32 v25, v24, 4, v25
    v_lshrrev_b32 v26, 3, v1
    v_lshrrev_b32 v27, 4, v1
    v_and_b32 v28, 7, v1
    s_waitcnt lgkmcnt(0)
    s_mov_b32 s20, s4
    s_mov_b32 s21, s5
    s_mov_b32 s12, s16
    s_mov_b32 s13, s17
    buffer_load_dwordx4 v[80:83], v25, s[20:23], 0 offen
    buffer_load_dwordx4 v[84:87], v25, s[20:23], 0 offen offset:512
    s_cmp_eq_u32 s24, 0
    s_cbranch_scc1 K1_isx
    s_mov_b32 s8, s6
    s_mov_b32 s9, s7
    s_mov_b32 s10, 0x180000
    s_movk_i32 s31, 3072
    s_sub_u32 s32, s24, 1
    s_lshl_b32 s32, s32, 10
    s_lshl_b32 s39, s30, 7
    s_add_u32 s32, s32, s39
    s_mov_b32 s33, 196608
    v_and_b32 v29, 1, v27
    v_lshlrev_b32 v29, 2, v29
    v_mov_b32 v30, v29
    s_branch K1_join
    """)
    p.L("K1_isx")
    p.I("""s_mov_b32 s8, s4
    s_mov_b32 s9, s5
    s_mov_b32 s10, 0x200000
    s_movk_i32 s31, 1024
    s_lshl_b32 s32, s29, 10
    s_movk_i32 s33, 128
    v_mov_b32 v29, v27
    v_add_u32 v30, 4, v27
    """)
    p.L("K1_join")
    p.I("""v_xor_b32 v29, v29, v28
    v_xor_b32 v30, v30, v28
    v_mul_lo_u32 v26, v26, s31
    v_add_u32 v26, s32, v26
    v_lshl_add_u32 v29, v29, 4, v26
    v_lshl_add_u32 v30, v30, 4, v26
    s_lshl_b32 s39, s31, 3
    s_mov_b32 s45, 0
    """)
    for u in range(8):
        src = 29 if u % 2 == 0 else 30
        p.I(f"s_sub_u32 s46, s45, {(u & 3) * 1024}")
        p.I(f"v_add_u32 v{2+u}, s46, v{src}")
        if u < 7: p.I("s_add_u32 s45, s45, s39")
    p.I("s_lshl_b32 s36, s24, 13")
    p.I("s_mov_b32 s42, 0")

    def dma_list():
        L = ["s_mul_i32 s35, s34, s33", "s_mov_b32 m0, s36"]
        for u in range(8):
            if u == 4: L.append("s_add_u32 m0, s36, 4096")
            L.append(f"buffer_load_dwordx4 v{2+u}, s[8:11], s35 offen offset:{(u & 3) * 1024} lds")
        L += ["s_add_u32 s34, s34, 1", "s_and_b32 s34, s34, 7",
              "s_add_u32 s36, s36, 32768", "s_and_b32 s36, s36, 0x1ffff",
              "s_add_u32 s42, s42, 1", "s_cmp_ge_u32 s42, 8", "s_cselect_b32 s10, 0, s10"]
        return L
    for _ in range(3):
        for x in dma_list(): p.I(x)

    p.I("""s_lshl_b32 s39, s41, 1
    s_xor_b32 s47, s40, s39
    v_bfe_u32 v26, v1, 1, 3
    v_xor_b32 v26, v26, v23
    s_lshl_b32 s39, s40, 12
    v_lshlrev_b32 v27, 7, v24
    v_add_u32 v27, s39, v27
    """)
    for pp in range(4):
        p.I(f"s_xor_b32 s39, s47, {pp}")
        p.I("s_lshl_b32 s46, s39, 1")
        p.I(f"v_xor_b32 v28, s46, v26")
        p.I(f"v_lshl_add_u32 v{10+pp}, v28, 4, v27")
    p.I("""v_bfe_u32 v26, v1, 2, 2
    v_lshl_add_u32 v27, v23, 3, v26
    v_lshlrev_b32 v27, 7, v27
    v_bfe_u32 v28, v1, 4, 1
    v_lshlrev_b32 v28, 1, v28
    v_bfe_u32 v29, v1, 1, 1
    v_add_u32 v28, v28, v29
    s_lshl_b32 s39, s41, 2
    v_add_u32 v28, s39, v28
    v_bfe_u32 v29, v1, 3, 1
    v_lshlrev_b32 v29, 2, v29
    v_xor_b32 v28, v28, v29
    v_lshl_add_u32 v27, v28, 4, v27
    v_and_b32 v29, 1, v1
    v_lshl_add_u32 v27, v29, 3, v27
    v_add_u32 v27, 8192, v27
    """)
    for pp in range(4):
        p.I(f"s_xor_b32 s39, s47, {pp}")
        p.I("s_lshl_b32 s46, s39, 11")
        p.I(f"v_add_u32 v{14+pp}, s46, v27")
    for r in list(range(18, 23)) + list(range(32, 80)) + list(range(144, 208)):
        p.I(f"v_mov_b32 v{r}, 0")
    p.I(f"v_lshlrev_b32 v26, 2, v0")
    p.I(f"v_add_u32 v26, {K1_STAT}, v26")
    p.I(f"ds_write_b32 v26, v18")
    p.I(f"ds_write_b32 v26, v18 offset:1024")
    X = 88
    p.I("s_waitcnt vmcnt(24)")
    def unpack(src, dst):
        for i in range(8):
            p.I(f"v_lshlrev_b32 v{dst+2*i}, 16, v{src+i}")
            p.I(f"v_and_b32 v{dst+2*i+1}, 0xffff0000, v{src+i}")
    def ln(out):
        T = 104
        p.I(f"v_pk_add_f32 {vr(T,2)}, {vr(X,2)}, {vr(X+2,2)}")
        p.I(f"v_pk_add_f32 {vr(T+2,2)}, {vr(X+4,2)}, {vr(X+6,2)}")
        p.I(f"v_pk_add_f32 {vr(T+4,2)}, {vr(X+8,2)}, {vr(X+10,2)}")
        p.I(f"v_pk_add_f32 {vr(T+6,2)}, {vr(X+12,2)}, {vr(X+14,2)}")
        p.I(f"v_pk_add_f32 {vr(T,2)}, {vr(T,2)}, {vr(T+2,2)}")
        p.I(f"v_pk_add_f32 {vr(T+4,2)}, {vr(T+4,2)}, {vr(T+6,2)}")
        p.I(f"v_pk_add_f32 {vr(T,2)}, {vr(T,2)}, {vr(T+4,2)}")
        p.I(f"v_add_f32 v{T}, v{T}, v{T+1}")
        allreduce32(p, T, T + 1)
        p.I(f"v_mul_f32 v{T}, {f32(-1.0/512)}, v{T}")
        for i in range(8):
            p.I(f"v_pk_add_f32 {vr(X+2*i,2)}, {vr(X+2*i,2)}, {vr(T,2)} op_sel_hi:[1,0]")
        p.I(f"v_pk_mul_f32 {vr(T+2,2)}, {vr(X,2)}, {vr(X,2)}")
        p.I(f"v_pk_mul_f32 {vr(T+4,2)}, {vr(X+2,2)}, {vr(X+2,2)}")
        for i in range(2, 8):
            a = T + 2 + 2 * (i & 1)
            p.I(f"v_pk_fma_f32 {vr(a,2)}, {vr(X+2*i,2)}, {vr(X+2*i,2)}, {vr(a,2)}")
        p.I(f"v_pk_add_f32 {vr(T+2,2)}, {vr(T+2,2)}, {vr(T+4,2)}")
        p.I(f"v_add_f32 v{T+2}, v{T+2}, v{T+3}")
        allreduce32(p, T + 2, T + 3)
        p.I(f"v_mov_b32 v{T+3}, {f32(1e-5)}")
        p.I(f"v_fmac_f32 v{T+3}, {f32(1.0/512)}, v{T+2}")
        p.I(f"v_rsq_f32 v{T+2}, v{T+3}")
        for i in range(8):
            p.I(f"v_pk_mul_f32 {vr(X+2*i,2)}, {vr(X+2*i,2)}, {vr(T+2,2)} op_sel_hi:[1,0]")
        for i in range(8):
            p.I(f"v_cvt_pk_bf16_f32 v{out+i}, v{X+2*i}, v{X+2*i+1}")
    unpack(80, X); ln(80); unpack(80, X); ln(80)
    p.I(f"""s_lshl_b32 s39, s24, 1
    v_add_u32 v26, s39, v23
    v_mul_u32_u24 v26, {K1_PITCH}, v26
    v_lshl_add_u32 v26, v24, 4, v26
    v_add_u32 v26, {K1_LNS}, v26
    ds_write_b128 v26, v[80:83]
    ds_write_b128 v26, v[84:87] offset:512
    v_bfe_u32 v27, v1, 2, 2
    v_mul_u32_u24 v27, {K1_PITCH}, v27
    v_lshrrev_b32 v28, 4, v1
    v_lshl_add_u32 v27, v28, 5, v27
    v_and_b32 v28, 3, v1
    v_lshl_add_u32 v27, v28, 3, v27
    s_lshl_b32 s39, s24, 8
    s_add_u32 s39, s39, {K1_LNS}
    v_add_u32 v27, s39, v27
    s_lshl_b32 s39, s24, 2
    v_add_u32 v28, s39, v23
    v_lshlrev_b32 v28, 17, v28
    v_lshl_add_u32 v28, v24, 4, v28
    s_lshr_b32 s39, s44, 3
    s_lshl_b32 s39, s39, 9
    s_add_u32 s39, s39, {HF}
    v_add_u32 v28, s39, v28
    s_mov_b32 s46, 262144
    s_waitcnt lgkmcnt(0)
    s_barrier
    ds_read_b64_tr_b16 v[88:89], v27
    ds_read_b64_tr_b16 v[90:91], v27 offset:{4*K1_PITCH}
    ds_read_b64_tr_b16 v[92:93], v27 offset:128
    ds_read_b64_tr_b16 v[94:95], v27 offset:{4*K1_PITCH+128}
    s_waitcnt lgkmcnt(0)
    buffer_store_dwordx4 v[88:91], v28, s[12:15], 0 offen
    buffer_store_dwordx4 v[92:95], v28, s[12:15], s46 offen
    s_mov_b32 s37, 0
    """)
    SA, SB = 80, 144
    def reads(S, par):
        L = []
        for pp in range(4):
            b = S + 16 * pp
            L.append(f"ds_read_b128 {vr(b,4)}, v{10+pp} offset:{par*32768}")
            for seg in range(3):
                for t in range(2):
                    L.append(f"ds_read_b64_tr_b16 {vr(b+4+4*seg+2*t,2)}, v{14+pp} offset:{par*32768 + seg*8192 + t*512}")
        return L
    def mfmas(S):
        L = []
        for pp in range(4):
            b = S + 16 * pp
            L.append(f"{MFMA} v[32:47], {vr(b+4,4)}, {vr(b,4)}, v[32:47]")
            L.append(f"{MFMA} v[48:63], {vr(b+8,4)}, {vr(b,4)}, v[48:63]")
            L.append(f"{MFMA} v[64:79], {vr(b,4)}, {vr(b+12,4)}, v[64:79]")
        return L
    def dots(S):
        L = []
        xs = [S + 16 * pp + i for pp in (1, 2) for i in range(4)]
        ws = [[S + 16 * pp + 4 + 4 * seg + i for pp in (0, 2) for i in range(4)] for seg in range(3)]
        for i in range(8):
            L.append(f"v_dot2c_f32_bf16 v18, s38, v{xs[i]}")
            L.append(f"v_dot2c_f32_bf16 v20, s38, v{ws[0][i]}")
            L.append(f"v_dot2c_f32_bf16 v19, v{xs[i]}, v{xs[i]}")
            L.append(f"v_dot2c_f32_bf16 v21, s38, v{ws[1][i]}")
            L.append(f"v_dot2c_f32_bf16 v22, s38, v{ws[2][i]}")
        return L
    def merge(a, b):
        out = []; i = j = 0
        while i < len(a) or j < len(b):
            if j >= len(b) or (i < len(a) and i * len(b) <= j * len(a)): out.append(a[i]); i += 1
            else: out.append(b[j]); j += 1
        return out
    def body(Srd, Scmp, par):
        p.I("s_waitcnt vmcnt(16)")
        p.I("s_barrier")
        fill = merge(reads(Srd, par) + dma_list(), dots(Scmp))
        for x in interleave(mfmas(Scmp), fill): p.I(x)
        p.I("s_waitcnt lgkmcnt(0)")
    p.L("K1_loop")
    body(SA, SB, 0)
    body(SB, SA, 1)
    for r in range(10, 18): p.I(f"v_xor_b32 v{r}, 0x10000, v{r}")
    p.I("""s_add_u32 s37, s37, 1
    s_cmp_lt_u32 s37, 4
    s_cbranch_scc1 K1_loop""")
    for x in interleave(mfmas(SB), dots(SB)): p.I(x)
    p.I(f"""s_lshl_b32 s39, s40, 7
    s_add_u32 s39, s39, {K1_STAT}
    v_lshl_add_u32 v26, v24, 2, s39
    s_lshl_b32 s39, s41, 7
    s_add_u32 s39, s39, {K1_STAT + 512}
    v_lshl_add_u32 v27, v24, 2, s39
    v_lshl_add_u32 v28, v23, 4, s39
    s_lshl_b32 s39, s24, 8
    s_add_u32 s39, s39, {K1_PRIV}
    v_lshl_add_u32 v29, v24, 2, s39
    v_lshl_add_u32 v30, v23, 4, s39
    ds_add_f32 v26, v18
    ds_add_f32 v26, v19 offset:256
    ds_add_f32 v27, v20
    ds_add_f32 v27, v21 offset:256
    ds_add_f32 v27, v22 offset:512
    s_waitcnt lgkmcnt(0)
    s_barrier
    ds_read_b32 v18, v26
    ds_read_b32 v19, v26 offset:256
    ds_read_b32 v22, v27 offset:512
    """)
    CQ, CK, NM, RS = 80, 96, 112, 128
    for g in range(4): p.I(f"ds_read_b128 {vr(CQ+4*g,4)}, v28 offset:{g*32}")
    for g in range(4): p.I(f"ds_read_b128 {vr(CK+4*g,4)}, v28 offset:{256+g*32}")
    p.I(f"""s_waitcnt lgkmcnt(9)
    v_mul_f32 v144, {f32(-1.0/512)}, v18
    v_mul_f32 v19, {f32(1.0/512)}, v19
    v_fma_f32 v19, -v144, v144, v19
    v_max_f32 v19, 0, v19
    v_add_f32 v19, {f32(1e-5)}, v19
    v_rsq_f32 v146, v19
    ds_write_b32 v29, v144
    ds_write_b32 v29, v146 offset:128
    v_mul_f32 v148, {f32(0.25*LOG2E)}, v146
    s_waitcnt lgkmcnt(0)
    """)
    for g in range(4): p.I(f"ds_read_b128 {vr(NM+4*g,4)}, v30 offset:{g*32}")
    for g in range(4): p.I(f"ds_read_b128 {vr(RS+4*g,4)}, v30 offset:{128+g*32}")
    p.I(f"""s_lshr_b32 s46, s29, 5
    s_add_u32 s46, s46, s40
    s_lshl_b32 s39, s30, 1
    s_add_u32 s39, s39, s41
    s_lshl_b32 s45, s39, 17
    s_lshl_b32 s47, s46, 10
    s_add_u32 s47, s47, s45
    v_lshl_add_u32 v26, v1, 4, s47
    s_lshl_b32 s47, s46, 11
    s_add_u32 s47, s47, s45
    s_add_u32 s47, s47, {VF}
    v_lshl_add_u32 v27, v1, 4, s47
    s_mov_b32 s45, 65536
    s_mov_b32 s46, {KF}
    s_mov_b32 s47, {KF + 65536}
    """)
    for acc, cs, rs, o in ((32, CQ, 148, 152), (48, CK, 146, 160)):
        for i in range(8): p.I(f"v_pk_fma_f32 {vr(acc+2*i,2)}, {vr(cs+2*i,2)}, v[144:145], {vr(acc+2*i,2)} op_sel_hi:[1,0,1]")
        for i in range(8): p.I(f"v_pk_mul_f32 {vr(acc+2*i,2)}, {vr(acc+2*i,2)}, {vr(rs,2)} op_sel_hi:[1,0]")
        for i in range(8): p.I(f"v_cvt_pk_bf16_f32 v{o+i}, v{acc+2*i}, v{acc+2*i+1}")
        so = ("0", "s45") if acc == 32 else ("s46", "s47")
        p.I(f"buffer_store_dwordx4 {vr(o,4)}, v26, s[12:15], {so[0]} offen")
        p.I(f"buffer_store_dwordx4 {vr(o+4,4)}, v26, s[12:15], {so[1]} offen")
    p.I("s_waitcnt lgkmcnt(0)")
    for i in range(8): p.I(f"v_pk_fma_f32 {vr(64+2*i,2)}, {vr(NM+2*i,2)}, v[22:23], {vr(64+2*i,2)} op_sel_hi:[1,0,1]")
    for i in range(8): p.I(f"v_pk_mul_f32 {vr(64+2*i,2)}, {vr(64+2*i,2)}, {vr(RS+2*i,2)}")
    for i in range(8): p.I(f"v_cvt_pk_bf16_f32 v{168+i}, v{64+2*i}, v{64+2*i+1}")
    p.I(f"buffer_store_dwordx4 v[168:171], v27, s[12:15], 0 offen")
    p.I(f"buffer_store_dwordx4 v[172:175], v27, s[12:15], 0 offen offset:1024")
    p.L("K1_end")
    p.I("s_endpgm")

G_D = 5
def g_dma():
    L = ["s_mov_b32 m0, s36"]
    for u in range(4):
        L.append(f"buffer_load_dwordx4 v{2+u}, s[8:11], s35 offen offset:{u*1024} lds")
    L += ["s_add_u32 s35, s35, s33", "s_cmp_eq_u32 s35, s48", "s_cselect_b32 s35, 0, s35",
          "s_add_u32 s36, s36, 16384", f"s_cmp_ge_u32 s36, {G_D*16384}", f"s_cselect_b32 s39, {G_D*16384}, 0", "s_sub_u32 s36, s36, s39",
          "s_add_u32 s42, s42, 1"]
    return L
def g_reads(S, tmul):
    L = []
    for ks in range(4):
        L.append(f"ds_read_b128 {vr(S+8*ks+4,4)}, v9 offset:{ks*1024}")
        for t in range(2):
            L.append(f"ds_read_b64_tr_b16 {vr(S+8*ks+2*t,2)}, v8 offset:{(16*ks + tmul*t)*128}")
    return L
def g_mfmas(S, t_is_a):
    L = []
    for ks in range(4):
        T, Lr = vr(S+8*ks, 4), vr(S+8*ks+4, 4)
        a, b = (T, Lr) if t_is_a else (Lr, T)
        L.append(f"{MFMA} v[16:31], {a}, {b}, v[16:31]")
    return L
def g_body(p, Srd, Scmp, tmul, t_is_a, after_dma=None):
    p.I(f"s_waitcnt vmcnt({4*(G_D-2)})")
    p.I("s_barrier")
    p.I("v_add_u32 v8, s49, v6")
    p.I("v_add_u32 v9, s49, v7")
    fill = g_reads(Srd, tmul) + g_dma() + [
        "s_add_u32 s49, s49, 16384", f"s_cmp_ge_u32 s49, {G_D*16384}", "s_cselect_b32 s49, 0, s49"]
    for x in interleave(g_mfmas(Scmp, t_is_a), fill): p.I(x)
    if after_dma: after_dma()
    p.I("s_waitcnt lgkmcnt(0)")
def g_taddr(p, dst, hshift, snb):
    p.I(f"""v_bfe_u32 v10, v1, 2, 2
    v_lshrrev_b32 v11, 5, v1
    v_lshl_add_u32 v10, v11, {hshift}, v10
    v_lshlrev_b32 v10, 7, v10
    v_bfe_u32 v11, v1, 4, 1
    v_lshlrev_b32 v11, 1, v11
    v_bfe_u32 v12, v1, 1, 1
    v_add_u32 v11, v11, v12
    s_lshl_b32 s39, {snb}, 2
    v_add_u32 v11, s39, v11
    v_bfe_u32 v12, v1, 3, 1
    v_lshlrev_b32 v12, 2, v12
    v_xor_b32 v11, v11, v12
    v_lshl_add_u32 v10, v11, 4, v10
    v_and_b32 v12, 1, v1
    v_lshl_add_u32 v{dst}, v12, 3, v10
    """)
def g_laddr(p, dst, snb):
    p.I(f"""s_lshl_b32 s39, {snb}, 12
    s_add_u32 s39, s39, 8192
    v_lshl_add_u32 v{dst}, v1, 4, s39
    """)
def g_voff_T(p, dst, stride, scol):
    p.I(f"""v_lshrrev_b32 v10, 3, v1
    s_lshl_b32 s39, s24, 5
    v_add_u32 v10, s39, v10
    v_mul_u32_u24 v10, {stride}, v10
    v_bfe_u32 v11, v1, 4, 1
    v_lshlrev_b32 v11, 2, v11
    v_and_b32 v12, 7, v1
    v_xor_b32 v11, v11, v12
    v_lshl_add_u32 v10, v11, 4, v10
    v_add_u32 v{dst}, {scol}, v10
    """)
    for u in range(1, 4): p.I(f"v_add_u32 v{dst+u}, {u*(8*stride-1024)}, v{dst}")
def g_voff_L(p, dst, sbase):
    p.I(f"v_lshl_add_u32 v{dst}, v1, 4, {sbase}")
    for u in range(1, 4): p.I(f"v_mov_b32 v{dst+u}, v{dst}")

K2_LDS = G_D * 16384
def gen_k2(p):
    head(p, "k2_kernel")
    p.I("""s_cmp_ge_u32 s2, 448
    s_cbranch_scc1 K2_end
    s_load_dwordx4 s[4:7], s[0:1], 32
    s_load_dwordx2 s[16:17], s[0:1], 80
    v_lshrrev_b32 v2, 6, v0
    v_and_b32 v1, 63, v0
    v_readfirstlane_b32 s24, v2
    s_mov_b32 s11, 0x00020000
    s_mov_b32 s15, 0x00020000
    s_mov_b32 s23, 0x00020000
    """)
    p.I(f"s_mov_b32 s14, {WS_USED}")
    p.I("""s_cmp_ge_u32 s2, 192
    s_cbranch_scc1 K2_attn
    s_and_b32 s39, s2, 7
    s_lshr_b32 s43, s2, 3
    s_lshr_b32 s25, s39, 1
    s_and_b32 s26, s39, 1
    s_lshr_b32 s27, s43, 2
    s_and_b32 s28, s43, 3
    s_cmp_ge_u32 s25, 2
    s_cselect_b32 s44, 5, 6
    s_cmp_ge_u32 s27, s44
    s_cbranch_scc1 K2_end
    s_mul_i32 s29, s25, 6
    s_cmp_eq_u32 s25, 3
    s_cselect_b32 s39, 1, 0
    s_sub_u32 s29, s29, s39
    s_add_u32 s29, s29, s27
    s_lshl_b32 s30, s26, 2
    s_add_u32 s30, s30, s28
    s_and_b32 s40, s24, 1
    s_lshr_b32 s41, s24, 1
    s_mul_i32 s34, s27, 5
    s_add_u32 s34, s34, s28
    s_and_b32 s34, s34, 31
    """)
    p.I("""s_lshl_b32 s39, s29, 7
    s_lshl_b32 s44, s40, 6
    s_add_u32 s39, s39, s44
    v_lshrrev_b32 v14, 5, v1
    v_lshl_add_u32 v14, v14, 3, s39
    s_waitcnt lgkmcnt(0)
    s_mov_b32 s12, s16
    s_mov_b32 s13, s17
    s_mov_b32 s20, s6
    s_mov_b32 s21, s7
    s_movk_i32 s22, 2752
    """)
    for g in range(4): p.I(f"buffer_load_dwordx2 {vr(32+2*g,2)}, v14, s[20:23], 0 offen offset:{16*g}")
    p.I("""s_cmp_ge_u32 s24, 2
    s_cbranch_scc1 K2_isL
    s_mov_b32 s8, s4
    s_mov_b32 s9, s5
    """)
    p.I(f"s_mov_b32 s10, {2048*2752}")
    p.I(f"s_mov_b32 s33, {64*2752}")
    p.I("s_lshl_b32 s44, s29, 7")
    g_voff_T(p, 2, 2752, "s44")
    p.I("s_branch K2_join")
    p.L("K2_isL")
    p.I(f"""s_mov_b32 s8, s16
    s_mov_b32 s9, s17
    s_mov_b32 s10, {WS_USED}
    s_movk_i32 s33, 4096
    s_lshl_b32 s44, s30, 1
    s_add_u32 s44, s44, s24
    s_sub_u32 s44, s44, 2
    s_lshl_b32 s44, s44, 17
    s_add_u32 s44, s44, {HF}
    """)
    g_voff_L(p, 2, "s44")
    p.L("K2_join")
    p.I("""s_mul_i32 s35, s34, s33
    s_lshl_b32 s48, s33, 5
    s_lshl_b32 s36, s24, 12
    s_mov_b32 s42, 0
    s_mov_b32 s49, 0
    """)
    for _ in range(G_D - 1):
        for x in g_dma(): p.I(x)
    g_taddr(p, 6, 3, "s40")
    g_laddr(p, 7, "s41")
    for r in range(64, 96): p.I(f"v_mov_b32 v{r}, 0")
    p.I(f"s_waitcnt vmcnt({4*(G_D-1)})")
    for i in range(8):
        p.I(f"v_lshlrev_b32 v{16+2*i}, 16, v{32+i}")
        p.I(f"v_and_b32 v{17+2*i}, 0xffff0000, v{32+i}")
    p.I("s_mov_b32 s37, 0")
    def stop():
        p.I("s_cmp_ge_u32 s42, 32")
        p.I("s_cselect_b32 s10, 0, s10")
    p.L("K2_loop")
    g_body(p, 32, 64, 4, True, stop)
    g_body(p, 64, 32, 4, True, stop)
    p.I("""s_add_u32 s37, s37, 1
    s_cmp_lt_u32 s37, 16
    s_cbranch_scc1 K2_loop""")
    for x in g_mfmas(64, True): p.I(x)
    c1 = -2.0 * math.sqrt(2.0 / math.pi) * LOG2E
    c2 = c1 * 0.044715
    p.I(f"""s_mov_b32 s44, {f32(c2)}
    s_mov_b32 s45, {f32(c2)}
    v_mov_b32 v12, {f32(c1)}
    v_mov_b32 v13, {f32(c1)}
    s_lshl_b32 s39, s30, 1
    s_add_u32 s39, s39, s41
    s_mul_i32 s39, s39, {GFS}
    s_lshl_b32 s46, s29, 2
    s_add_u32 s39, s39, s46
    s_lshl_b32 s46, s40, 1
    s_add_u32 s39, s39, s46
    s_lshl_b32 s39, s39, 10
    s_add_u32 s39, s39, {GF}
    v_lshl_add_u32 v14, v1, 4, s39
    s_lshl_b32 s46, s29, 1
    s_add_u32 s46, s46, s40
    s_cmp_eq_u32 s46, 43
    s_cselect_b32 s46, 0, -1
    """)
    for i in range(8): p.I(f"v_pk_mul_f32 {vr(32+2*i,2)}, {vr(16+2*i,2)}, {vr(16+2*i,2)}")
    for i in range(8): p.I(f"v_pk_fma_f32 {vr(32+2*i,2)}, {vr(32+2*i,2)}, s[44:45], v[12:13]")
    for i in range(8): p.I(f"v_pk_mul_f32 {vr(32+2*i,2)}, {vr(32+2*i,2)}, {vr(16+2*i,2)}")
    for i in range(16): p.I(f"v_exp_f32 v{32+i}, v{32+i}")
    for i in range(8): p.I(f"v_pk_add_f32 {vr(32+2*i,2)}, {vr(32+2*i,2)}, 1.0 op_sel_hi:[1,0]")
    for i in range(16): p.I(f"v_rcp_f32 v{32+i}, v{32+i}")
    for i in range(8): p.I(f"v_pk_mul_f32 {vr(32+2*i,2)}, {vr(32+2*i,2)}, {vr(16+2*i,2)}")
    for i in range(8): p.I(f"v_cvt_pk_bf16_f32 v{48+i}, v{32+2*i}, v{33+2*i}")
    for i in range(8): p.I(f"v_and_b32 v{48+i}, s46, v{48+i}")
    p.I("buffer_store_dwordx4 v[48:51], v14, s[12:15], 0 offen")
    p.I("buffer_store_dwordx4 v[52:55], v14, s[12:15], 0 offen offset:1024")
    p.I("s_endpgm")

    p.L("K2_attn")
    p.I(f"""s_sub_u32 s43, s2, 192
    s_and_b32 s39, s43, 7
    s_lshr_b32 s43, s43, 3
    s_lshr_b32 s25, s39, 1
    s_and_b32 s26, s39, 1
    s_lshr_b32 s27, s43, 3
    s_and_b32 s28, s43, 7
    s_lshl_b32 s29, s25, 2
    s_add_u32 s29, s29, s27
    s_lshl_b32 s30, s26, 3
    s_add_u32 s30, s30, s28
    s_lshl_b32 s31, s29, 2
    s_add_u32 s31, s31, s24
    s_lshl_b32 s32, s30, 17
    s_lshl_b32 s39, s31, 10
    s_add_u32 s39, s39, s32
    v_lshl_add_u32 v2, v1, 4, s39
    s_mov_b32 s44, 65536
    s_lshl_b32 s39, s29, 12
    s_add_u32 s45, s32, s39
    s_add_u32 s45, s45, {KF - 8192}
    s_lshl_b32 s46, s24, 16
    s_add_u32 s45, s45, s46
    s_lshl_b32 s39, s29, 13
    s_add_u32 s46, s32, s39
    s_add_u32 s46, s46, {VF - 16384 - 2*12288}
    s_mul_i32 s47, s24, 12288
    s_add_u32 s46, s46, s47
    s_cmp_ge_u32 s24, 2
    s_cselect_b32 s45, s46, s45
    v_lshlrev_b32 v3, 4, v1
    s_waitcnt lgkmcnt(0)
    s_mov_b32 s12, s16
    s_mov_b32 s13, s17
    buffer_load_dwordx4 v[8:11], v2, s[12:15], 0 offen
    buffer_load_dwordx4 v[12:15], v2, s[12:15], s44 offen
    """)
    for q in range(3):
        p.I(f"s_add_u32 m0, s47, {q*4096}")
        for u in range(4):
            p.I(f"buffer_load_dwordx4 v3, s[12:15], s45 offen offset:{u*1024} lds")
        p.I("s_add_u32 s45, s45, 4096")
    p.I("""v_and_b32 v4, 31, v1
    v_lshrrev_b32 v5, 5, v1
    v_lshlrev_b32 v5, 2, v5
    v_sub_u32 v4, v4, v5
    """)
    for r in range(16):
        key = (r & 3) + 8 * (r >> 2)
        p.I(f"v_cmp_le_i32 s[{52+2*r}:{53+2*r}], {key}, v4")
    p.I(f"""v_mov_b32 v6, {f32(-1e30)}
    s_lshl_b32 s39, s24, 10
    v_add_u32 v4, s39, v3
    s_lshl_b32 s39, s24, 11
    s_add_u32 s39, s39, 24576
    v_add_u32 v5, s39, v3
    s_mov_b32 s84, 0x0000ffff
    s_mov_b32 s85, 0x0000ffff
    s_mov_b32 s86, 0xffff0000
    s_mov_b32 s87, 0xffff0000
    """)
    NA, NB, OA, OB = 16, 32, 48, 64
    SBUF = [[80, 96], [112, 128]]
    KR = [[144, 148], [152, 156]]
    PR = [160, 168]
    VR = [176, 192]
    for r in range(16):
        p.I(f"v_cndmask_b32 v{NA+r}, v6, 0, s[{52+2*r}:{53+2*r}]")
        p.I(f"v_cndmask_b32 v{NB+r}, 0, v6, s[{52+2*r}:{53+2*r}]")
    for r in range(OA, OB + 16): p.I(f"v_mov_b32 v{r}, 0")
    for r in range(176, 208): p.I(f"v_mov_b32 v{r}, 0x3f803f80")
    p.I("v_mov_b32 v208, v6")
    p.I("v_mov_b32 v209, v6")
    p.I("s_min_u32 s37, s31, 8")
    p.I("s_waitcnt vmcnt(0)")
    p.I("s_barrier")
    def kread(jb, s):
        return [f"ds_read_b128 {vr(KR[s][0],4)}, v4 offset:{jb*1024}", f"ds_read_b128 {vr(KR[s][1],4)}, v4 offset:{12288+jb*1024}"]
    def smm(s, cA, cB):
        return [f"{MFMA} {vr(SBUF[s][0],16)}, {vr(KR[s][0],4)}, v[8:11], {cA}", f"{MFMA} {vr(SBUF[s][1],16)}, {vr(KR[s][1],4)}, v[12:15], {cB}"]
    def maxes(s):
        L = []
        for i in range(8):
            L.append(f"v_max3_f32 v208, v{SBUF[s][0]+2*i}, v{SBUF[s][0]+2*i+1}, v208")
            L.append(f"v_max3_f32 v209, v{SBUF[s][1]+2*i}, v{SBUF[s][1]+2*i+1}, v209")
        return L
    for x in kread(8, 0) + kread(7, 1): p.I(x)
    p.I("s_waitcnt lgkmcnt(2)")
    for x in smm(0, vr(NA,16), vr(NA,16)): p.I(x)
    for n in range(9):
        s = n & 1
        if n < 8:
            p.I(f"s_cmp_lt_u32 s37, {n+1}")
            p.I(f"s_cbranch_scc1 K2_p1_last{s}")
            p.I("s_waitcnt lgkmcnt(0)")
            c = vr(NB,16) if n + 1 == 8 else "0"
            for x in smm(s ^ 1, c, c): p.I(x)
            if n + 2 <= 8:
                for x in kread(8 - (n + 2), s): p.I(x)
            for x in maxes(s): p.I(x)
    p.L("K2_p1_last0")
    p.I("s_nop 7"); p.I("s_nop 3")
    for x in maxes(0): p.I(x)
    p.I("s_branch K2_p1_done")
    p.L("K2_p1_last1")
    p.I("s_nop 7"); p.I("s_nop 3")
    for x in maxes(1): p.I(x)
    p.L("K2_p1_done")
    p.I("s_waitcnt lgkmcnt(0)")
    def vread(jb, s):
        return ["s_mov_b64 exec, s[84:85]",
                f"ds_read_b128 {vr(VR[s],4)}, v5 offset:{jb*2048}", f"ds_read_b128 {vr(VR[s]+4,4)}, v5 offset:{jb*2048+1024}",
                "s_mov_b64 exec, s[86:87]",
                f"ds_read_b128 {vr(VR[s]+8,4)}, v5 offset:{jb*2048}", f"ds_read_b128 {vr(VR[s]+12,4)}, v5 offset:{jb*2048+1024}",
                "s_mov_b64 exec, -1"]
    for x in kread(8, 0) + kread(7, 1) + vread(8, 0): p.I(x)
    p.I("""v_mov_b32 v210, v208
    v_mov_b32 v211, v209
    v_permlane32_swap_b32 v208, v210
    v_permlane32_swap_b32 v209, v211
    v_max_f32 v208, v208, v210
    v_max_f32 v209, v209, v211
    v_sub_f32 v208, 0, v208
    v_sub_f32 v209, 0, v209
    """)
    for r in range(16):
        p.I(f"v_cndmask_b32 v{SBUF[0][0]+r}, v6, v208, s[{52+2*r}:{53+2*r}]")
        p.I(f"v_cndmask_b32 v{SBUF[0][1]+r}, v6, v209, s[{52+2*r}:{53+2*r}]")
    p.I("s_waitcnt lgkmcnt(0)")
    for x in smm(0, vr(SBUF[0][0],16), vr(SBUF[0][1],16)): p.I(x)
    for r in range(16):
        p.I(f"v_mov_b32 v{NA+r}, v208")
        p.I(f"v_mov_b32 v{NB+r}, v209")
    def softp(s, hd):
        S = SBUF[s][hd]; P = PR[hd]; V = VR[s] + 8 * hd; O = (OA, OB)[hd]
        L = [f"v_exp_f32 v{S+i}, v{S+i}" for i in range(8)]
        L += [f"v_cvt_pk_bf16_f32 v{P+i}, v{S+2*i}, v{S+2*i+1}" for i in range(4)]
        L += [f"v_exp_f32 v{S+i}, v{S+i}" for i in range(8, 10)]
        L += [f"{MFMA} {vr(O,16)}, {vr(V,4)}, {vr(P,4)}, {vr(O,16)}"]
        L += [f"v_exp_f32 v{S+i}, v{S+i}" for i in range(10, 16)]
        L += [f"v_cvt_pk_bf16_f32 v{P+i}, v{S+2*i}, v{S+2*i+1}" for i in range(4, 8)]
        return L, [f"{MFMA} {vr(O,16)}, {vr(V+4,4)}, {vr(P+4,4)}, {vr(O,16)}"]
    def soft(s):
        a, a2 = softp(s, 0); b, b2 = softp(s, 1)
        return a + b[:2] + a2 + b[2:] + b2
    for n in range(8):
        s = n & 1
        p.I(f"s_cmp_lt_u32 s37, {n+1}")
        p.I(f"s_cbranch_scc1 K2_p2_last{s}")
        if n + 1 == 8:
            for r in range(16):
                p.I(f"v_cndmask_b32 v{NA+r}, v208, v6, s[{52+2*r}:{53+2*r}]")
                p.I(f"v_cndmask_b32 v{NB+r}, v209, v6, s[{52+2*r}:{53+2*r}]")
        p.I("s_waitcnt lgkmcnt(0)")
        for x in smm(s ^ 1, vr(NA,16), vr(NB,16)): p.I(x)
        if n + 2 <= 8:
            for x in kread(8 - (n + 2), s): p.I(x)
        for x in vread(8 - (n + 1), s ^ 1): p.I(x)
        for x in soft(s): p.I(x)
    p.L("K2_p2_last0")
    p.I("s_waitcnt lgkmcnt(0)")
    p.I("s_nop 7"); p.I("s_nop 3")
    for x in soft(0): p.I(x)
    p.I("s_branch K2_p2_done")
    p.L("K2_p2_last1")
    p.I("s_waitcnt lgkmcnt(0)")
    p.I("s_nop 7"); p.I("s_nop 3")
    for x in soft(1): p.I(x)
    p.L("K2_p2_done")
    p.I(f"""s_lshl_b32 s39, s31, 15
    s_lshl_b32 s44, s30, 11
    s_add_u32 s39, s39, s44
    s_add_u32 s39, s39, {OF}
    v_add_u32 v2, s39, v3
    s_nop 7
    v_rcp_f32 v208, v{OA+8}
    v_rcp_f32 v210, v{OB}
    """)
    for i in range(4): p.I(f"v_pk_mul_f32 {vr(OA+2*i,2)}, {vr(OA+2*i,2)}, v[208:209] op_sel_hi:[1,0]")
    for i in range(4): p.I(f"v_pk_mul_f32 {vr(OB+8+2*i,2)}, {vr(OB+8+2*i,2)}, v[210:211] op_sel_hi:[1,0]")
    for i in range(4): p.I(f"v_cvt_pk_bf16_f32 v{160+i}, v{OA+2*i}, v{OA+2*i+1}")
    for i in range(4): p.I(f"v_cvt_pk_bf16_f32 v{164+i}, v{OB+8+2*i}, v{OB+8+2*i+1}")
    p.I("buffer_store_dwordx4 v[160:163], v2, s[12:15], 0 offen")
    p.I("buffer_store_dwordx4 v[164:167], v2, s[12:15], 0 offen offset:1024")
    p.L("K2_end")
    p.I("s_endpgm")

K3_LDS = G_D * 16384
def gen_k3(p):
    head(p, "k3_kernel")
    p.I("""s_cmp_ge_u32 s2, 256
    s_cbranch_scc1 K3_end
    s_load_dwordx2 s[4:5], s[0:1], 0
    s_load_dwordx2 s[6:7], s[0:1], 16
    s_load_dwordx4 s[52:55], s[0:1], 48
    s_load_dwordx2 s[56:57], s[0:1], 64
    s_load_dwordx2 s[16:17], s[0:1], 80
    v_lshrrev_b32 v2, 6, v0
    v_and_b32 v1, 63, v0
    v_readfirstlane_b32 s24, v2
    s_mov_b32 s11, 0x00020000
    s_mov_b32 s15, 0x00020000
    s_mov_b32 s23, 0x00020000
    s_mov_b32 s63, 0x00020000
    s_and_b32 s39, s2, 7
    s_lshr_b32 s43, s2, 3
    s_lshr_b32 s25, s39, 1
    s_and_b32 s26, s39, 1
    s_lshr_b32 s27, s43, 2
    s_and_b32 s28, s43, 3
    s_lshl_b32 s29, s25, 3
    s_add_u32 s29, s29, s27
    s_lshl_b32 s30, s26, 2
    s_add_u32 s30, s30, s28
    s_and_b32 s40, s24, 1
    s_lshr_b32 s41, s24, 1
    s_mul_i32 s34, s27, 11
    s_lshr_b32 s34, s34, 2
    s_add_u32 s50, s27, s28
    s_add_u32 s50, s50, s28
    s_and_b32 s50, s50, 7
    """)
    p.I("""s_lshl_b32 s39, s29, 6
    s_lshl_b32 s44, s41, 5
    s_add_u32 s39, s39, s44
    v_and_b32 v10, 31, v1
    v_add_u32 v10, s39, v10
    v_lshlrev_b32 v15, 1, v10
    v_lshlrev_b32 v14, 10, v10
    s_lshl_b32 s39, s30, 7
    s_lshl_b32 s44, s40, 6
    s_add_u32 s39, s39, s44
    v_add_u32 v14, s39, v14
    v_lshrrev_b32 v11, 5, v1
    v_lshl_add_u32 v100, v11, 4, v14
    v_lshl_add_u32 v14, v11, 3, v14
    s_waitcnt lgkmcnt(0)
    s_mov_b32 s20, s4
    s_mov_b32 s21, s5
    s_mov_b32 s22, 0x200000
    s_mov_b32 s60, s54
    s_mov_b32 s61, s55
    s_movk_i32 s62, 4096
    """)
    for g in range(4): p.I(f"buffer_load_dwordx2 {vr(32+2*g,2)}, v14, s[20:23], 0 offen offset:{16*g}")
    p.I("buffer_load_ushort v40, v15, s[60:63], 0 offen")
    p.I("""s_cmp_ge_u32 s24, 2
    s_cbranch_scc1 K3_isL
    s_mov_b32 s8, s52
    s_mov_b32 s9, s53
    """)
    p.I(f"""s_mov_b32 s10, {1376*4096}
    s_mov_b32 s33, {64*4096}
    s_mov_b32 s12, s6
    s_mov_b32 s13, s7
    s_mov_b32 s14, {512*1024}
    s_mov_b32 s51, {64*1024}
    s_lshl_b32 s44, s29, 7
    """)
    g_voff_T(p, 2, 4096, "s44")
    p.I("s_lshl_b32 s44, s30, 7")
    g_voff_T(p, 96, 1024, "s44")
    p.I("s_branch K3_join")
    p.L("K3_isL")
    p.I(f"""s_mov_b32 s8, s16
    s_mov_b32 s9, s17
    s_mov_b32 s10, {WS_USED}
    s_movk_i32 s33, 4096
    s_mov_b32 s12, s16
    s_mov_b32 s13, s17
    s_mov_b32 s14, {WS_USED}
    s_movk_i32 s51, 4096
    s_lshl_b32 s44, s30, 1
    s_add_u32 s44, s44, s24
    s_sub_u32 s44, s44, 2
    s_mul_i32 s44, s44, {GFS*1024}
    s_add_u32 s44, s44, {GF}
    """)
    g_voff_L(p, 2, "s44")
    p.I(f"""s_lshl_b32 s44, s29, 1
    s_add_u32 s44, s44, s24
    s_sub_u32 s44, s44, 2
    s_lshl_b32 s44, s44, 15
    s_add_u32 s44, s44, {OF}
    """)
    g_voff_L(p, 96, "s44")
    p.L("K3_join")
    p.I("""s_mul_i32 s35, s34, s33
    s_mul_i32 s48, s33, 22
    s_lshl_b32 s36, s24, 12
    s_mov_b32 s42, 0
    s_mov_b32 s49, 0
    """)
    for _ in range(G_D - 1):
        for x in g_dma(): p.I(x)
    g_taddr(p, 6, 2, "s41")
    g_laddr(p, 7, "s40")
    g_taddr(p, 101, 2, "s40")
    g_laddr(p, 102, "s41")
    for r in range(64, 96): p.I(f"v_mov_b32 v{r}, 0")
    p.I(f"s_waitcnt vmcnt({4*(G_D-1)})")
    p.I("v_lshlrev_b32 v40, 16, v40")
    for i in range(8):
        p.I(f"v_lshlrev_b32 v{16+2*i}, 16, v{32+i}")
        p.I(f"v_and_b32 v{17+2*i}, 0xffff0000, v{32+i}")
    for i in range(16): p.I(f"v_add_f32 v{16+i}, v{16+i}, v40")
    p.I("s_mov_b32 s37, 0")
    cnt = [0]
    def sw():
        cnt[0] += 1
        lab = f"K3_nosw{cnt[0]}"
        p.I("s_cmp_lg_u32 s42, 22")
        p.I(f"s_cbranch_scc1 {lab}")
        p.I("""s_mov_b32 s8, s12
        s_mov_b32 s9, s13
        s_mov_b32 s10, s14
        s_mov_b32 s33, s51
        s_mul_i32 s35, s50, s51
        s_lshl_b32 s48, s51, 3
        v_mov_b32 v2, v96
        v_mov_b32 v3, v97
        v_mov_b32 v4, v98
        v_mov_b32 v5, v99""")
        p.L(lab)
    def stop():
        p.I("s_cmp_ge_u32 s42, 30")
        p.I("s_cselect_b32 s10, 0, s10")
    p.L("K3_loopY")
    g_body(p, 32, 64, 8, False, sw)
    g_body(p, 64, 32, 8, False, sw)
    p.I("""s_add_u32 s37, s37, 1
    s_cmp_lt_u32 s37, 11
    s_cbranch_scc1 K3_loopY""")
    for x in g_mfmas(64, False): p.I(x)
    p.I("v_mov_b32 v6, v101")
    p.I("v_mov_b32 v7, v102")
    for r in range(64, 96): p.I(f"v_mov_b32 v{r}, 0")
    p.I("s_mov_b32 s37, 0")
    p.L("K3_loopO")
    g_body(p, 32, 64, 8, True, stop)
    g_body(p, 64, 32, 8, True, stop)
    p.I("""s_add_u32 s37, s37, 1
    s_cmp_lt_u32 s37, 4
    s_cbranch_scc1 K3_loopO""")
    for x in g_mfmas(64, True): p.I(x)
    p.I("""s_mov_b32 s20, s56
    s_mov_b32 s21, s57""")
    for i in range(8): p.I(f"v_cvt_pk_bf16_f32 v{32+i}, v{16+2*i}, v{17+2*i}")
    p.I("""v_permlane32_swap_b32 v32, v34
    v_permlane32_swap_b32 v33, v35
    v_permlane32_swap_b32 v36, v38
    v_permlane32_swap_b32 v37, v39
    buffer_store_dwordx4 v[32:35], v100, s[20:23], 0 offen
    buffer_store_dwordx4 v[36:39], v100, s[20:23], 0 offen offset:32
    """)
    p.L("K3_end")
    p.I("s_endpgm")

def main():
    hdr = open("parallel_sum__sliding_block__mixer_token_mlp__prompt.s.ref").read().split("; Override launch")[0]
    out = hdr
    out += f"; @launch kernel=k1_kernel grid=(256,1,1) block=(256,1,1) lds={K1_LDS}\n"
    out += f"; @launch kernel=k2_kernel grid=(448,1,1) block=(256,1,1) lds={K2_LDS}\n"
    out += f"; @launch kernel=k3_kernel grid=(256,1,1) block=(256,1,1) lds={K3_LDS}\n"
    out += '.amdgcn_target "amdgcn-amd-amdhsa--gfx950"\n.text\n'
    for g in (gen_k1, gen_k2, gen_k3):
        p = Prog(); g(p); out += p.finalize()
    out += '.section .rodata,"a"\n.p2align 6\n' + kd("k1_kernel", 208) + ".p2align 6\n" + kd("k2_kernel", 212) + ".p2align 6\n" + kd("k3_kernel", 104)
    open(sys.argv[1], "w").write(out)
main()
```

```python
import sys, math, struct
from asmlib import Prog

QF, KF, VF, HF, GF, OF, WS_USED = 0x0, 0x200000, 0x400000, 0x600000, 0x800000, 0xA00000, 0xC00000
GFS = 88
def f32(x): return "0x%08x" % struct.unpack("<I", struct.pack("<f", x))[0]
LOG2E = 1.4426950408889634
MFMA = "v_mfma_f32_32x32x16_bf16"
MFMA16 = "v_mfma_f32_16x16x32_bf16"
def vr(a, n): return f"v[{a}:{a+n-1}]"
OPT = sys.argv[2:]
STAMP = "--stamp" in OPT
def opt(name, default):
    for o in OPT:
        if o.startswith(name + "="): return int(o.split("=")[1])
    return default

def kd(name, vgpr, sgpr=102):
    acc = (vgpr + 3) // 4 * 4
    return f""".amdhsa_kernel {name}
  .amdhsa_next_free_vgpr {vgpr}
  .amdhsa_next_free_sgpr {sgpr}
  .amdhsa_accum_offset {acc}
  .amdhsa_group_segment_fixed_size 0
  .amdhsa_kernarg_size 88
  .amdhsa_user_sgpr_count 2
  .amdhsa_user_sgpr_kernarg_segment_ptr 1
  .amdhsa_system_sgpr_workgroup_id_x 1
.end_amdhsa_kernel
"""
def head(p, name):
    p.I(f".globl {name}\n.p2align 8\n.type {name},@function")
    p.L(name)
def stamp(p, idx):
    if not STAMP: return
    p.I("s_memtime s[100:101]" if "cyc" in OPT else "s_memrealtime s[100:101]")
    p.I("s_waitcnt lgkmcnt(0)")
    p.I(f"s_mov_b32 s{88+idx}, s100")
def stamp_out(p, kidx, n):
    if not STAMP: return
    p.I("s_waitcnt vmcnt(0)")
    stamp(p, n)
    p.I("s_load_dwordx2 s[98:99], s[0:1], 80")
    for i in range(8): p.I(f"v_mov_b32 v{8+i}, s{88+i}")
    p.I(f"s_lshl_b32 s96, s2, 4")
    p.I(f"s_add_u32 s96, s96, s3")
    p.I(f"s_lshl_b32 s96, s96, 5")
    p.I(f"s_add_u32 s96, s96, {0x1000000 + kidx * 0x80000}")
    p.I("v_mov_b32 v2, s96")
    p.I("s_waitcnt lgkmcnt(0)")
    p.I("s_mov_b64 exec, 1")
    p.I("global_store_dwordx4 v2, v[8:11], s[98:99]")
    p.I("global_store_dwordx4 v2, v[12:15], s[98:99] offset:16")
def dpp_add(v, m): return f"v_add_f32_dpp v{v}, v{v}, v{v} {m} row_mask:0xf bank_mask:0xf"
def allreduce32(v, t):
    L = [dpp_add(v, m) for m in ("quad_perm:[1,0,3,2]", "quad_perm:[2,3,0,1]", "row_half_mirror", "row_mirror")]
    return L + [f"v_mov_b32 v{t}, v{v}", f"v_permlane16_swap_b32 v{v}, v{t}", f"v_add_f32 v{v}, v{v}, v{t}"]
def interleave(main, fill, upto=None):
    out = []; n = upto or len(main); k = 0
    for i, m in enumerate(main):
        out.append(m)
        tgt = min(len(fill), (len(fill) * (i + 1) + n - 1) // n)
        while k < tgt: out.append(fill[k]); k += 1
    return out
import re
def unpk(L):
    out = []
    for x in L:
        m = re.match(r"v_pk_(add|mul|fma)_f32 (.*)", x)
        if not m: out.append(x); continue
        op = m.group(1); rest = m.group(2)
        sel = None
        ms = re.search(r" op_sel_hi:\[([01,]+)\]", rest)
        if ms: sel = [int(c) for c in ms.group(1).split(",")]; rest = rest[:ms.start()]
        regs = [int(r) for r in re.findall(r"v\[(\d+):\d+\]", rest)]
        n = len(regs) - 1
        sel = sel or [1] * n
        for h in range(2):
            src = [f"v{regs[1+i] + (h if sel[i] else 0)}" for i in range(n)]
            d = f"v{regs[0]+h}"
            if op == "fma" and src[2] == d: out.append(f"v_fmac_f32 {d}, {src[0]}, {src[1]}")
            else: out.append(f"v_{op}_f32 {d}, " + ", ".join(src))
    return out
def emit(p, L):
    for x in L: p.I(x)
def wave_ids(p):
    p.I("""v_lshrrev_b32 v2, 6, v0
    v_and_b32 v1, 63, v0
    v_readfirstlane_b32 s3, v2
    s_and_b32 s24, s3, 3""")
def xcd_decode(p, src, ishift):
    p.I(f"""s_and_b32 s39, {src}, 7
    s_lshr_b32 s43, {src}, 3
    s_lshr_b32 s25, s39, 1
    s_and_b32 s26, s39, 1
    s_lshr_b32 s27, s43, {ishift}
    s_and_b32 s28, s43, {(1 << ishift) - 1}""")
def code_prefetch(p, first, vt):
    if "nocpf" in OPT: return
    lab = f"{first}_pc"
    p.I("s_getpc_b64 s[18:19]")
    p.L(lab)
    p.I(f"s_sub_u32 s18, s18, {lab}-{first}")
    p.I("s_subb_u32 s19, s19, 0")
    p.I(f"v_lshlrev_b32 v{vt}, 7, v0")
    p.I(f"v_min_u32 v{vt}, CODE_END-{first}-4, v{vt}")
    p.I(f"global_load_dword v{vt}, v{vt}, s[18:19]")

K1_RING = 131072; K1_PITCH = 1088; K1_LNS = K1_RING; K1_STAT = K1_LNS + 8 * K1_PITCH; K1_PART = K1_STAT + 512
K1_LDS = K1_PART + 4 * 384
def gen_k1(p):
    head(p, "k1_kernel")
    p.I("""s_cmp_ge_u32 s2, 256
    s_cbranch_scc1 K1_end
    s_load_dwordx4 s[4:7], s[0:1], 0
    s_load_dwordx2 s[16:17], s[0:1], 80
    s_load_dwordx2 s[50:51], s[0:1], 32""")
    wave_ids(p)
    xcd_decode(p, "s2", 2)
    p.I(f"""s_lshl_b32 s29, s25, 9
    s_lshl_b32 s39, s27, 6
    s_add_u32 s29, s29, s39
    s_lshl_b32 s30, s26, 2
    s_add_u32 s30, s30, s28
    """)
    stamp(p, 0)
    p.I("""s_cmp_lt_u32 s3, 4
    s_cbranch_scc1 K1_cons
    s_cmp_ge_u32 s3, 8
    s_cbranch_scc1 K1_aux""")
    if "rot" in OPT or "rot1" in OPT:
        p.I("""s_lshl_b32 s39, s28, 1
        s_add_u32 s34, s27, s39
        s_and_b32 s34, s34, 7""")
    else:
        p.I("s_mov_b32 s34, 0")
    p.I("""s_mov_b32 s11, 0x00020000
    v_lshrrev_b32 v26, 3, v1
    v_lshrrev_b32 v27, 4, v1
    v_and_b32 v28, 7, v1
    s_lshl_b32 s36, s24, 13
    s_cmp_eq_u32 s24, 0
    s_cbranch_scc1 K1_isx
    s_mov_b32 s10, 0x180000
    s_movk_i32 s31, 3072
    s_sub_u32 s32, s24, 1
    s_lshl_b32 s32, s32, 10
    s_lshl_b32 s39, s30, 7
    s_add_u32 s32, s32, s39
    s_mov_b32 s33, 196608
    v_and_b32 v29, 1, v27
    v_lshlrev_b32 v29, 2, v29
    v_mov_b32 v30, v29
    s_branch K1_join
    """)
    p.L("K1_isx")
    p.I("""s_mov_b32 s10, 0x200000
    s_movk_i32 s31, 1024
    s_lshl_b32 s32, s29, 10
    s_movk_i32 s33, 128
    v_mov_b32 v29, v27
    v_add_u32 v30, 4, v27
    """)
    p.L("K1_join")
    p.I("""v_xor_b32 v29, v29, v28
    v_xor_b32 v30, v30, v28
    v_mul_lo_u32 v26, v26, s31
    v_add_u32 v26, s32, v26
    v_lshl_add_u32 v29, v29, 4, v26
    v_lshl_add_u32 v30, v30, 4, v26
    s_lshl_b32 s39, s31, 3
    s_mov_b32 s45, 0
    """)
    for u in range(8):
        src = 29 if u % 2 == 0 else 30
        p.I(f"s_sub_u32 s46, s45, {(u & 3) * 1024}")
        p.I(f"v_add_u32 v{2+u}, s46, v{src}")
        if u < 7: p.I("s_add_u32 s45, s45, s39")
    p.I("""s_cmp_eq_u32 s24, 0
    s_waitcnt lgkmcnt(0)
    s_cselect_b32 s8, s4, s6
    s_cselect_b32 s9, s5, s7""")
    def dma_half(st, hf):
        slot = st & 3
        L = []
        if hf == 0: L.append("s_mul_i32 s35, s34, s33")
        L.append(f"s_add_u32 m0, s36, {slot*32768 + hf*4096}")
        for u in range(4 * hf, 4 * hf + 4):
            L.append(f"buffer_load_dwordx4 v{2+u}, s[8:11], s35 offen offset:{(u & 3) * 1024} lds")
        if hf == 1: L += ["s_add_u32 s34, s34, 1", "s_and_b32 s34, s34, 7"]
        return L
    def w1_prefetch():
        if "nopf" in OPT: return []
        return [f"s_mov_b32 s8, s50", "s_mov_b32 s9, s51", f"s_mov_b32 s10, {2048*2752}",
                "s_lshr_b32 s39, s2, 3", "s_lshl_b32 s39, s39, 6", "v_add_u32 v26, s39, v1", "v_mul_u32_u24 v26, 2752, v26",
                "s_mul_i32 s39, s25, 6", "s_cmp_eq_u32 s25, 3", "s_cselect_b32 s46, 1, 0", "s_sub_u32 s39, s39, s46",
                "s_add_u32 s39, s39, s24", "s_lshl_b32 s39, s39, 7",
                "buffer_load_dword v20, v26, s[8:11], s39 offen", "buffer_load_dword v21, v26, s[8:11], s39 offen offset:512"]
    sched = {0: [4, 3, 3, 2, 2, 2, 0, 0, 0], 1: [3, 3, 2, 2, 2, 2, 2, 0, 0], 2: [4, 2, 2, 2, 2, 2, 2, 0, 0], 3: [6, 2, 2, 2, 2, 2, 0, 0, 0]}[opt("k1s", 0)]
    q = []; nh = [0]
    def issue(n, t):
        for _ in range(n):
            st, hf = nh[0] >> 1, nh[0] & 1
            assert st <= t + 3, (st, t)
            emit(p, dma_half(st, hf)); q.extend([f"S{st}"] * 4); nh[0] += 1
            if nh[0] == 16:
                P = w1_prefetch(); emit(p, P); q.extend(["PF"] * sum("buffer_load" in x for x in P))
    def wait_for(tag):
        idx = max(i for i, x in enumerate(q) if x == tag)
        return f"s_waitcnt vmcnt({len(q) - 1 - idx})"
    issue(sched[0], 0)
    stamp(p, 1)
    for t in range(8):
        assert q.count(f"S{t}") == 8
        p.I(wait_for(f"S{t}"))
        p.I("s_barrier")
        issue(sched[t + 1], t)
    p.I("s_barrier")
    stamp(p, 2)
    stamp_out(p, 0, 3)
    p.I("s_endpgm")
    p.L("K1_aux")
    X = 72; RAW = 64; T = 88
    p.I(f"""s_mov_b32 s15, 0x00020000
    s_mov_b32 s14, {WS_USED}
    s_mov_b32 s23, 0x00020000
    s_mov_b32 s22, 0x200000
    v_lshrrev_b32 v23, 5, v1
    v_and_b32 v24, 31, v1
    s_lshl_b32 s44, s30, 3
    s_add_u32 s44, s44, s29
    s_lshl_b32 s39, s24, 1
    s_add_u32 s39, s39, s44
    v_add_u32 v25, s39, v23
    v_lshlrev_b32 v25, 10, v25
    v_lshl_add_u32 v25, v24, 4, v25
    s_waitcnt lgkmcnt(0)
    s_mov_b32 s20, s4
    s_mov_b32 s21, s5
    s_mov_b32 s12, s16
    s_mov_b32 s13, s17
    buffer_load_dwordx4 {vr(RAW,4)}, v25, s[20:23], 0 offen
    buffer_load_dwordx4 {vr(RAW+4,4)}, v25, s[20:23], 0 offen offset:512
    s_lshl_b32 s39, s24, 11
    v_lshl_add_u32 v10, v1, 4, s39
    v_add_u32 v11, 0x10000, v10
    s_lshl_b32 s39, s24, 1
    v_add_u32 v26, s39, v23
    v_mul_u32_u24 v26, {K1_PITCH}, v26
    v_lshl_add_u32 v26, v24, 4, v26
    v_add_u32 v26, {K1_LNS}, v26
    v_bfe_u32 v27, v1, 2, 2
    v_mul_u32_u24 v27, {K1_PITCH}, v27
    v_lshrrev_b32 v28, 4, v1
    v_lshl_add_u32 v27, v28, 5, v27
    v_and_b32 v28, 3, v1
    v_lshl_add_u32 v27, v28, 3, v27
    s_lshl_b32 s39, s24, 8
    s_add_u32 s39, s39, {K1_LNS}
    v_add_u32 v27, s39, v27
    s_lshl_b32 s39, s24, 2
    v_add_u32 v29, s39, v23
    v_lshlrev_b32 v29, 17, v29
    v_lshl_add_u32 v29, v24, 4, v29
    s_lshr_b32 s39, s44, 3
    s_lshl_b32 s39, s39, 9
    s_add_u32 s39, s39, {HF}
    v_add_u32 v29, s39, v29
    s_mov_b32 s46, 262144
    v_lshrrev_b32 v30, 3, v1
    s_lshl_b32 s39, s24, 6
    s_add_u32 s39, s39, {K1_STAT}
    v_lshl_add_u32 v30, v30, 2, s39
    """)
    for r in range(12, 20): p.I(f"v_mov_b32 v{r}, 0")
    def st_reads(t):
        a = 10 + ((t & 3) >> 1); o = (t & 1) * 32768
        return [f"ds_read_b128 v[32:35], v{a} offset:{o}", f"ds_read_b128 v[36:39], v{a} offset:{o+1024}"]
    def st_math():
        L = []
        for i in range(8):
            L.append(f"v_lshlrev_b32 v{40+2*i}, 16, v{32+i}")
            L.append(f"v_and_b32 v{41+2*i}, 0xffff0000, v{32+i}")
        for i in range(4):
            for hb in range(2):
                x = vr(40 + 8 * hb + 2 * i, 2); s = vr(12 + 4 * hb, 2); qq = vr(14 + 4 * hb, 2)
                L.append(f"v_pk_add_f32 {s}, {s}, {x}")
                L.append(f"v_pk_fma_f32 {qq}, {x}, {x}, {qq}")
        return L
    def unpack():
        L = []
        for i in range(8):
            L.append(f"v_lshlrev_b32 v{X+2*i}, 16, v{RAW+i}")
            L.append(f"v_and_b32 v{X+2*i+1}, 0xffff0000, v{RAW+i}")
        return L
    def ln():
        L = [f"v_pk_add_f32 {vr(T,2)}, {vr(X,2)}, {vr(X+2,2)}", f"v_pk_add_f32 {vr(T+2,2)}, {vr(X+4,2)}, {vr(X+6,2)}",
             f"v_pk_add_f32 {vr(T+4,2)}, {vr(X+8,2)}, {vr(X+10,2)}", f"v_pk_add_f32 {vr(T+6,2)}, {vr(X+12,2)}, {vr(X+14,2)}",
             f"v_pk_add_f32 {vr(T,2)}, {vr(T,2)}, {vr(T+2,2)}", f"v_pk_add_f32 {vr(T+4,2)}, {vr(T+4,2)}, {vr(T+6,2)}",
             f"v_pk_add_f32 {vr(T,2)}, {vr(T,2)}, {vr(T+4,2)}", f"v_add_f32 v{T}, v{T}, v{T+1}"]
        L += allreduce32(T, T + 1)
        L.append(f"v_mul_f32 v{T}, {f32(-1.0/512)}, v{T}")
        L += [f"v_pk_add_f32 {vr(X+2*i,2)}, {vr(X+2*i,2)}, {vr(T,2)} op_sel_hi:[1,0]" for i in range(8)]
        L += [f"v_pk_mul_f32 {vr(T+2,2)}, {vr(X,2)}, {vr(X,2)}", f"v_pk_mul_f32 {vr(T+4,2)}, {vr(X+2,2)}, {vr(X+2,2)}"]
        for i in range(2, 8):
            a = T + 2 + 2 * (i & 1)
            L.append(f"v_pk_fma_f32 {vr(a,2)}, {vr(X+2*i,2)}, {vr(X+2*i,2)}, {vr(a,2)}")
        L += [f"v_pk_add_f32 {vr(T+2,2)}, {vr(T+2,2)}, {vr(T+4,2)}", f"v_add_f32 v{T+2}, v{T+2}, v{T+3}"]
        L += allreduce32(T + 2, T + 3)
        L += [f"v_mov_b32 v{T+3}, {f32(1e-5)}", f"v_fmac_f32 v{T+3}, {f32(1.0/512)}, v{T+2}", f"v_rsq_f32 v{T+2}, v{T+3}"]
        L += [f"v_pk_mul_f32 {vr(X+2*i,2)}, {vr(X+2*i,2)}, {vr(T+2,2)} op_sel_hi:[1,0]" for i in range(8)]
        L += [f"v_cvt_pk_bf16_f32 v{RAW+i}, v{X+2*i}, v{X+2*i+1}" for i in range(8)]
        return L
    work = unpack() + ln() + unpack() + ln() + [f"ds_write_b128 v26, {vr(RAW,4)}", f"ds_write_b128 v26, {vr(RAW+4,4)} offset:512"]
    nsl = 6
    if "noln" in OPT: work = work[-12:]
    stm = st_math() if "nostat" not in OPT else []
    if "auxpk" not in OPT: work = unpk(work); stm = unpk(stm)
    slices = [work[len(work) * i // nsl: len(work) * (i + 1) // nsl] for i in range(nsl)]
    stamp(p, 1)
    for t in range(8):
        p.I("s_barrier")
        emit(p, st_reads(t))
        if t == 0: p.I("s_waitcnt vmcnt(0)")
        if t < nsl: emit(p, slices[t])
        if t == nsl:
            p.I(f"""ds_read_b64_tr_b16 v[72:73], v27
            ds_read_b64_tr_b16 v[74:75], v27 offset:{4*K1_PITCH}
            ds_read_b64_tr_b16 v[76:77], v27 offset:128
            ds_read_b64_tr_b16 v[78:79], v27 offset:{4*K1_PITCH+128}""")
        p.I("s_waitcnt lgkmcnt(0)")
        if t == nsl:
            p.I("""buffer_store_dwordx4 v[72:75], v29, s[12:15], 0 offen
            buffer_store_dwordx4 v[76:79], v29, s[12:15], s46 offen""")
        emit(p, stm)
    stamp(p, 2)
    for hb in range(2):
        s, qq = 12 + 4 * hb, 14 + 4 * hb
        p.I(f"v_add_f32 v{s}, v{s}, v{s+1}")
        p.I(f"v_add_f32 v{qq}, v{qq}, v{qq+1}")
    for m in ("quad_perm:[1,0,3,2]", "quad_perm:[2,3,0,1]", "row_half_mirror"):
        for v in (12, 14, 16, 18): p.I(dpp_add(v, m))
    for f in ("v_mul_f32 v{s}, " + f32(-1.0/512) + ", v{s}", "v_mul_f32 v{q}, " + f32(1.0/512) + ", v{q}", "v_fma_f32 v{q}, -v{s}, v{s}, v{q}",
              "v_max_f32 v{q}, 0, v{q}", "v_add_f32 v{q}, " + f32(1e-5) + ", v{q}", "v_rsq_f32 v{q}, v{q}"):
        for hb in range(2): p.I(f.format(s=12 + 4 * hb, q=14 + 4 * hb))
    p.I(f"""ds_write_b32 v30, v12
    ds_write_b32 v30, v16 offset:32
    ds_write_b32 v30, v14 offset:256
    ds_write_b32 v30, v18 offset:288
    s_waitcnt lgkmcnt(0)
    s_barrier
    """)
    stamp(p, 3)
    stamp_out(p, 0, 4)
    p.I("s_endpgm")
    p.L("K1_cons")
    code_prefetch(p, "k1_kernel", 22)
    p.I(f"""s_mov_b32 s15, 0x00020000
    s_mov_b32 s14, {WS_USED}
    v_lshrrev_b32 v23, 5, v1
    v_and_b32 v24, 31, v1
    s_and_b32 s40, s24, 1
    s_lshr_b32 s41, s24, 1
    v_bfe_u32 v26, v1, 1, 3
    v_xor_b32 v26, v26, v23
    s_lshl_b32 s39, s40, 12
    v_lshlrev_b32 v27, 7, v24
    v_add_u32 v27, s39, v27
    """)
    for pp in range(4):
        p.I(f"s_xor_b32 s39, s40, {pp}")
        p.I("s_lshl_b32 s46, s39, 1")
        p.I(f"v_xor_b32 v28, s46, v26")
        p.I(f"v_lshl_add_u32 v{2+pp}, v28, 4, v27")
        p.I(f"v_add_u32 v{10+pp}, 0x10000, v{2+pp}")
    p.I("""v_bfe_u32 v26, v1, 2, 2
    v_lshl_add_u32 v27, v23, 3, v26
    v_lshlrev_b32 v27, 7, v27
    v_bfe_u32 v28, v1, 4, 1
    v_lshlrev_b32 v28, 1, v28
    v_bfe_u32 v29, v1, 1, 1
    v_add_u32 v28, v28, v29
    s_lshl_b32 s39, s41, 2
    v_add_u32 v28, s39, v28
    v_bfe_u32 v29, v1, 3, 1
    v_lshlrev_b32 v29, 2, v29
    v_xor_b32 v28, v28, v29
    v_lshl_add_u32 v27, v28, 4, v27
    v_and_b32 v29, 1, v1
    v_lshl_add_u32 v27, v29, 3, v27
    v_add_u32 v27, 8192, v27
    """)
    for pp in range(4):
        p.I(f"s_xor_b32 s39, s40, {pp}")
        p.I("s_lshl_b32 s46, s39, 11")
        p.I(f"v_add_u32 v{6+pp}, s46, v27")
        p.I(f"v_add_u32 v{14+pp}, 0x10000, v{6+pp}")
    p.I(f"""v_and_b32 v26, 15, v1
    v_bfe_u32 v27, v1, 4, 1
    v_cmp_eq_u32 vcc, v26, v27
    v_mov_b32 v28, 0x3f803f80
    v_cndmask_b32 v28, 0, v28, vcc
    v_mov_b32 v29, v28
    v_mov_b32 v30, v28
    v_mov_b32 v31, v28
    s_mul_i32 s39, s24, 384
    s_add_u32 s39, s39, {K1_PART}
    v_lshl_add_u32 v18, v1, 2, s39
    s_mul_i32 s39, s41, 768
    s_add_u32 s39, s39, {K1_PART}
    v_lshl_add_u32 v19, v23, 4, s39
    v_lshl_add_u32 v20, v24, 2, s39
    s_lshl_b32 s39, s40, 7
    s_add_u32 s39, s39, {K1_STAT}
    v_lshl_add_u32 v21, v24, 2, s39
    v_lshl_add_u32 v25, v23, 4, s39
    s_lshr_b32 s46, s29, 5
    s_add_u32 s46, s46, s40
    s_lshl_b32 s39, s30, 1
    s_add_u32 s39, s39, s41
    s_lshl_b32 s45, s39, 17
    s_lshl_b32 s47, s46, 10
    s_add_u32 s47, s47, s45
    v_lshl_add_u32 v26, v1, 4, s47
    s_lshl_b32 s47, s46, 11
    s_add_u32 s47, s47, s45
    s_add_u32 s47, s47, {VF}
    v_lshl_add_u32 v27, v1, 4, s47
    s_mov_b32 s45, 65536
    s_mov_b32 s46, {KF}
    s_mov_b32 s47, {KF + 65536}
    s_waitcnt lgkmcnt(0)
    s_mov_b32 s12, s16
    s_mov_b32 s13, s17
    """)
    FB, CS = 80, 144
    def reads(g):
        t, pp = g >> 2, g & 3
        hi = (t & 3) >> 1; o = (t & 1) * 32768; b = FB + 16 * pp
        L = [f"ds_read_b128 {vr(b,4)}, v{2+8*hi+pp} offset:{o}"]
        for seg in range(3):
            for tt in range(2):
                L.append(f"ds_read_b64_tr_b16 {vr(b+4+4*seg+2*tt,2)}, v{6+8*hi+pp} offset:{o + seg*8192 + tt*512}")
        return L
    def mfmas(g):
        pp = g & 3; b = FB + 16 * pp; z = g == 0
        big = [f"{MFMA} v[32:47], {vr(b+4,4)}, {vr(b,4)}, {'0' if z else 'v[32:47]'}",
               f"{MFMA} v[48:63], {vr(b+8,4)}, {vr(b,4)}, {'0' if z else 'v[48:63]'}",
               f"{MFMA} v[64:79], {vr(b,4)}, {vr(b+12,4)}, {'0' if z else 'v[64:79]'}"]
        small = []
        if pp % 2 == 0:
            for seg in range(3):
                c = vr(CS + 4 * seg, 4)
                small.append(f"{MFMA16} {c}, v[28:31], {vr(b+4+4*seg,4)}, {'0' if z else c}")
        return big, small
    stamp(p, 1)
    p.I("s_barrier")
    emit(p, reads(0) + reads(1))
    stamp(p, 2)
    for g in range(32):
        big, small = mfmas(g)
        M = (small + big) if g == 30 else (big + small)
        nxt = g + 2
        if nxt < 32 and (nxt & 3) == 0:
            p.I("s_waitcnt lgkmcnt(7)")
            p.I(M[0])
            p.I("s_waitcnt lgkmcnt(0)")
            p.I("s_barrier")
            emit(p, interleave(M[1:], reads(nxt)))
        elif nxt < 32:
            p.I("s_waitcnt lgkmcnt(7)")
            emit(p, interleave(M, reads(nxt)))
        elif g == 30:
            p.I("s_waitcnt lgkmcnt(0)")
            emit(p, M)
            p.I("s_mov_b64 exec, 0xffff")
            for seg in range(3):
                p.I(f"ds_write_b32 v18, v{CS+4*seg} offset:{seg*128}")
                p.I(f"ds_write_b32 v18, v{CS+4*seg+1} offset:{seg*128+64}")
            p.I("s_mov_b64 exec, -1")
        else:
            emit(p, M[:1])
            p.I("""s_waitcnt lgkmcnt(0)
            s_barrier""")
            CQ, CK, C2, NM, RS = 80, 96, 112, 144, 80
            R = ["ds_read_b32 v4, v21", "ds_read_b32 v6, v21 offset:256"]
            R += [f"ds_read_b128 {vr(CQ+4*k,4)}, v19 offset:{k*32}" for k in range(4)]
            R += [f"ds_read_b128 {vr(C2+4*k,4)}, v19 offset:{384+k*32}" for k in range(4)]
            R += [f"ds_read_b128 {vr(CK+4*k,4)}, v19 offset:{128+k*32}" for k in range(4)]
            emit(p, interleave(M[1:], R))
    stamp(p, 3)
    C3 = 144
    for k in range(4): p.I(f"ds_read_b128 {vr(C3+4*k,4)}, v19 offset:{384+128+k*32}")
    p.I("s_waitcnt lgkmcnt(8)")
    p.I(f"v_mul_f32 v8, {f32(0.25*LOG2E)}, v6")
    for i in range(8): p.I(f"v_pk_add_f32 {vr(CQ+2*i,2)}, {vr(CQ+2*i,2)}, {vr(C2+2*i,2)}")
    NM, RS = 112, 128
    p.I("""ds_read_b32 v10, v20 offset:256
    ds_read_b32 v11, v20 offset:640""")
    for k in range(4): p.I(f"ds_read_b128 {vr(NM+4*k,4)}, v25 offset:{k*32}")
    for i in range(8): p.I(f"v_pk_fma_f32 {vr(32+2*i,2)}, {vr(CQ+2*i,2)}, v[4:5], {vr(32+2*i,2)} op_sel_hi:[1,0,1]")
    for i in range(8): p.I(f"v_pk_mul_f32 {vr(32+2*i,2)}, {vr(32+2*i,2)}, v[8:9] op_sel_hi:[1,0]")
    for i in range(8): p.I(f"v_cvt_pk_bf16_f32 v{32+i}, v{32+2*i}, v{32+2*i+1}")
    p.I("buffer_store_dwordx4 v[32:35], v26, s[12:15], 0 offen")
    p.I("buffer_store_dwordx4 v[36:39], v26, s[12:15], s45 offen")
    p.I("s_waitcnt lgkmcnt(6)")
    for k in range(4): p.I(f"ds_read_b128 {vr(RS+4*k,4)}, v25 offset:{256+k*32}")
    for i in range(8): p.I(f"v_pk_add_f32 {vr(CK+2*i,2)}, {vr(CK+2*i,2)}, {vr(C3+2*i,2)}")
    for i in range(8): p.I(f"v_pk_fma_f32 {vr(48+2*i,2)}, {vr(CK+2*i,2)}, v[4:5], {vr(48+2*i,2)} op_sel_hi:[1,0,1]")
    for i in range(8): p.I(f"v_pk_mul_f32 {vr(48+2*i,2)}, {vr(48+2*i,2)}, v[6:7] op_sel_hi:[1,0]")
    for i in range(8): p.I(f"v_cvt_pk_bf16_f32 v{48+i}, v{48+2*i}, v{48+2*i+1}")
    p.I("buffer_store_dwordx4 v[48:51], v26, s[12:15], s46 offen")
    p.I("buffer_store_dwordx4 v[52:55], v26, s[12:15], s47 offen")
    p.I("s_waitcnt lgkmcnt(0)")
    p.I("v_add_f32 v10, v10, v11")
    for i in range(8): p.I(f"v_pk_fma_f32 {vr(64+2*i,2)}, {vr(NM+2*i,2)}, v[10:11], {vr(64+2*i,2)} op_sel_hi:[1,0,1]")
    for i in range(8): p.I(f"v_pk_mul_f32 {vr(64+2*i,2)}, {vr(64+2*i,2)}, {vr(RS+2*i,2)}")
    for i in range(8): p.I(f"v_cvt_pk_bf16_f32 v{64+i}, v{64+2*i}, v{64+2*i+1}")
    p.I(f"buffer_store_dwordx4 v[64:67], v27, s[12:15], 0 offen")
    p.I(f"buffer_store_dwordx4 v[68:71], v27, s[12:15], 0 offen offset:1024")
    stamp(p, 4)
    stamp_out(p, 0, 5)
    p.L("K1_end")
    p.I("s_endpgm")

def g_dma(D):
    L = ["s_mov_b32 m0, s36"]
    for u in range(4):
        L.append(f"buffer_load_dwordx4 v{2+u}, s[8:11], s35 offen offset:{u*1024} lds")
    L += ["s_add_u32 s35, s35, s33", "s_cmp_eq_u32 s35, s48", "s_cselect_b32 s35, 0, s35",
          "s_add_u32 s36, s36, 16384", f"s_cmp_ge_u32 s36, {D*16384}", f"s_cselect_b32 s39, {D*16384}, 0", "s_sub_u32 s36, s36, s39"]
    return L
def g_reads(S, tmul):
    L = []
    for ks in range(4):
        L.append(f"ds_read_b128 {vr(S+8*ks+4,4)}, v9 offset:{ks*1024}")
        for t in range(2):
            L.append(f"ds_read_b64_tr_b16 {vr(S+8*ks+2*t,2)}, v8 offset:{(16*ks + tmul*t)*128}")
    return L
def g_mfmas(S, t_is_a):
    L = []
    for ks in range(4):
        T, Lr = vr(S+8*ks, 4), vr(S+8*ks+4, 4)
        a, b = (T, Lr) if t_is_a else (Lr, T)
        L.append(f"{MFMA} v[16:31], {a}, {b}, v[16:31]")
    return L
def g_adv(D, vt=6, vl=7):
    return ["s_add_u32 s49, s49, 16384", f"s_cmp_ge_u32 s49, {D*16384}", "s_cselect_b32 s49, 0, s49",
            f"v_add_u32 v8, s49, v{vt}", f"v_add_u32 v9, s49, v{vl}"]
def g_cbody(p, D, Srd, Scmp, tmul, t_is_a, vt=6, vl=7):
    p.I("s_barrier")
    R = g_reads(Srd, tmul)
    if Scmp is None: emit(p, R)
    else: emit(p, R[:3] + interleave(g_mfmas(Scmp, t_is_a), R[3:], upto=3))
    emit(p, g_adv(D, vt, vl))
    p.I("s_waitcnt lgkmcnt(0)")
def g_taddr(p, dst, hshift, snb):
    p.I(f"""v_bfe_u32 v10, v1, 2, 2
    v_lshrrev_b32 v11, 5, v1
    v_lshl_add_u32 v10, v11, {hshift}, v10
    v_lshlrev_b32 v10, 7, v10
    v_bfe_u32 v11, v1, 4, 1
    v_lshlrev_b32 v11, 1, v11
    v_bfe_u32 v12, v1, 1, 1
    v_add_u32 v11, v11, v12
    s_lshl_b32 s39, {snb}, 2
    v_add_u32 v11, s39, v11
    v_bfe_u32 v12, v1, 3, 1
    v_lshlrev_b32 v12, 2, v12
    v_xor_b32 v11, v11, v12
    v_lshl_add_u32 v10, v11, 4, v10
    v_and_b32 v12, 1, v1
    v_lshl_add_u32 v{dst}, v12, 3, v10
    """)
def g_laddr(p, dst, snb):
    p.I(f"""s_lshl_b32 s39, {snb}, 12
    s_add_u32 s39, s39, 8192
    v_lshl_add_u32 v{dst}, v1, 4, s39
    """)
def g_voff_T(p, dst, stride, scol):
    p.I(f"""v_lshrrev_b32 v10, 3, v1
    s_lshl_b32 s39, s24, 5
    v_add_u32 v10, s39, v10
    v_mul_u32_u24 v10, {stride}, v10
    v_bfe_u32 v11, v1, 4, 1
    v_lshlrev_b32 v11, 2, v11
    v_and_b32 v12, 7, v1
    v_xor_b32 v11, v11, v12
    v_lshl_add_u32 v10, v11, 4, v10
    v_add_u32 v{dst}, {scol}, v10
    """)
    for u in range(1, 4): p.I(f"v_add_u32 v{dst+u}, {u*(8*stride-1024)}, v{dst}")
def g_voff_L(p, dst, sbase):
    p.I(f"v_lshl_add_u32 v{dst}, v1, 4, {sbase}")
    for u in range(1, 4): p.I(f"v_mov_b32 v{dst+u}, v{dst}")
def g_loader_loop(p, lab, D, n):
    if n <= 0: return
    p.I(f"s_mov_b32 s37, {n}")
    p.L(lab)
    p.I(f"s_waitcnt vmcnt({4*(D-2)})")
    p.I("s_barrier")
    emit(p, g_dma(D))
    p.I(f"""s_sub_u32 s37, s37, 1
    s_cmp_lg_u32 s37, 0
    s_cbranch_scc1 {lab}""")
def g_loader_tail(p, D, extra=0):
    for i in range(D - 1):
        p.I(f"s_waitcnt vmcnt({4*(D-2-i) + extra})")
        p.I("s_barrier")

K2_D = opt("k2d", 5)
K2_LDS = K2_D * 16384
AFIRST = "afirst" in OPT
def gen_k2(p):
    D = K2_D
    head(p, "k2_kernel")
    p.I("""s_cmp_ge_u32 s2, 448
    s_cbranch_scc1 K2_end
    s_load_dwordx4 s[4:7], s[0:1], 32
    s_load_dwordx2 s[16:17], s[0:1], 80""")
    wave_ids(p)
    p.I(f"""s_mov_b32 s15, 0x00020000
    s_mov_b32 s14, {WS_USED}""")
    stamp(p, 0)
    if AFIRST:
        p.I("""s_mov_b32 s38, s2
        s_cmp_lt_u32 s2, 256
        s_cbranch_scc1 K2_attn
        s_sub_u32 s38, s2, 256""")
    else:
        p.I("""s_sub_u32 s38, s2, 192
        s_cmp_ge_u32 s2, 192
        s_cbranch_scc1 K2_attn
        s_mov_b32 s38, s2""")
    xcd_decode(p, "s38", 2)
    p.I("""s_cmp_ge_u32 s25, 2
    s_cselect_b32 s44, 5, 6
    s_cmp_ge_u32 s27, s44
    s_cbranch_scc1 K2_end
    s_mul_i32 s29, s25, 6
    s_cmp_eq_u32 s25, 3
    s_cselect_b32 s39, 1, 0
    s_sub_u32 s29, s29, s39
    s_add_u32 s29, s29, s27
    s_lshl_b32 s30, s26, 2
    s_add_u32 s30, s30, s28
    s_cmp_lt_u32 s3, 4
    s_cbranch_scc1 K2_cons
    s_mov_b32 s11, 0x00020000
    """)
    if "rot" in OPT or "rot2" in OPT:
        p.I("""s_mul_i32 s34, s27, 5
        s_add_u32 s34, s34, s28
        s_and_b32 s34, s34, 31""")
    else:
        p.I("s_mov_b32 s34, 0")
    p.I("""s_cmp_ge_u32 s24, 2
    s_cbranch_scc1 K2_isL""")
    p.I(f"s_mov_b32 s10, {2048*2752}")
    p.I(f"s_mov_b32 s33, {64*2752}")
    p.I("s_lshl_b32 s44, s29, 7")
    g_voff_T(p, 2, 2752, "s44")
    p.I("""s_waitcnt lgkmcnt(0)
    s_mov_b32 s8, s4
    s_mov_b32 s9, s5
    s_branch K2_join""")
    p.L("K2_isL")
    p.I(f"""s_mov_b32 s10, {WS_USED}
    s_movk_i32 s33, 4096
    s_lshl_b32 s44, s30, 1
    s_add_u32 s44, s44, s24
    s_sub_u32 s44, s44, 2
    s_lshl_b32 s44, s44, 17
    s_add_u32 s44, s44, {HF}
    """)
    g_voff_L(p, 2, "s44")
    p.I("""s_waitcnt lgkmcnt(0)
    s_mov_b32 s8, s16
    s_mov_b32 s9, s17""")
    p.L("K2_join")
    p.I("""s_mul_i32 s35, s34, s33
    s_lshl_b32 s48, s33, 5
    s_lshl_b32 s36, s24, 12
    """)
    for _ in range(D - 1): emit(p, g_dma(D))
    stamp(p, 1)
    g_loader_loop(p, "K2_lloop", D, 32 - (D - 1))
    stamp(p, 2)
    g_loader_tail(p, D)
    stamp(p, 3)
    stamp_out(p, 1, 4)
    p.I("s_endpgm")
    p.L("K2_cons")
    p.I("""s_and_b32 s40, s24, 1
    s_lshr_b32 s41, s24, 1
    s_mov_b32 s23, 0x00020000
    s_lshl_b32 s39, s29, 7
    s_lshl_b32 s44, s40, 6
    s_add_u32 s39, s39, s44
    v_lshrrev_b32 v14, 5, v1
    v_lshl_add_u32 v14, v14, 3, s39
    s_movk_i32 s22, 2752
    s_waitcnt lgkmcnt(0)
    s_mov_b32 s12, s16
    s_mov_b32 s13, s17
    s_mov_b32 s20, s6
    s_mov_b32 s21, s7
    """)
    for g in range(4): p.I(f"buffer_load_dwordx2 {vr(64+2*g,2)}, v14, s[20:23], 0 offen offset:{16*g}")
    g_taddr(p, 6, 3, "s40")
    g_laddr(p, 7, "s41")
    p.I("""s_mov_b32 s49, 0
    v_mov_b32 v8, v6
    v_mov_b32 v9, v7
    s_waitcnt vmcnt(0)""")
    for i in range(8):
        p.I(f"v_lshlrev_b32 v{16+2*i}, 16, v{64+i}")
        p.I(f"v_and_b32 v{17+2*i}, 0xffff0000, v{64+i}")
    stamp(p, 1)
    g_cbody(p, D, 32, None, 4, True)
    stamp(p, 2)
    p.I("s_mov_b32 s37, 15")
    p.L("K2_cloop")
    g_cbody(p, D, 64, 32, 4, True)
    g_cbody(p, D, 32, 64, 4, True)
    p.I("""s_sub_u32 s37, s37, 1
    s_cmp_lg_u32 s37, 0
    s_cbranch_scc1 K2_cloop""")
    g_cbody(p, D, 64, 32, 4, True)
    emit(p, g_mfmas(64, True))
    stamp(p, 3)
    c1 = -2.0 * math.sqrt(2.0 / math.pi) * LOG2E
    c2 = c1 * 0.044715
    p.I(f"""s_mov_b32 s44, {f32(c2)}
    s_mov_b32 s45, {f32(c2)}
    v_mov_b32 v12, {f32(c1)}
    v_mov_b32 v13, {f32(c1)}
    s_lshl_b32 s39, s30, 1
    s_add_u32 s39, s39, s41
    s_mul_i32 s39, s39, {GFS}
    s_lshl_b32 s46, s29, 2
    s_add_u32 s39, s39, s46
    s_lshl_b32 s46, s40, 1
    s_add_u32 s39, s39, s46
    s_lshl_b32 s39, s39, 10
    s_add_u32 s39, s39, {GF}
    v_lshl_add_u32 v14, v1, 4, s39
    s_lshl_b32 s46, s29, 1
    s_add_u32 s46, s46, s40
    s_cmp_eq_u32 s46, 43
    s_cselect_b32 s46, 0, -1
    """)
    for i in range(8): p.I(f"v_pk_mul_f32 {vr(32+2*i,2)}, {vr(16+2*i,2)}, {vr(16+2*i,2)}")
    for i in range(8): p.I(f"v_pk_fma_f32 {vr(32+2*i,2)}, {vr(32+2*i,2)}, s[44:45], v[12:13]")
    for i in range(8): p.I(f"v_pk_mul_f32 {vr(32+2*i,2)}, {vr(32+2*i,2)}, {vr(16+2*i,2)}")
    for i in range(16): p.I(f"v_exp_f32 v{32+i}, v{32+i}")
    for i in range(8): p.I(f"v_pk_add_f32 {vr(32+2*i,2)}, {vr(32+2*i,2)}, 1.0 op_sel_hi:[1,0]")
    for i in range(16): p.I(f"v_rcp_f32 v{32+i}, v{32+i}")
    for i in range(8): p.I(f"v_pk_mul_f32 {vr(32+2*i,2)}, {vr(32+2*i,2)}, {vr(16+2*i,2)}")
    for i in range(8): p.I(f"v_cvt_pk_bf16_f32 v{48+i}, v{32+2*i}, v{33+2*i}")
    for i in range(8): p.I(f"v_and_b32 v{48+i}, s46, v{48+i}")
    p.I("buffer_store_dwordx4 v[48:51], v14, s[12:15], 0 offen")
    p.I("buffer_store_dwordx4 v[52:55], v14, s[12:15], 0 offen offset:1024")
    stamp(p, 4)
    stamp_out(p, 1, 5)
    p.I("s_endpgm")

    p.L("K2_attn")
    xcd_decode(p, "s38", 3)
    p.I(f"""s_lshl_b32 s29, s25, 2
    s_add_u32 s29, s29, s27
    s_lshl_b32 s30, s26, 3
    s_add_u32 s30, s30, s28
    s_lshr_b32 s40, s3, 2
    s_lshl_b32 s31, s29, 2
    s_add_u32 s31, s31, s24
    s_lshl_b32 s32, s30, 17
    s_lshl_b32 s39, s31, 10
    s_add_u32 s39, s39, s32
    s_lshl_b32 s44, s40, 16
    s_add_u32 s39, s39, s44
    v_lshl_add_u32 v2, v1, 4, s39
    s_lshl_b32 s39, s29, 12
    s_add_u32 s45, s32, s39
    s_add_u32 s45, s45, {KF - 8192}
    s_lshr_b32 s46, s3, 1
    s_lshl_b32 s46, s46, 16
    s_add_u32 s45, s45, s46
    s_and_b32 s46, s3, 1
    s_mul_i32 s46, s46, 6144
    s_add_u32 s45, s45, s46
    s_lshl_b32 s39, s29, 13
    s_add_u32 s46, s32, s39
    s_add_u32 s46, s46, {VF - 16384 - 4*6144}
    s_mul_i32 s47, s3, 6144
    s_add_u32 s46, s46, s47
    s_cmp_ge_u32 s3, 4
    s_cselect_b32 s45, s46, s45
    v_lshlrev_b32 v3, 4, v1
    s_waitcnt lgkmcnt(0)
    s_mov_b32 s12, s16
    s_mov_b32 s13, s17
    buffer_load_dwordx4 v[8:11], v2, s[12:15], 0 offen
    s_mov_b32 m0, s47
    """)
    for u in range(4): p.I(f"buffer_load_dwordx4 v3, s[12:15], s45 offen offset:{u*1024} lds")
    p.I("s_add_u32 m0, s47, 4096")
    p.I("s_add_u32 s45, s45, 4096")
    for u in range(2): p.I(f"buffer_load_dwordx4 v3, s[12:15], s45 offen offset:{u*1024} lds")
    p.I("""v_and_b32 v4, 31, v1
    v_lshrrev_b32 v5, 5, v1
    v_lshlrev_b32 v5, 2, v5
    v_sub_u32 v4, v4, v5
    """)
    for r in range(16):
        key = (r & 3) + 8 * (r >> 2)
        p.I(f"v_cmp_le_i32 s[{52+2*r}:{53+2*r}], {key}, v4")
    p.I(f"""v_mov_b32 v6, {f32(-1e30)}
    s_lshl_b32 s39, s24, 10
    s_mul_i32 s44, s40, 12288
    s_add_u32 s39, s39, s44
    v_add_u32 v4, s39, v3
    s_lshl_b32 s39, s24, 11
    s_add_u32 s39, s39, 24576
    v_add_u32 v5, s39, v3
    s_lshl_b32 s44, s40, 4
    s_lshl_b32 s84, 0xffff, s44
    s_mov_b32 s85, s84
    """)
    N, O = 16, 32
    SBUF = [48, 64]; KR = [80, 84]; P = 88; VR = [96, 104]; MX = 12
    msk = lambda r: f"s[{52+2*r}:{53+2*r}]"
    for r in range(16):
        p.I(f"v_cndmask_b32 v{N+r}, v6, 0, {msk(r)}")
        p.I(f"v_cndmask_b32 v{O+r}, 0, v6, {msk(r)}")
    for r in range(96, 112): p.I(f"v_mov_b32 v{r}, 0x3f803f80")
    p.I(f"v_mov_b32 v{MX}, v6")
    p.I(f"v_mov_b32 v{MX+1}, v6")
    p.I("s_min_u32 s37, s31, 8")
    stamp(p, 1)
    p.I("s_waitcnt vmcnt(0)")
    p.I("s_barrier")
    stamp(p, 2)
    kread = lambda jb, s: [f"ds_read_b128 {vr(KR[s],4)}, v4 offset:{jb*1024}"]
    smm = lambda s, c: [f"{MFMA} {vr(SBUF[s],16)}, {vr(KR[s],4)}, v[8:11], {c}"]
    maxes = lambda s: [f"v_max3_f32 v{MX+(i&1)}, v{SBUF[s]+2*i}, v{SBUF[s]+2*i+1}, v{MX+(i&1)}" for i in range(8)]
    emit(p, kread(8, 0) + kread(7, 1))
    p.I("s_waitcnt lgkmcnt(1)")
    emit(p, smm(0, vr(N,16)))
    for n in range(8):
        s = n & 1
        p.I(f"s_cmp_lt_u32 s37, {n+1}")
        p.I(f"s_cbranch_scc1 K2_p1_last{s}")
        p.I("s_waitcnt lgkmcnt(0)")
        emit(p, smm(s ^ 1, vr(O,16) if n + 1 == 8 else "0"))
        if n + 2 <= 8: emit(p, kread(8 - (n + 2), s))
        emit(p, maxes(s))
    p.L("K2_p1_last0")
    p.I("s_nop 7"); p.I("s_nop 3")
    emit(p, maxes(0))
    p.I("s_branch K2_p1_done")
    p.L("K2_p1_last1")
    p.I("s_nop 7"); p.I("s_nop 3")
    emit(p, maxes(1))
    p.L("K2_p1_done")
    p.I("s_waitcnt lgkmcnt(0)")
    stamp(p, 3)
    vread = lambda jb, s: ["s_mov_b64 exec, s[84:85]", f"ds_read_b128 {vr(VR[s],4)}, v5 offset:{jb*2048}",
                           f"ds_read_b128 {vr(VR[s]+4,4)}, v5 offset:{jb*2048+1024}", "s_mov_b64 exec, -1"]
    emit(p, kread(8, 0) + kread(7, 1) + vread(8, 0))
    p.I(f"""v_max_f32 v{MX}, v{MX}, v{MX+1}
    v_mov_b32 v{MX+1}, v{MX}
    v_permlane32_swap_b32 v{MX}, v{MX+1}
    v_max_f32 v{MX}, v{MX}, v{MX+1}
    v_sub_f32 v{MX}, 0, v{MX}
    """)
    for r in range(16): p.I(f"v_cndmask_b32 v{SBUF[0]+r}, v6, v{MX}, {msk(r)}")
    p.I("s_waitcnt lgkmcnt(0)")
    emit(p, smm(0, vr(SBUF[0],16)))
    for r in range(16): p.I(f"v_mov_b32 v{N+r}, v{MX}")
    for r in range(16): p.I(f"v_mov_b32 v{O+r}, 0")
    def soft(s):
        S = SBUF[s]; V = VR[s]
        L = [f"v_exp_f32 v{S+i}, v{S+i}" for i in range(8)]
        L += [f"v_cvt_pk_bf16_f32 v{P+i}, v{S+2*i}, v{S+2*i+1}" for i in range(4)]
        L += [f"v_exp_f32 v{S+i}, v{S+i}" for i in range(8, 10)]
        L += [f"{MFMA} {vr(O,16)}, {vr(V,4)}, {vr(P,4)}, {vr(O,16)}"]
        L += [f"v_exp_f32 v{S+i}, v{S+i}" for i in range(10, 16)]
        L += [f"v_cvt_pk_bf16_f32 v{P+i}, v{S+2*i}, v{S+2*i+1}" for i in range(4, 8)]
        L += [f"{MFMA} {vr(O,16)}, {vr(V+4,4)}, {vr(P+4,4)}, {vr(O,16)}"]
        return L
    for n in range(8):
        s = n & 1
        p.I(f"s_cmp_lt_u32 s37, {n+1}")
        p.I(f"s_cbranch_scc1 K2_p2_last{s}")
        if n + 1 == 8:
            for r in range(16): p.I(f"v_cndmask_b32 v{N+r}, v{MX}, v6, {msk(r)}")
        p.I("s_waitcnt lgkmcnt(0)")
        emit(p, smm(s ^ 1, vr(N,16)))
        if n + 2 <= 8: emit(p, kread(8 - (n + 2), s))
        emit(p, vread(8 - (n + 1), s ^ 1))
        emit(p, soft(s))
    p.L("K2_p2_last0")
    p.I("s_waitcnt lgkmcnt(0)")
    p.I("s_nop 7"); p.I("s_nop 3")
    emit(p, soft(0))
    p.I("s_branch K2_p2_done")
    p.L("K2_p2_last1")
    p.I("s_waitcnt lgkmcnt(0)")
    p.I("s_nop 7"); p.I("s_nop 3")
    emit(p, soft(1))
    p.L("K2_p2_done")
    p.I(f"""s_lshl_b32 s39, s31, 15
    s_lshl_b32 s44, s30, 11
    s_add_u32 s39, s39, s44
    s_lshl_b32 s44, s40, 10
    s_add_u32 s39, s39, s44
    s_add_u32 s39, s39, {OF}
    v_add_u32 v2, s39, v3
    s_nop 5
    s_cmp_eq_u32 s40, 0
    s_cbranch_scc1 K2_hd0
    v_rcp_f32 v{MX}, v{O}
    """)
    for i in range(4): p.I(f"v_pk_mul_f32 {vr(O+2*i,2)}, {vr(O+8+2*i,2)}, {vr(MX,2)} op_sel_hi:[1,0]")
    p.I("s_branch K2_hdj")
    p.L("K2_hd0")
    p.I(f"v_rcp_f32 v{MX}, v{O+8}")
    for i in range(4): p.I(f"v_pk_mul_f32 {vr(O+2*i,2)}, {vr(O+2*i,2)}, {vr(MX,2)} op_sel_hi:[1,0]")
    p.L("K2_hdj")
    for i in range(4): p.I(f"v_cvt_pk_bf16_f32 v{P+i}, v{O+2*i}, v{O+2*i+1}")
    p.I(f"buffer_store_dwordx4 {vr(P,4)}, v2, s[12:15], 0 offen")
    stamp(p, 4)
    stamp_out(p, 1, 5)
    p.L("K2_end")
    p.I("s_endpgm")

K3_D = opt("k3d", 8)
K3_LDS = K3_D * 16384
def gen_k3(p):
    D = K3_D
    head(p, "k3_kernel")
    p.I("""s_cmp_ge_u32 s2, 256
    s_cbranch_scc1 K3_end
    s_load_dwordx2 s[4:5], s[0:1], 0
    s_load_dwordx2 s[6:7], s[0:1], 16
    s_load_dwordx4 s[52:55], s[0:1], 48
    s_load_dwordx2 s[56:57], s[0:1], 64
    s_load_dwordx2 s[16:17], s[0:1], 80""")
    wave_ids(p)
    xcd_decode(p, "s2", 2)
    p.I("""s_lshl_b32 s29, s25, 3
    s_add_u32 s29, s29, s27
    s_lshl_b32 s30, s26, 2
    s_add_u32 s30, s30, s28""")
    stamp(p, 0)
    p.I("""s_cmp_lt_u32 s3, 4
    s_cbranch_scc1 K3_cons
    s_mov_b32 s11, 0x00020000""")
    if "rot" in OPT or "rot3" in OPT:
        p.I("""s_mul_i32 s34, s27, 11
        s_lshr_b32 s34, s34, 2
        s_add_u32 s50, s27, s28
        s_add_u32 s50, s50, s28
        s_and_b32 s50, s50, 7""")
    else:
        p.I("s_mov_b32 s34, 0\ns_mov_b32 s50, 0")
    p.I("""s_cmp_ge_u32 s24, 2
    s_cbranch_scc1 K3_isL""")
    p.I(f"""s_mov_b32 s10, {1376*4096}
    s_mov_b32 s33, {64*4096}
    s_mov_b32 s14, {512*1024}
    s_mov_b32 s51, {64*1024}
    s_lshl_b32 s44, s29, 7
    """)
    g_voff_T(p, 2, 4096, "s44")
    p.I("""s_waitcnt lgkmcnt(0)
    s_mov_b32 s8, s52
    s_mov_b32 s9, s53
    s_mov_b32 s12, s6
    s_mov_b32 s13, s7
    s_branch K3_join""")
    p.L("K3_isL")
    p.I(f"""s_mov_b32 s10, {WS_USED}
    s_movk_i32 s33, 4096
    s_mov_b32 s14, {WS_USED}
    s_movk_i32 s51, 4096
    s_lshl_b32 s44, s30, 1
    s_add_u32 s44, s44, s24
    s_sub_u32 s44, s44, 2
    s_mul_i32 s44, s44, {GFS*1024}
    s_add_u32 s44, s44, {GF}
    """)
    g_voff_L(p, 2, "s44")
    p.I("""s_waitcnt lgkmcnt(0)
    s_mov_b32 s8, s16
    s_mov_b32 s9, s17
    s_mov_b32 s12, s16
    s_mov_b32 s13, s17""")
    p.L("K3_join")
    p.I("""s_mul_i32 s35, s34, s33
    s_mul_i32 s48, s33, 22
    s_lshl_b32 s36, s24, 12
    """)
    for _ in range(D - 1): emit(p, g_dma(D))
    stamp(p, 1)
    p.I("""s_cmp_ge_u32 s24, 2
    s_cbranch_scc1 K3_isL2
    s_lshl_b32 s44, s30, 7""")
    g_voff_T(p, 16, 1024, "s44")
    p.I("s_branch K3_join2")
    p.L("K3_isL2")
    p.I(f"""s_lshl_b32 s44, s29, 1
    s_add_u32 s44, s44, s24
    s_sub_u32 s44, s44, 2
    s_lshl_b32 s44, s44, 15
    s_add_u32 s44, s44, {OF}
    """)
    g_voff_L(p, 16, "s44")
    p.L("K3_join2")
    g_loader_loop(p, "K3_lloopY", D, 22 - (D - 1))
    p.I("""s_mov_b32 s8, s12
    s_mov_b32 s9, s13
    s_mov_b32 s10, s14
    s_mov_b32 s33, s51
    s_mul_i32 s35, s50, s51
    s_lshl_b32 s48, s51, 3
    v_mov_b32 v2, v16
    v_mov_b32 v3, v17
    v_mov_b32 v4, v18
    v_mov_b32 v5, v19""")
    g_loader_loop(p, "K3_lloopO", D, 8)
    stamp(p, 2)
    g_loader_tail(p, D)
    stamp(p, 3)
    stamp_out(p, 2, 4)
    p.I("s_endpgm")
    p.L("K3_cons")
    p.I("""s_and_b32 s40, s24, 1
    s_lshr_b32 s41, s24, 1
    s_mov_b32 s23, 0x00020000
    s_mov_b32 s63, 0x00020000
    s_lshl_b32 s39, s29, 6
    s_lshl_b32 s44, s41, 5
    s_add_u32 s39, s39, s44
    v_and_b32 v10, 31, v1
    v_add_u32 v10, s39, v10
    v_lshlrev_b32 v15, 1, v10
    v_lshlrev_b32 v14, 10, v10
    s_lshl_b32 s39, s30, 7
    s_lshl_b32 s44, s40, 6
    s_add_u32 s39, s39, s44
    v_add_u32 v14, s39, v14
    v_lshrrev_b32 v11, 5, v1
    v_lshl_add_u32 v2, v11, 4, v14
    v_lshl_add_u32 v14, v11, 3, v14
    s_mov_b32 s22, 0x200000
    s_movk_i32 s62, 4096
    s_waitcnt lgkmcnt(0)
    s_mov_b32 s20, s4
    s_mov_b32 s21, s5
    s_mov_b32 s60, s54
    s_mov_b32 s61, s55
    """)
    for g in range(4): p.I(f"buffer_load_dwordx2 {vr(64+2*g,2)}, v14, s[20:23], 0 offen offset:{16*g}")
    p.I("buffer_load_ushort v72, v15, s[60:63], 0 offen")
    g_taddr(p, 6, 2, "s41")
    g_laddr(p, 7, "s40")
    g_taddr(p, 4, 2, "s40")
    g_laddr(p, 5, "s41")
    p.I("""s_mov_b32 s49, 0
    v_mov_b32 v8, v6
    v_mov_b32 v9, v7
    s_waitcnt vmcnt(0)
    v_lshlrev_b32 v72, 16, v72""")
    for i in range(8):
        p.I(f"v_lshlrev_b32 v{16+2*i}, 16, v{64+i}")
        p.I(f"v_and_b32 v{17+2*i}, 0xffff0000, v{64+i}")
    for i in range(16): p.I(f"v_add_f32 v{16+i}, v{16+i}, v72")
    stamp(p, 1)
    g_cbody(p, D, 32, None, 8, False)
    stamp(p, 2)
    p.I("s_mov_b32 s37, 10")
    p.L("K3_cloopY")
    g_cbody(p, D, 64, 32, 8, False)
    g_cbody(p, D, 32, 64, 8, False)
    p.I("""s_sub_u32 s37, s37, 1
    s_cmp_lg_u32 s37, 0
    s_cbranch_scc1 K3_cloopY""")
    g_cbody(p, D, 64, 32, 8, False, 4, 5)
    g_cbody(p, D, 32, 64, 8, False, 4, 5)
    stamp(p, 3)
    p.I("s_mov_b32 s37, 3")
    p.L("K3_cloopO")
    g_cbody(p, D, 64, 32, 8, True, 4, 5)
    g_cbody(p, D, 32, 64, 8, True, 4, 5)
    p.I("""s_sub_u32 s37, s37, 1
    s_cmp_lg_u32 s37, 0
    s_cbranch_scc1 K3_cloopO""")
    g_cbody(p, D, 64, 32, 8, True, 4, 5)
    emit(p, g_mfmas(64, True))
    stamp(p, 4)
    p.I("""s_mov_b32 s20, s56
    s_mov_b32 s21, s57""")
    for i in range(8): p.I(f"v_cvt_pk_bf16_f32 v{32+i}, v{16+2*i}, v{17+2*i}")
    p.I("""v_permlane32_swap_b32 v32, v34
    v_permlane32_swap_b32 v33, v35
    v_permlane32_swap_b32 v36, v38
    v_permlane32_swap_b32 v37, v39
    buffer_store_dwordx4 v[32:35], v2, s[20:23], 0 offen
    buffer_store_dwordx4 v[36:39], v2, s[20:23], 0 offen offset:32
    """)
    stamp(p, 5)
    stamp_out(p, 2, 6)
    p.L("K3_end")
    p.I("s_endpgm")

def main():
    hdr = open("parallel_sum__sliding_block__mixer_token_mlp__prompt.s.ref").read().split("; Override launch")[0]
    out = hdr
    rep = 2 if "twice" in OPT else 1
    out += f"; @launch kernel=k1_kernel grid=(256,1,1) block=(768,1,1) lds={K1_LDS}\n" * rep
    out += f"; @launch kernel=k2_kernel grid=({opt('k2grid', 448)},1,1) block=(512,1,1) lds={K2_LDS}\n" * rep
    out += f"; @launch kernel=k3_kernel grid=(256,1,1) block=(512,1,1) lds={K3_LDS}\n" * rep
    out += '.amdgcn_target "amdgcn-amd-amdhsa--gfx950"\n.text\n'
    for g in (gen_k1, gen_k2, gen_k3):
        p = Prog(); g(p); out += p.finalize()
    out += "CODE_END:\n"
    out += '.section .rodata,"a"\n.p2align 6\n' + kd("k1_kernel", 160) + ".p2align 6\n" + kd("k2_kernel", 112) + ".p2align 6\n" + kd("k3_kernel", 96)
    open(sys.argv[1], "w").write(out)
main()
```

```python
import sys, math, struct, re
from asmlib import Prog

NAME = "parallel_sum__sliding_block__mixer_token_mlp__prompt_kernel"
HF, KF, VF, GF, OF = 0x0, 0x200000, 0x400000, 0x600000, 0x800000
FLG = 0xA00000
ST = FLG + 0x1000
FH = ST + 0x8000
FK = FH + 0x10000
FG = FK + 0x10000
FO = FG + 0x10000
WS_USED = FO + 0x20000
GFS = 90
LDS = 163840
def f32(x): return "0x%08x" % struct.unpack("<I", struct.pack("<f", x))[0]
LOG2E = 1.4426950408889634
MFMA = "v_mfma_f32_32x32x16_bf16"
MFMA16 = "v_mfma_f32_16x16x32_bf16"
def vr(a, n): return f"v[{a}:{a+n-1}]"
def sr(a, n): return f"s[{a}:{a+n-1}]"
OPT = sys.argv[2:]
STAMP = "--stamp" in OPT
def opt(name, default):
    for o in OPT:
        if o.startswith(name + "="): return int(o.split("=")[1])
    return default
SPIN_MAX = 100000
P_X, P_WQKV, P_WO, P_W1, P_B1, P_W2, P_B2, P_OUT, P_DBG, P_WS = 64, 66, 68, 72, 74, 76, 78, 80, 82, 84
SA, SB, SW, SC, SD = 4, 8, 12, 16, 20
sWV, sW4, sR, sC, sK, sST, sDT, sTAG = 3, 24, 25, 26, 27, 29, 30, 31
sT0, sT1, sT2, sT3 = 28, 86, 87, 88
sM0, sOF, sA, sB, sSPIN, sFT, sDU, sHQ, sRT, sN = 89, 90, 91, 92, 93, 94, 95, 94, 95, 96
VST = 255

def emit(p, L):
    for x in L: p.I(x)
def stamp(p, idx):
    if not STAMP: return
    if idx == 0: return
    if idx == 1 or idx == -1:
        p.I("s_waitcnt lgkmcnt(0)")
        p.I(f"v_writelane_b32 v{VST}, s58, 0")
        if idx == -1: return
    p.I("s_memtime s[100:101]" if "cyc" in OPT else "s_memrealtime s[100:101]")
    p.I("s_waitcnt lgkmcnt(0)")
    p.I(f"v_writelane_b32 v{VST}, s100, {idx}")
def stamp_out(p, n):
    if not STAMP: return
    p.I("s_waitcnt vmcnt(0)")
    stamp(p, n)
    p.I(f"""s_lshl_b32 s98, s2, 3
    s_add_u32 s98, s98, s{sWV}
    s_lshl_b32 s98, s98, 6
    s_add_u32 s98, s98, 0x1000000
    v_lshl_add_u32 v2, v1, 2, s98
    s_mov_b64 exec, 0xffff
    global_store_dword v2, v{VST}, {sr(P_WS,2)}""")
def dpp_add(v, m): return f"v_add_f32_dpp v{v}, v{v}, v{v} {m} row_mask:0xf bank_mask:0xf"
def interleave(main, fill, upto=None):
    out = []; n = upto or len(main); k = 0
    for i, m in enumerate(main):
        out.append(m)
        tgt = min(len(fill), (len(fill) * (i + 1) + n - 1) // n)
        while k < tgt: out.append(fill[k]); k += 1
    return out
def srd(p, s, ptr, size):
    p.I(f"s_mov_b32 s{s}, s{ptr}\ns_mov_b32 s{s+1}, s{ptr+1}\ns_mov_b32 s{s+2}, {size}\ns_mov_b32 s{s+3}, 0x00020000")
def set_exec(p, nl):
    m = (1 << nl) - 1
    p.I(f"s_mov_b32 exec_lo, {hex(m & 0xffffffff)}\ns_mov_b32 exec_hi, {hex(m >> 32)}")
def poll(p, lab, vaddr, vdat, ndw=1, sleep=2):
    if "nopoll" in OPT:
        p.I("s_waitcnt vmcnt(0)\ns_mov_b64 exec, -1"); return
    ld = {1: "dword", 2: "dwordx2"}[ndw]
    p.I(f"s_mov_b32 s{sSPIN}, 0")
    p.L(lab)
    p.I(f"buffer_load_{ld} {'v%d' % vdat if ndw == 1 else vr(vdat, ndw)}, v{vaddr}, {sr(SW,4)}, 0 offen sc1")
    p.I(f"s_add_u32 s{sSPIN}, s{sSPIN}, 1")
    p.I("s_waitcnt vmcnt(0)")
    if ndw == 2:
        p.I(f"v_xor_b32 v{vdat}, s{sTAG}, v{vdat}\nv_xor_b32 v{vdat+1}, s{sTAG}, v{vdat+1}\nv_or_b32 v{vdat}, v{vdat}, v{vdat+1}\nv_cmp_ne_u32 vcc, 0, v{vdat}")
    else:
        p.I(f"v_cmp_ne_u32 vcc, s{sTAG}, v{vdat}")
    p.I(f"""s_cmp_ge_u32 s{sSPIN}, {SPIN_MAX}
    s_cbranch_scc1 {lab}_ok
    s_cbranch_vccz {lab}_ok
    s_sleep {sleep}
    s_branch {lab}""")
    p.L(lab + "_ok")
    p.I("s_mov_b64 exec, -1")
def spoll(p, lab, soff, n, sleep=1):
    if "nopoll" in OPT: return
    tp = 100
    p.I(f"s_add_u32 s62, s{P_WS}, s{soff}\ns_addc_u32 s63, s{P_WS+1}, 0")
    p.I(f"s_mov_b32 s{sSPIN}, 0\ns_mov_b32 s{tp}, s{sTAG}\ns_mov_b32 s{tp+1}, s{sTAG}")
    p.L(lab)
    for i in range(n): p.I(f"s_load_dword s{32+i}, s[62:63], {i*128} glc")
    p.I(f"s_add_u32 s{sSPIN}, s{sSPIN}, 1")
    p.I("s_waitcnt lgkmcnt(0)")
    for i in range(n // 2): p.I(f"s_xor_b64 {sr(32+2*i,2)}, {sr(32+2*i,2)}, {sr(tp,2)}")
    for i in range(1, n // 2): p.I(f"s_or_b64 s[32:33], s[32:33], {sr(32+2*i,2)}")
    p.I(f"""s_cbranch_scc0 {lab}_ok
    s_cmp_ge_u32 s{sSPIN}, {SPIN_MAX}
    s_cbranch_scc1 {lab}_ok
    s_sleep {sleep}
    s_branch {lab}""")
    p.L(lab + "_ok")
class VQ:
    def __init__(self, p): self.p = p; self.q = []
    def add(self, tag, n=1): self.q += [tag] * n
    def wait(self, tag):
        if tag not in self.q: return
        idx = max(i for i, x in enumerate(self.q) if x == tag)
        self.p.I(f"s_waitcnt vmcnt({min(63, len(self.q) - 1 - idx)})")
        del self.q[:idx + 1]
    def clear(self): self.q = []
def lds_ref(regs, off):
    return f"v{regs[off >> 16]} offset:{off & 0xffff}"
def get_tag(p):
    p.I(f"s_mov_b32 s{sT0}, {FLG}\ns_load_dword s{sTAG}, {sr(P_WS,2)}, s{sT0}")
def fin_tag(p):
    p.I(f"s_waitcnt lgkmcnt(0)\ns_add_u32 s{sTAG}, s{sTAG}, 1")

FND = 10
fslot = lambda n: ((n + 6) % FND) * 16384
FSEQ = [("Y", k, 4096) for k in range(11)] + [("O", k, 1024) for k in range(4)]
FCNT = {"Y": 11, "O": 4, "U": 16}
sROT = {"Y": 97, "O": 99, "U": 98}
FV = {"Y": 240, "O": 244}
FSRD = {"Y": SC, "O": SD}
def f_loader_setup(p):
    srd(p, SC, P_W2, 1376 * 4096); srd(p, SD, P_WO, 512 * 1024)
    p.I(f"""v_lshrrev_b32 v248, 3, v1
    s_lshl_b32 s{sT0}, s{sW4}, 5
    v_add_u32 v248, s{sT0}, v248
    v_bfe_u32 v249, v1, 4, 1
    v_lshlrev_b32 v249, 2, v249
    v_and_b32 v250, 7, v1
    v_xor_b32 v249, v249, v250
    v_lshlrev_b32 v249, 4, v249""")
    for name, stride, scol in (("Y", 4096, sST), ("O", 1024, sDT)):
        d = FV[name]
        p.I(f"""s_lshl_b32 s{sT0}, s{scol}, 7
        v_mul_u32_u24 v{d}, {stride}, v248
        v_add3_u32 v{d}, v{d}, v249, s{sT0}""")
        for u in range(1, 4): p.I(f"v_add_u32 v{d+u}, {u*(8*stride-1024)}, v{d}")
def f_dma(n):
    if "nofp" in OPT: return []
    name, k, st = FSEQ[n]
    L = [f"s_lshl_b32 s{sT0}, s{sW4}, 12", f"s_add_u32 m0, s{sT0}, {fslot(n)}"]
    if k == 0: L.append(f"s_mul_i32 s{sN}, s{sROT[name]}, {128 * st}")
    else: L += [f"s_add_u32 s{sN}, s{sN}, {128 * st}", f"s_cmp_eq_u32 s{sN}, {128 * st * FCNT[name]}", f"s_cselect_b32 s{sN}, 0, s{sN}"]
    L += [f"buffer_load_dwordx4 v{FV[name]+u}, {sr(FSRD[name],4)}, s{sN} offen offset:{u*1024} lds" for u in range(4)]
    return L
def split_dma(L):
    out = []; cur = []
    for x in L:
        cur.append(x)
        if x.startswith("buffer_load"): out.append(cur); cur = []
    if cur: out[-1] += cur
    return out
def paced(p, q, tag, dma, first, total, nslots, minlead, hook=None):
    items = [(n, g) for n in range(first, total) for g in split_dma(dma(n))]
    last_it = max(1, total - minlead)
    k = 0
    for t in range(total):
        q.wait(f"{tag}{t}")
        p.I("s_barrier")
        tgt = min(len(items), -(-len(items) * (t + 1) // last_it))
        while k < len(items) and items[k][0] <= t + nslots - 1 and (k < tgt or items[k][0] <= t + minlead):
            emit(p, items[k][1]); q.add(f"{tag}{items[k][0]}"); k += 1
        if hook: hook(t, k == len(items))
    assert k == len(items)
FPRE = 4

def gen(p):
    p.I(f".globl {NAME}\n.p2align 8\n.type {NAME},@function")
    p.L(NAME)
    if STAMP: p.I("s_memtime s[58:59]" if "cyc" in OPT else "s_memrealtime s[58:59]")
    p.I(f"""s_cmp_ge_u32 s2, 256
    s_cbranch_scc1 L_end
    s_load_dwordx16 s[64:79], s[0:1], 0
    s_load_dwordx4 s[80:83], s[0:1], 64
    s_load_dwordx2 s[84:85], s[0:1], 80""")
    if "scpf" in OPT:
        p.I("s_getpc_b64 s[60:61]")
        p.I("s_lshr_b32 s62, s2, 3\ns_lshl_b32 s62, s62, 7\ns_add_u32 s60, s60, s62\ns_addc_u32 s61, s61, 0")
        for i in range(opt("ncp", 9)): p.I(f"s_load_dword s{32+i}, s[60:61], {i * 4096}")
    p.I(f"""v_lshrrev_b32 v2, 6, v0
    v_and_b32 v1, 63, v0
    v_readfirstlane_b32 s{sWV}, v2
    s_and_b32 s{sT0}, s2, 7
    s_lshr_b32 s{sT1}, s2, 3
    s_lshr_b32 s{sR}, s{sT0}, 1
    s_and_b32 s{sC}, s{sT0}, 1
    s_lshr_b32 s{sK}, s{sT1}, 1
    s_lshr_b32 s{sT2}, s{sT1}, 2
    s_lshl_b32 s{sST}, s{sR}, 3
    s_add_u32 s{sST}, s{sST}, s{sT2}
    s_and_b32 s{sT3}, s{sT1}, 3
    s_lshl_b32 s{sDT}, s{sC}, 2
    s_add_u32 s{sDT}, s{sDT}, s{sT3}
    s_and_b32 s{sW4}, s{sWV}, 3""")
    if "norot" in OPT: p.I("s_mov_b32 s97, 0\ns_mov_b32 s99, 0")
    else: p.I(f"""s_lshl_b32 s97, s{sT3}, 1
    s_add_u32 s97, s97, s{sT2}
    s_mul_i32 s97, s97, 11
    s_lshr_b32 s97, s97, 3
    s_mul_i32 s99, s{sC}, 3
    s_add_u32 s97, s97, s99
    s_cmp_ge_u32 s97, 11
    s_cselect_b32 s99, 11, 0
    s_sub_u32 s97, s97, s99
    s_add_u32 s99, s{sT3}, s{sT2}
    s_and_b32 s99, s99, 3""")
    stamp(p, 0)
    p.I(f"""s_bitcmp1_b32 s2, 3
    s_cbranch_scc1 B_entry""")
    if "noA" in OPT: p.I("s_endpgm")
    gen_A(p)
    gen_B(p)
    gen_F(p)
    p.L("L_end")
    p.I("s_endpgm")

QSLOT = 40960; QSCR = 3 * QSLOT
KA_, VA_, QA_ = 0, 49152, 98304
def gen_A(p):
    p.I(f"""s_lshr_b32 s{sT0}, s{sK}, 2
    s_lshl_b32 s{sRT}, s{sR}, 2
    s_add_u32 s{sRT}, s{sRT}, s{sT0}
    s_and_b32 s{sT0}, s{sK}, 3
    s_lshl_b32 s{sHQ}, s{sC}, 2
    s_add_u32 s{sHQ}, s{sHQ}, s{sT0}
    s_cmp_lt_u32 s{sWV}, 4
    s_cbranch_scc1 A_cons""")
    p.I(f"""v_lshrrev_b32 v10, 3, v1
    s_lshl_b32 s{sT0}, s{sW4}, 4
    v_add_u32 v10, s{sT0}, v10
    v_lshrrev_b32 v11, 4, v1
    v_and_b32 v12, 7, v1
    v_xor_b32 v13, v11, v12
    v_lshlrev_b32 v14, 10, v10
    s_lshl_b32 s{sT0}, s{sRT}, 17
    v_add_u32 v14, s{sT0}, v14
    v_lshl_add_u32 v2, v13, 4, v14
    v_xor_b32 v3, 64, v2
    v_add_u32 v3, {8*1024 - 1024}, v3
    v_and_b32 v11, 1, v11
    v_lshlrev_b32 v11, 2, v11
    v_xor_b32 v13, v11, v12
    v_mul_u32_u24 v14, 3072, v10
    s_lshl_b32 s{sT0}, s{sHQ}, 7
    v_add_u32 v14, s{sT0}, v14
    v_lshl_add_u32 v4, v13, 4, v14
    v_add_u32 v5, {8*3072 - 1024}, v4
    s_lshl_b32 s{sM0}, s{sW4}, 11
    s_waitcnt lgkmcnt(0)""")
    srd(p, SA, P_X, 0x200000); srd(p, SB, P_WQKV, 0x180000)
    if "rotq" in OPT: p.I(f"s_add_u32 s98, s{sRT}, s{sHQ}\ns_and_b32 s98, s98, 3\ns_lshl_b32 s98, s98, 1")
    else: p.I("s_mov_b32 s98, 0")
    def qdma(t):
        L = [f"s_lshl_b32 s{sT2}, s98, 7", f"s_mul_i32 s{sT3}, s98, 196608", "s_add_u32 s98, s98, 1", "s_and_b32 s98, s98, 7"]
        for b in range(5):
            L.append(f"s_add_u32 m0, s{sM0}, {(t % 3) * QSLOT + b * 8192}")
            L.append(f"s_add_u32 s{sOF}, s{sT2}, {b * 65536}" if b < 2 else f"s_add_u32 s{sOF}, s{sT3}, {(b - 2) * 1024}")
            v, s_ = (2, SA) if b < 2 else (4, SB)
            L.append(f"buffer_load_dwordx4 v{v}, {sr(s_,4)}, s{sOF} offen lds")
            L.append(f"buffer_load_dwordx4 v{v+1}, {sr(s_,4)}, s{sOF} offen offset:1024 lds")
        return L
    emit(p, qdma(0) + qdma(1))
    stamp(p, 1)
    get_tag(p)
    srd(p, SW, P_WS, WS_USED)
    f_loader_setup(p)
    fin_tag(p)
    for t in range(8):
        p.I(f"s_waitcnt vmcnt({10 if t < 7 else 0})")
        p.I("s_barrier")
        if t + 2 < 8: emit(p, qdma(t + 2))
    stamp(p, 2)
    p.I("s_barrier")
    p.I("s_branch A_attn")
    p.L("A_cons")
    if "nocpf" not in OPT:
        p.I("s_getpc_b64 s[86:87]")
        p.L("A_pc")
        p.I(f"""s_sub_u32 s86, s86, A_pc-{NAME}
        s_subb_u32 s87, s87, 0
        v_lshlrev_b32 v22, 7, v0
        v_add_u32 v21, 0x8000, v22
        v_min_u32 v21, CODE_END-{NAME}-4, v21
        global_load_dword v22, v22, s[86:87]
        global_load_dword v21, v21, s[86:87]""")
    XA, WA = [[2, 3, 4, 5], [6, 7, 8, 9]], [[10, 11], [12, 13]]
    p.I(f"""s_and_b32 s{sA}, s{sW4}, 1
    s_lshr_b32 s{sB}, s{sW4}, 1
    v_lshrrev_b32 v23, 5, v1
    v_and_b32 v24, 31, v1
    v_bfe_u32 v26, v1, 1, 3
    v_xor_b32 v26, v26, v23
    s_lshl_b32 s{sT0}, s{sA}, 13
    v_lshlrev_b32 v27, 7, v24
    v_add_u32 v27, s{sT0}, v27""")
    for pp in range(4):
        p.I(f"""s_xor_b32 s{sT0}, s{sA}, {pp}
        s_lshl_b32 s{sT0}, s{sT0}, 1
        v_xor_b32 v28, s{sT0}, v26
        v_lshl_add_u32 v{XA[0][pp]}, v28, 4, v27
        v_add_u32 v{XA[1][pp]}, 0x10000, v{XA[0][pp]}""")
    p.I(f"""v_bfe_u32 v26, v1, 2, 2
    v_lshl_add_u32 v27, v23, 3, v26
    v_lshlrev_b32 v27, 7, v27
    v_bfe_u32 v28, v1, 4, 1
    v_lshlrev_b32 v28, 1, v28
    v_bfe_u32 v29, v1, 1, 1
    v_add_u32 v28, v28, v29
    s_lshl_b32 s{sT0}, s{sB}, 2
    v_add_u32 v28, s{sT0}, v28
    v_bfe_u32 v29, v1, 3, 1
    v_lshlrev_b32 v29, 2, v29
    v_xor_b32 v28, v28, v29
    v_lshl_add_u32 v27, v28, 4, v27
    v_and_b32 v29, 1, v1
    v_lshl_add_u32 v27, v29, 3, v27
    s_lshl_b32 s{sT0}, s{sA}, 11
    v_add_u32 v10, s{sT0}, v27
    v_xor_b32 v11, 2048, v10
    v_add_u32 v12, 0x10000, v10
    v_add_u32 v13, 0x10000, v11
    v_and_b32 v26, 15, v1
    v_bfe_u32 v27, v1, 4, 1
    v_cmp_eq_u32 vcc, v26, v27
    v_mov_b32 v28, 0x3f803f80
    v_cndmask_b32 v28, 0, v28, vcc
    v_mov_b32 v29, v28
    v_mov_b32 v30, v28
    v_mov_b32 v31, v28
    s_mul_i32 s{sT0}, s{sW4}, 384
    s_add_u32 s{sT0}, s{sT0}, {QSCR}
    v_lshl_add_u32 v14, v1, 2, s{sT0}
    s_mul_i32 s{sT0}, s{sB}, 768
    s_add_u32 s{sT0}, s{sT0}, {QSCR}
    v_lshl_add_u32 v15, v23, 4, s{sT0}
    v_lshl_add_u32 v16, v24, 2, s{sT0}
    s_lshl_b32 s{sT0}, s{sW4}, 9
    s_add_u32 s{sT0}, s{sT0}, {QSCR + 1536}
    v_lshl_add_u32 v17, v1, 2, s{sT0}
    v_lshl_add_u32 v18, v23, 4, s{sT0}
    v_lshl_add_u32 v25, v24, 2, s{sT0}
    s_lshl_b32 s{sT0}, s{sRT}, 7
    s_lshl_b32 s{sT1}, s{sA}, 6
    s_add_u32 s{sT0}, s{sT0}, s{sT1}
    s_lshl_b32 s{sT0}, s{sT0}, 4
    s_add_u32 s{sT0}, s{sT0}, {ST}
    v_lshl_add_u32 v19, v1, 4, s{sT0}
    s_waitcnt lgkmcnt(0)""")
    get_tag(p)
    srd(p, SW, P_WS, WS_USED)
    fin_tag(p)
    ACC = {("q", 0): 32, ("q", 1): 48, ("k", 0): 64, ("k", 1): 80, ("v", 0): 96, ("v", 1): 112}
    CS, FB = 128, 140
    def reads(g):
        t, pp = g >> 2, g & 3
        o = (t % 3) * QSLOT; b = FB + 20 * (g % 3)
        L = [f"ds_read_b128 {vr(b+4*rb,4)}, " + lds_ref([XA[0][pp], XA[1][pp]], o + rb * 4096) for rb in range(2)]
        for seg in range(3):
            for tt in range(2):
                L.append(f"ds_read_b64_tr_b16 {vr(b+8+4*seg+2*tt,2)}, " + lds_ref([WA[0][pp & 1], WA[1][pp & 1]], o + 16384 + seg * 8192 + (pp >> 1) * 4096 + tt * 512))
        return L
    def mfmas(g):
        b = FB + 20 * (g % 3); z = g == 0
        big = []
        for seg, nm in enumerate("qkv"):
            for rb in range(2):
                a = vr(ACC[(nm, rb)], 16); X = vr(b + 4 * rb, 4); W = vr(b + 8 + 4 * seg, 4)
                ops = (X, W) if nm == "v" else (W, X)
                big.append(f"{MFMA} {a}, {ops[0]}, {ops[1]}, {'0' if z else a}")
        small = []
        if g % 2 == 0:
            for seg in range(3):
                c = vr(CS + 4 * seg, 4)
                small.append(f"{MFMA16} {c}, v[28:31], {vr(b+8+4*seg,4)}, {'0' if z else c}")
        return big, small
    GR = 200
    stamp(p, 1)
    p.I("s_barrier")
    emit(p, reads(0) + reads(1))
    stamp(p, 2)
    for g in range(32):
        big, small = mfmas(g)
        M = (small + big) if g == 30 else (big + small)
        nxt = g + 2
        if g == 24: p.I(f"buffer_load_dwordx4 {vr(GR,4)}, v19, {sr(SW,4)}, 0 offen sc1")
        if nxt < 32:
            p.I("s_waitcnt lgkmcnt(8)")
            if nxt % 4 == 0:
                emit(p, M[:2])
                p.I("s_waitcnt lgkmcnt(0)")
                p.I("s_barrier")
                emit(p, interleave(M[2:], reads(nxt), upto=4))
            else:
                emit(p, interleave(M, reads(nxt), upto=5))
        elif g == 30:
            p.I("s_waitcnt lgkmcnt(0)")
            emit(p, M[:6])
            p.I("s_mov_b64 exec, 0xffff")
            for seg in range(3):
                p.I(f"ds_write_b32 v14, v{CS+4*seg} offset:{seg*128}")
                p.I(f"ds_write_b32 v14, v{CS+4*seg+1} offset:{seg*128+64}")
            p.I("s_mov_b64 exec, -1")
            emit(p, M[6:])
        else:
            emit(p, M[:2])
            p.I("s_waitcnt vmcnt(0)")
            if "nopoll" not in OPT:
                p.I(f"""v_cmp_ne_u32 vcc, s{sTAG}, v{GR+2}
                s_mov_b32 s{sSPIN}, 0
                s_cbranch_vccz A_st_ok""")
                p.L("A_st_spin")
                p.I(f"""buffer_load_dwordx4 {vr(GR,4)}, v19, {sr(SW,4)}, 0 offen sc1
                s_add_u32 s{sSPIN}, s{sSPIN}, 1
                s_waitcnt vmcnt(0)
                v_cmp_ne_u32 vcc, s{sTAG}, v{GR+2}
                s_cmp_ge_u32 s{sSPIN}, {SPIN_MAX}
                s_cbranch_scc1 A_st_ok
                s_cbranch_vccnz A_st_spin""")
                p.L("A_st_ok")
            p.I(f"""ds_write_b32 v17, v{GR}
            ds_write_b32 v17, v{GR+1} offset:256
            s_waitcnt lgkmcnt(0)
            s_barrier""")
            emit(p, M[2:])
    stamp(p, 3)
    CQ, CK, C2, NM, RS = 204, 220, 140, 156, 172
    for k in range(4): p.I(f"ds_read_b128 {vr(CK+4*k,4)}, v15 offset:{128+k*32}")
    for k in range(4): p.I(f"ds_read_b128 {vr(C2+4*k,4)}, v15 offset:{384+128+k*32}")
    p.I("""ds_read_b32 v2, v25
    ds_read_b32 v4, v25 offset:256
    ds_read_b32 v6, v25 offset:128
    ds_read_b32 v8, v25 offset:384
    ds_read_b32 v10, v16 offset:256
    ds_read_b32 v11, v16 offset:640""")
    p.I(f"""s_lshl_b32 s{sT0}, s{sHQ}, 1
    s_add_u32 s{sT0}, s{sT0}, s{sB}
    s_lshl_b32 s{sT1}, s{sRT}, 2
    s_lshl_b32 s{sT2}, s{sA}, 1
    s_add_u32 s{sT1}, s{sT1}, s{sT2}
    s_lshl_b32 s{sT2}, s{sT0}, 17
    s_lshl_b32 s{sT3}, s{sT1}, 10
    s_add_u32 s{sT3}, s{sT3}, s{sT2}
    s_add_u32 s{sT3}, s{sT3}, {KF}
    v_lshl_add_u32 v20, v1, 4, s{sT3}
    s_lshl_b32 s{sT3}, s{sT1}, 11
    s_add_u32 s{sT3}, s{sT3}, s{sT2}
    s_add_u32 s{sT3}, s{sT3}, {VF}
    v_lshl_add_u32 v21, v1, 4, s{sT3}
    s_lshl_b32 s{sT0}, s{sT0}, 6
    s_add_u32 s{sT0}, s{sT0}, s{sT1}
    s_lshl_b32 s{sT0}, s{sT0}, 6
    s_add_u32 s{sT0}, s{sT0}, {FK}
    v_mov_b32 v22, s{sT0}
    s_mul_i32 s{sT0}, s{sB}, 24576
    s_lshl_b32 s{sT1}, s{sA}, 11
    s_add_u32 s{sT2}, s{sT0}, s{sT1}
    s_add_u32 s{sT2}, s{sT2}, {KA_ + 8192}
    v_lshl_add_u32 v26, v1, 4, s{sT2}
    s_lshl_b32 s{sT2}, s{sA}, 12
    s_add_u32 s{sT2}, s{sT2}, s{sT0}
    s_add_u32 s{sT2}, s{sT2}, {VA_ + 16384}
    v_lshl_add_u32 v27, v1, 4, s{sT2}
    s_lshl_b32 s{sT2}, s{sB}, 13
    s_add_u32 s{sT2}, s{sT2}, s{sT1}
    s_add_u32 s{sT2}, s{sT2}, {QA_}
    v_lshl_add_u32 v28, v1, 4, s{sT2}
    s_mov_b32 s{sOF}, 65536
    v_mov_b32 v29, s{sTAG}
    s_waitcnt lgkmcnt(0)""")
    for k in range(4): p.I(f"ds_read_b128 {vr(NM+4*k,4)}, v18 offset:{k*32}")
    for k in range(4): p.I(f"ds_read_b128 {vr(RS+4*k,4)}, v18 offset:{256+k*32}")
    for i in range(8): p.I(f"v_pk_add_f32 {vr(CK+2*i,2)}, {vr(CK+2*i,2)}, {vr(C2+2*i,2)}")
    p.I("v_add_f32 v10, v10, v11")
    def qk(acc, cs, nm, rs):
        for i in range(8): p.I(f"v_pk_fma_f32 {vr(acc+2*i,2)}, {vr(cs+2*i,2)}, {vr(nm,2)}, {vr(acc+2*i,2)} op_sel_hi:[1,0,1]")
        for i in range(8): p.I(f"v_pk_mul_f32 {vr(acc+2*i,2)}, {vr(acc+2*i,2)}, {vr(rs,2)} op_sel_hi:[1,0]")
        for i in range(8): p.I(f"v_cvt_pk_bf16_f32 v{acc+i}, v{acc+2*i}, v{acc+2*i+1}")
    def vv(acc):
        for i in range(8): p.I(f"v_pk_fma_f32 {vr(acc+2*i,2)}, {vr(NM+2*i,2)}, v[10:11], {vr(acc+2*i,2)} op_sel_hi:[1,0,1]")
        for i in range(8): p.I(f"v_pk_mul_f32 {vr(acc+2*i,2)}, {vr(acc+2*i,2)}, {vr(RS+2*i,2)}")
        for i in range(8): p.I(f"v_cvt_pk_bf16_f32 v{acc+i}, v{acc+2*i}, v{acc+2*i+1}")
    for rb in range(2):
        a = ACC[("k", rb)]
        qk(a, CK, 2 + 4 * rb, 4 + 4 * rb)
        p.I(f"buffer_store_dwordx4 {vr(a,4)}, v20, {sr(SW,4)}, 0 offen offset:{rb*1024} sc1")
        p.I(f"buffer_store_dwordx4 {vr(a+4,4)}, v20, {sr(SW,4)}, s{sOF} offen offset:{rb*1024} sc1")
    for rb in range(2):
        a = ACC[("v", rb)]
        p.I("s_waitcnt lgkmcnt(0)")
        vv(a)
        if rb == 0:
            for k in range(4): p.I(f"ds_read_b128 {vr(NM+4*k,4)}, v18 offset:{128+k*32}")
            for k in range(4): p.I(f"ds_read_b128 {vr(RS+4*k,4)}, v18 offset:{384+k*32}")
        else:
            for k in range(4): p.I(f"ds_read_b128 {vr(CQ+4*k,4)}, v15 offset:{k*32}")
            for k in range(4): p.I(f"ds_read_b128 {vr(C2+4*k,4)}, v15 offset:{384+k*32}")
        p.I(f"buffer_store_dwordx4 {vr(a,4)}, v21, {sr(SW,4)}, 0 offen offset:{rb*2048} sc1")
        p.I(f"buffer_store_dwordx4 {vr(a+4,4)}, v21, {sr(SW,4)}, 0 offen offset:{rb*2048+1024} sc1")
        if rb == 0:
            for r2 in range(2):
                k_ = ACC[("k", r2)]
                p.I(f"ds_write_b128 v26, {vr(k_,4)} offset:{r2*1024}")
                p.I(f"ds_write_b128 v26, {vr(k_+4,4)} offset:{12288+r2*1024}")
    for r2 in range(2):
        a = ACC[("v", r2)]
        p.I(f"ds_write_b128 v27, {vr(a,4)} offset:{r2*2048}")
        p.I(f"ds_write_b128 v27, {vr(a+4,4)} offset:{r2*2048+1024}")
    p.I(f"""v_mul_f32 v4, {f32(0.25*LOG2E)}, v4
    v_mul_f32 v8, {f32(0.25*LOG2E)}, v8
    s_waitcnt lgkmcnt(4)""")
    for i in range(8): p.I(f"v_pk_add_f32 {vr(CQ+2*i,2)}, {vr(CQ+2*i,2)}, {vr(C2+2*i,2)}")
    for rb in range(2):
        a = ACC[("q", rb)]
        qk(a, CQ, 2 + 4 * rb, 4 + 4 * rb)
        p.I(f"ds_write_b128 v28, {vr(a,4)} offset:{rb*1024}")
        p.I(f"ds_write_b128 v28, {vr(a+4,4)} offset:{4096+rb*1024}")
    p.I(f"""s_waitcnt vmcnt(0)
    s_mov_b64 exec, 1
    buffer_store_dword v29, v22, {sr(SW,4)}, 0 offen sc1
    s_mov_b64 exec, -1""")
    stamp(p, 4)
    p.L("A_attn")
    if "noattn" in OPT:
        stamp_out(p, 14); p.I("s_endpgm")
    sHP, sTB, sNB = sA, sB, sOF
    p.I(f"""s_lshr_b32 s{sT0}, s{sW4}, 1
    s_lshl_b32 s{sT1}, s{sHQ}, 1
    s_add_u32 s{sT1}, s{sT1}, s{sT0}
    s_lshl_b32 s{sT2}, s{sRT}, 2
    s_lshl_b32 s{sT3}, s{sT1}, 6
    s_add_u32 s{sT3}, s{sT3}, s{sT2}
    s_lshl_b32 s{sT3}, s{sT3}, 6
    s_add_u32 s{sT3}, s{sT3}, {FK - 512}
    v_lshl_add_u32 v2, v1, 7, s{sT3}
    v_lshlrev_b32 v3, 4, v1
    s_lshl_b32 s{sT1}, s{sT1}, 17
    s_and_b32 s{sT3}, s{sWV}, 1
    s_cmp_ge_u32 s{sWV}, 4
    s_cbranch_scc1 A_h_v
    s_lshl_b32 s{sT3}, s{sT3}, 16
    s_add_u32 s{sT1}, s{sT1}, s{sT3}
    s_lshl_b32 s{sT2}, s{sRT}, 12
    s_add_u32 s{sT1}, s{sT1}, s{sT2}
    s_add_u32 s{sT1}, s{sT1}, {KF - 8192}
    s_mul_i32 s{sM0}, s{sW4}, 12288
    s_branch A_h_j""")
    p.L("A_h_v")
    p.I(f"""s_lshl_b32 s{sT3}, s{sT3}, 13
    s_add_u32 s{sT1}, s{sT1}, s{sT3}
    s_lshl_b32 s{sT2}, s{sRT}, 13
    s_add_u32 s{sT1}, s{sT1}, s{sT2}
    s_add_u32 s{sT1}, s{sT1}, {VF - 16384}
    s_mul_i32 s{sM0}, s{sT0}, 24576
    s_add_u32 s{sM0}, s{sM0}, s{sT3}
    s_add_u32 s{sM0}, s{sM0}, {VA_}""")
    p.L("A_h_j")
    p.I(f"""s_cmp_eq_u32 s{sRT}, 0
    s_cbranch_scc1 A_h_done
    s_cmp_eq_u32 s{sRT}, 1
    s_cselect_b32 exec_lo, 12, 15
    s_mov_b32 exec_hi, 0""")
    poll(p, "A_pollk", 2, 4, 1, opt("ksl", 2))
    p.I(f"v_add_u32 v4, s{sT1}, v3")
    for hf in range(2):
        p.I(f"s_add_u32 m0, s{sM0}, {hf*4096}")
        p.I(f"s_mov_b32 s{sT2}, {hf*4096}")
        for u in range(4): p.I(f"buffer_load_dwordx4 v4, {sr(SW,4)}, s{sT2} offen offset:{u*1024} sc1 lds")
    p.L("A_h_done")
    stamp(p, 5)
    p.I(f"""s_lshr_b32 s{sHP}, s{sWV}, 2
    s_lshl_b32 s{sTB}, s{sRT}, 2
    s_add_u32 s{sTB}, s{sTB}, s{sW4}
    s_min_u32 s{sNB}, s{sTB}, 8
    v_and_b32 v4, 31, v1
    v_lshrrev_b32 v5, 5, v1
    v_lshlrev_b32 v5, 2, v5
    v_sub_u32 v4, v4, v5""")
    msk = lambda r: f"s[{32+2*r}:{33+2*r}]"
    for r in range(16): p.I(f"v_cmp_le_i32 {msk(r)}, {(r & 3) + 8 * (r >> 2)}, v4")
    p.I(f"""v_mov_b32 v6, {f32(-1e30)}
    s_mul_i32 s{sT0}, s{sHP}, 24576
    s_lshl_b32 s{sT1}, s{sW4}, 10
    s_add_u32 s{sT2}, s{sT0}, s{sT1}
    v_add_u32 v4, s{sT2}, v3
    s_add_u32 s{sT2}, s{sT2}, s{sT1}
    s_add_u32 s{sT2}, s{sT2}, {VA_}
    v_add_u32 v5, s{sT2}, v3
    s_lshl_b32 s{sT2}, s{sHP}, 13
    s_add_u32 s{sT2}, s{sT2}, s{sT1}
    s_add_u32 s{sT2}, s{sT2}, {QA_}
    v_add_u32 v7, s{sT2}, v3
    s_mov_b32 s4, 0x0000ffff
    s_mov_b32 s5, 0x0000ffff
    s_mov_b32 s6, 0xffff0000
    s_mov_b32 s7, 0xffff0000""")
    NA, NB, OA, OB = 16, 32, 48, 64
    SBUF = [[80, 96], [112, 128]]; KR = [[144, 148], [152, 156]]; PR = [160, 168]; VR = [176, 192]
    for r in range(16):
        p.I(f"v_cndmask_b32 v{NA+r}, v6, 0, {msk(r)}")
        p.I(f"v_cndmask_b32 v{NB+r}, 0, v6, {msk(r)}")
    for r in range(OA, OB + 16): p.I(f"v_mov_b32 v{r}, 0")
    for r in range(176, 208): p.I(f"v_mov_b32 v{r}, 0x3f803f80")
    p.I("v_mov_b32 v208, v6\nv_mov_b32 v209, v6")
    p.I("s_waitcnt vmcnt(0) lgkmcnt(0)")
    p.I("s_barrier")
    stamp(p, 6)
    p.I("ds_read_b128 v[8:11], v7\nds_read_b128 v[12:15], v7 offset:4096")
    kread = lambda jb, s: [f"ds_read_b128 {vr(KR[s][0],4)}, v4 offset:{jb*1024}", f"ds_read_b128 {vr(KR[s][1],4)}, v4 offset:{12288+jb*1024}"]
    smm = lambda s, cA, cB: [f"{MFMA} {vr(SBUF[s][0],16)}, {vr(KR[s][0],4)}, v[8:11], {cA}", f"{MFMA} {vr(SBUF[s][1],16)}, {vr(KR[s][1],4)}, v[12:15], {cB}"]
    def maxes(s):
        L = []
        for i in range(8):
            L.append(f"v_max3_f32 v208, v{SBUF[s][0]+2*i}, v{SBUF[s][0]+2*i+1}, v208")
            L.append(f"v_max3_f32 v209, v{SBUF[s][1]+2*i}, v{SBUF[s][1]+2*i+1}, v209")
        return L
    emit(p, kread(8, 0) + kread(7, 1))
    p.I("s_waitcnt lgkmcnt(0)")
    p.I("s_barrier")
    p.I(f"s_cmp_lt_u32 s{sWV}, 4\ns_cbranch_scc1 A_nopf")
    for n in range(FPRE): emit(p, f_dma(n))
    p.L("A_nopf")
    if "noattn2" in OPT:
        stamp_out(p, 14); p.I("s_endpgm")
    emit(p, smm(0, vr(NA,16), vr(NA,16)))
    for n in range(8):
        s = n & 1
        p.I(f"s_cmp_lt_u32 s{sNB}, {n+1}\ns_cbranch_scc1 A_p1_last{s}")
        p.I("s_waitcnt lgkmcnt(0)")
        c = vr(NB,16) if n + 1 == 8 else "0"
        emit(p, smm(s ^ 1, c, c))
        if n + 2 <= 8: emit(p, kread(8 - (n + 2), s))
        emit(p, maxes(s))
    p.L("A_p1_last0")
    p.I("s_nop 7\ns_nop 3")
    emit(p, maxes(0))
    p.I("s_branch A_p1_done")
    p.L("A_p1_last1")
    p.I("s_nop 7\ns_nop 3")
    emit(p, maxes(1))
    p.L("A_p1_done")
    p.I("s_waitcnt lgkmcnt(0)")
    stamp(p, 7)
    vread = lambda jb, s: ["s_mov_b64 exec, s[4:5]",
                f"ds_read_b128 {vr(VR[s],4)}, v5 offset:{jb*2048}", f"ds_read_b128 {vr(VR[s]+4,4)}, v5 offset:{jb*2048+1024}",
                "s_mov_b64 exec, s[6:7]",
                f"ds_read_b128 {vr(VR[s]+8,4)}, v5 offset:{jb*2048}", f"ds_read_b128 {vr(VR[s]+12,4)}, v5 offset:{jb*2048+1024}",
                "s_mov_b64 exec, -1"]
    emit(p, kread(8, 0) + kread(7, 1) + vread(8, 0))
    p.I("""v_mov_b32 v210, v208
    v_mov_b32 v211, v209
    v_permlane32_swap_b32 v208, v210
    v_permlane32_swap_b32 v209, v211
    v_max_f32 v208, v208, v210
    v_max_f32 v209, v209, v211
    v_sub_f32 v208, 0, v208
    v_sub_f32 v209, 0, v209""")
    for r in range(16):
        p.I(f"v_cndmask_b32 v{SBUF[0][0]+r}, v6, v208, {msk(r)}")
        p.I(f"v_cndmask_b32 v{SBUF[0][1]+r}, v6, v209, {msk(r)}")
    p.I("s_waitcnt lgkmcnt(0)")
    emit(p, smm(0, vr(SBUF[0][0],16), vr(SBUF[0][1],16)))
    for r in range(16):
        p.I(f"v_mov_b32 v{NA+r}, v208")
        p.I(f"v_mov_b32 v{NB+r}, v209")
    def softp(s, hd):
        S = SBUF[s][hd]; P = PR[hd]; V = VR[s] + 8 * hd; O = (OA, OB)[hd]
        L = [f"v_exp_f32 v{S+i}, v{S+i}" for i in range(8)]
        L += [f"v_cvt_pk_bf16_f32 v{P+i}, v{S+2*i}, v{S+2*i+1}" for i in range(4)]
        L += [f"v_exp_f32 v{S+i}, v{S+i}" for i in range(8, 10)]
        L += [f"{MFMA} {vr(O,16)}, {vr(V,4)}, {vr(P,4)}, {vr(O,16)}"]
        L += [f"v_exp_f32 v{S+i}, v{S+i}" for i in range(10, 16)]
        L += [f"v_cvt_pk_bf16_f32 v{P+i}, v{S+2*i}, v{S+2*i+1}" for i in range(4, 8)]
        return L, [f"{MFMA} {vr(O,16)}, {vr(V+4,4)}, {vr(P+4,4)}, {vr(O,16)}"]
    def soft(s):
        a, a2 = softp(s, 0); b, b2 = softp(s, 1)
        return a + b[:2] + a2 + b[2:] + b2
    for n in range(8):
        s = n & 1
        p.I(f"s_cmp_lt_u32 s{sNB}, {n+1}\ns_cbranch_scc1 A_p2_last{s}")
        if n + 1 == 8:
            for r in range(16):
                p.I(f"v_cndmask_b32 v{NA+r}, v208, v6, {msk(r)}")
                p.I(f"v_cndmask_b32 v{NB+r}, v209, v6, {msk(r)}")
        p.I("s_waitcnt lgkmcnt(0)")
        emit(p, smm(s ^ 1, vr(NA,16), vr(NB,16)))
        if n + 2 <= 8: emit(p, kread(8 - (n + 2), s))
        emit(p, vread(8 - (n + 1), s ^ 1))
        emit(p, soft(s))
    p.L("A_p2_last0")
    p.I("s_waitcnt lgkmcnt(0)\ns_nop 7\ns_nop 3")
    emit(p, soft(0))
    p.I("s_branch A_p2_done")
    p.L("A_p2_last1")
    p.I("s_waitcnt lgkmcnt(0)\ns_nop 7\ns_nop 3")
    emit(p, soft(1))
    p.L("A_p2_done")
    p.I(f"""s_lshl_b32 s{sT0}, s{sHQ}, 1
    s_add_u32 s{sT0}, s{sT0}, s{sHP}
    s_lshl_b32 s{sT1}, s{sTB}, 15
    s_lshl_b32 s{sT2}, s{sT0}, 11
    s_add_u32 s{sT1}, s{sT1}, s{sT2}
    s_add_u32 s{sT1}, s{sT1}, {OF}
    v_add_u32 v2, s{sT1}, v3
    s_lshl_b32 s{sT1}, s{sTB}, 4
    s_add_u32 s{sT1}, s{sT1}, s{sT0}
    s_lshl_b32 s{sT1}, s{sT1}, 7
    s_add_u32 s{sT1}, s{sT1}, {FO}
    v_mov_b32 v4, s{sT1}
    v_mov_b32 v5, s{sTAG}
    v_rcp_f32 v208, v{OA+8}
    v_rcp_f32 v210, v{OB}""")
    for i in range(4): p.I(f"v_pk_mul_f32 {vr(OA+2*i,2)}, {vr(OA+2*i,2)}, v[208:209] op_sel_hi:[1,0]")
    for i in range(4): p.I(f"v_pk_mul_f32 {vr(OB+8+2*i,2)}, {vr(OB+8+2*i,2)}, v[210:211] op_sel_hi:[1,0]")
    for i in range(4): p.I(f"v_cvt_pk_bf16_f32 v{160+i}, v{OA+2*i}, v{OA+2*i+1}")
    for i in range(4): p.I(f"v_cvt_pk_bf16_f32 v{164+i}, v{OB+8+2*i}, v{OB+8+2*i+1}")
    p.I(f"""buffer_store_dwordx4 v[160:163], v2, {sr(SW,4)}, 0 offen sc1
    buffer_store_dwordx4 v[164:167], v2, {sr(SW,4)}, 0 offen offset:1024 sc1""")
    stamp(p, 8)
    p.I(f"""s_waitcnt vmcnt(0)
    s_mov_b64 exec, 1
    buffer_store_dword v5, v4, {sr(SW,4)}, 0 offen sc1
    s_mov_b64 exec, -1
    s_cmp_lt_u32 s{sWV}, 4
    s_cbranch_scc1 F_cons
    s_barrier
    s_branch F_load""")

USLOT = 24576; UND = 6; LNP = 1088; LNS = 5 * USLOT
def gen_B(p):
    p.L("B_entry")
    if "noB" in OPT: p.I("s_endpgm")
    p.I(f"""s_lshl_b32 s{sT0}, s{sR}, 4
    s_add_u32 s{sT0}, s{sT0}, s{sK}
    s_lshr_b32 s{sFT}, s{sT0}, 2
    s_and_b32 s{sT0}, s{sT0}, 3
    s_lshl_b32 s{sDU}, s{sC}, 2
    s_add_u32 s{sDU}, s{sDU}, s{sT0}""")
    if "norot" in OPT or "norotu" in OPT: p.I("s_mov_b32 s98, 0")
    else: p.I(f"s_add_u32 s98, s{sFT}, s{sDU}\ns_and_b32 s98, s98, 3\ns_lshl_b32 s98, s98, 2")
    p.I(f"""s_cmp_lt_u32 s{sWV}, 4
    s_cbranch_scc1 B_cons""")
    for j in range(3):
        p.I(f"""v_add_u32 v10, {64*j}, v1
        v_mul_u32_u24 v11, 5462, v10
        v_lshrrev_b32 v11, 16, v11
        v_mul_u32_u24 v12, 12, v11
        v_sub_u32 v12, v10, v12
        s_lshl_b32 s{sT0}, s{sW4}, 5
        v_add_u32 v11, s{sT0}, v11
        v_mul_u32_u24 v11, 2752, v11
        v_lshl_add_u32 v11, v12, 4, v11
        s_mul_i32 s{sT0}, s{sFT}, 192
        s_sub_u32 s{sT0}, s{sT0}, {1024*j}
        v_add_u32 v{2+j}, s{sT0}, v11
        s_cmp_eq_u32 s{sFT}, 14
        s_cselect_b32 s{sT0}, 4, 12
        v_cmp_le_u32 vcc, s{sT0}, v12
        v_mov_b32 v13, 0x7fff0000
        v_cndmask_b32 v{2+j}, v{2+j}, v13, vcc
        v_add_u32 v{5+j}, {16*2752}, v{2+j}""")
    p.I(f"s_mul_i32 s{sM0}, s{sW4}, 6144\ns_waitcnt lgkmcnt(0)")
    srd(p, SA, P_W1, 2048 * 2752)
    srd(p, SW, P_WS, WS_USED)
    p.I(f"s_mov_b32 s{sTAG}, 0")
    def udma(n):
        L = [f"s_add_u32 m0, s{sM0}, {(n % UND) * USLOT}"]
        if n == 0: L.append(f"s_mul_i32 s{sOF}, s98, {128*2752}")
        else: L += [f"s_add_u32 s{sOF}, s{sOF}, {128*2752}", f"s_cmp_eq_u32 s{sOF}, {2048*2752}", f"s_cselect_b32 s{sOF}, 0, s{sOF}"]
        L += [f"buffer_load_dwordx4 v{2+j}, {sr(SA,4)}, s{sOF} offen offset:{j*1024} lds" for j in range(3)]
        L.append(f"s_add_u32 m0, s{sM0}, {(n % UND) * USLOT + 3072}")
        L += [f"buffer_load_dwordx4 v{5+j}, {sr(SA,4)}, s{sOF} offen offset:{j*1024} lds" for j in range(3)]
        return L
    p.I(f"s_cmp_eq_u32 s{sFT}, 15\ns_cbranch_scc1 B_l_spare")
    q = VQ(p)
    UB1 = opt("ub1", 2); UB2 = opt("ub2", 6)
    p.I("s_barrier")
    for n in range(UB1): emit(p, udma(n)); q.add(f"U{n}", 6)
    stamp(p, 1)
    f_loader_setup(p)
    p.I("s_barrier")
    for n in range(UB1, UB2): emit(p, udma(n)); q.add(f"U{n}", 6)
    stamp(p, 2)
    iu = UB2; jf = 0
    def f_free(n, t):
        a, b = fslot(n), fslot(n) + 16384
        for d in range(t, 16):
            a2 = (d % UND) * USLOT
            if a < a2 + USLOT and a2 < b: return False
        return True
    jfl = [0]
    def fhook(t, done):
        while "fearly" in OPT and done and jfl[0] < FPRE and f_free(jfl[0], t):
            emit(p, f_dma(jfl[0])); q.add(f"F{jfl[0]}", 0 if "nofp" in OPT else 4); jfl[0] += 1
    paced(p, q, "U", udma, UB2, 16, UND, opt("uml", 2), fhook)
    jf = jfl[0]
    stamp(p, 3)
    p.I("s_barrier\ns_barrier\ns_barrier")
    for n in range(jf, FPRE): emit(p, f_dma(n))
    p.I("s_branch F_load")
    p.L("B_l_spare")
    stamp(p, -1)
    f_loader_setup(p)
    p.I("s_barrier\ns_barrier")
    if "nopf" not in OPT:
        p.I(f"""v_lshlrev_b32 v24, 7, v1
        s_lshl_b32 s{sT2}, s{sDU}, 2
        s_add_u32 s{sT2}, s{sT2}, s{sW4}
        s_lshl_b32 s{sOF}, s{sT2}, 14
        buffer_load_dword v30, v24, {sr(SD,4)}, s{sOF} offen
        s_add_u32 s{sOF}, s{sOF}, 8192
        buffer_load_dword v30, v24, {sr(SD,4)}, s{sOF} offen""")
    p.I("s_barrier")
    for n in range(FPRE): emit(p, f_dma(n))
    p.I("s_branch F_load")
    p.L("B_cons")
    if "cprio" in OPT: p.I("s_setprio 3")
    RAW, X, T = 32, 48, 80
    p.I(f"""s_lshl_b32 s{sT0}, s{sR}, 9
    s_lshl_b32 s{sT1}, s{sC}, 8
    s_add_u32 s{sT0}, s{sT0}, s{sT1}
    s_lshl_b32 s{sT1}, s{sK}, 4
    s_add_u32 s{sA}, s{sT0}, s{sT1}
    s_lshl_b32 s{sT1}, s{sW4}, 2
    v_lshrrev_b32 v10, 4, v1
    v_add_u32 v10, s{sT1}, v10
    v_and_b32 v11, 15, v1
    v_add_u32 v12, s{sA}, v10
    v_lshlrev_b32 v13, 10, v12
    v_lshl_add_u32 v13, v11, 4, v13
    s_waitcnt lgkmcnt(0)""")
    srd(p, SA, P_X, 0x200000)
    for k in range(4): p.I(f"buffer_load_dwordx4 {vr(RAW+4*k,4)}, v13, {sr(SA,4)}, 0 offen offset:{k*256}")
    p.I(f"v_mov_b32 v20, {LDS - 16}\nv_mov_b32 v21, 0\nds_write_b32 v20, v21\ns_waitcnt lgkmcnt(0)")
    p.I("s_barrier")
    get_tag(p)
    srd(p, SW, P_WS, WS_USED)
    p.I(f"""v_lshlrev_b32 v14, 4, v12
    v_add_u32 v14, {ST}, v14
    v_mul_u32_u24 v15, {LNP}, v10
    v_lshl_add_u32 v15, v11, 4, v15
    v_add_u32 v15, {LNS}, v15
    v_bfe_u32 v16, v1, 2, 2
    v_lshrrev_b32 v17, 5, v1
    v_lshl_add_u32 v16, v17, 3, v16
    v_mul_u32_u24 v16, {LNP}, v16
    v_bfe_u32 v17, v1, 4, 1
    v_lshl_add_u32 v16, v17, 5, v16
    v_and_b32 v17, 3, v1
    v_lshl_add_u32 v16, v17, 3, v16
    s_lshl_b32 s{sT0}, s{sW4}, 8
    s_add_u32 s{sT0}, s{sT0}, {LNS}
    v_add_u32 v16, s{sT0}, v16
    s_lshl_b32 s{sT0}, s{sW4}, 19
    s_lshl_b32 s{sT1}, s{sA}, 6
    s_add_u32 s{sT0}, s{sT0}, s{sT1}
    s_add_u32 s{sT0}, s{sT0}, {HF}
    v_lshl_add_u32 v17, v1, 4, s{sT0}
    s_lshl_b32 s{sT0}, s{sW4}, 14
    s_lshr_b32 s{sT1}, s{sA}, 5
    s_lshl_b32 s{sT1}, s{sT1}, 7
    s_add_u32 s{sT0}, s{sT0}, s{sT1}
    s_and_b32 s{sT1}, s{sA}, 16
    s_lshl_b32 s{sT1}, s{sT1}, 9
    s_add_u32 s{sT0}, s{sT0}, s{sT1}
    s_add_u32 s{sT0}, s{sT0}, {FH}
    v_mov_b32 v18, s{sT0}""")
    fin_tag(p)
    def red16(v): return [dpp_add(v, m) for m in ("quad_perm:[1,0,3,2]", "quad_perm:[2,3,0,1]", "row_half_mirror", "row_mirror")]
    def ln(first, closed=False):
        for i in range(16):
            p.I(f"v_lshlrev_b32 v{X+2*i}, 16, v{RAW+i}\nv_and_b32 v{X+2*i+1}, 0xffff0000, v{RAW+i}")
        for i in range(4): p.I(f"v_pk_add_f32 {vr(T+2*i,2)}, {vr(X+4*i,2)}, {vr(X+4*i+2,2)}")
        for i in range(8, 16): p.I(f"v_pk_add_f32 {vr(T+2*(i&3),2)}, {vr(T+2*(i&3),2)}, {vr(X+2*i,2)}")
        p.I(f"v_pk_add_f32 {vr(T,2)}, {vr(T,2)}, {vr(T+2,2)}\nv_pk_add_f32 {vr(T+4,2)}, {vr(T+4,2)}, {vr(T+6,2)}")
        p.I(f"v_pk_add_f32 {vr(T,2)}, {vr(T,2)}, {vr(T+4,2)}\nv_add_f32 v{T}, v{T}, v{T+1}")
        emit(p, red16(T))
        p.I(f"v_mul_f32 v{T+8}, {f32(-1.0/512)}, v{T}")
        for i in range(16): p.I(f"v_pk_add_f32 {vr(X+2*i,2)}, {vr(X+2*i,2)}, {vr(T+8,2)} op_sel_hi:[1,0]")
        for i in range(4): p.I(f"v_pk_mul_f32 {vr(T+2*i,2)}, {vr(X+2*i,2)}, {vr(X+2*i,2)}")
        for i in range(4, 16): p.I(f"v_pk_fma_f32 {vr(T+2*(i&3),2)}, {vr(X+2*i,2)}, {vr(X+2*i,2)}, {vr(T+2*(i&3),2)}")
        p.I(f"v_pk_add_f32 {vr(T,2)}, {vr(T,2)}, {vr(T+2,2)}\nv_pk_add_f32 {vr(T+4,2)}, {vr(T+4,2)}, {vr(T+6,2)}")
        p.I(f"v_pk_add_f32 {vr(T,2)}, {vr(T,2)}, {vr(T+4,2)}\nv_add_f32 v{T}, v{T}, v{T+1}")
        emit(p, red16(T))
        p.I(f"v_mov_b32 v{T+1}, {f32(1e-5)}\nv_fmac_f32 v{T+1}, {f32(1.0/512)}, v{T}\nv_rsq_f32 v{T+2}, v{T+1}")
        if first:
            p.I(f"""v_mov_b32 v{T+9}, v{T+2}
            v_mov_b32 v{T+10}, s{sTAG}
            v_mov_b32 v{T+11}, s{sTAG}
            s_mov_b32 exec_lo, 0x00010001
            s_mov_b32 exec_hi, 0x00010001
            buffer_store_dwordx4 {vr(T+8,4)}, v14, {sr(SW,4)}, 0 offen sc1
            s_mov_b64 exec, -1""")
        if closed:
            p.I(f"""v_mul_f32 v{T+3}, v{T+2}, v{T+2}
            v_mul_f32 v{T+3}, v{T+3}, v{T}
            v_mov_b32 v{T+4}, {f32(1e-5)}
            v_fmac_f32 v{T+4}, {f32(1.0/512)}, v{T+3}
            v_rsq_f32 v{T+4}, v{T+4}
            v_mul_f32 v{T+2}, v{T+2}, v{T+4}""")
        for i in range(16): p.I(f"v_pk_mul_f32 {vr(X+2*i,2)}, {vr(X+2*i,2)}, {vr(T+2,2)} op_sel_hi:[1,0]")
        for i in range(16): p.I(f"v_cvt_pk_bf16_f32 v{RAW+i}, v{X+2*i}, v{X+2*i+1}")
    stamp(p, 1)
    p.I("s_waitcnt vmcnt(0)")
    stamp(p, 2)
    if "cf2" in OPT: ln(True, True)
    else: ln(True); ln(False)
    for k in range(4): p.I(f"ds_write_b128 v15, {vr(RAW+4*k,4)} offset:{k*256}")
    p.I(f"""v_mov_b32 v21, 1
    s_waitcnt lgkmcnt(0)
    s_mov_b64 exec, 1
    ds_add_u32 v20, v21
    s_mov_b64 exec, -1
    s_mov_b32 s{sSPIN}, 0""")
    p.L("B_lnsync")
    p.I(f"""ds_read_b32 v21, v20
    s_add_u32 s{sSPIN}, s{sSPIN}, 1
    s_waitcnt lgkmcnt(0)
    v_readfirstlane_b32 s{sT0}, v21
    s_cmp_ge_u32 s{sSPIN}, {SPIN_MAX}
    s_cbranch_scc1 B_lnsync_ok
    s_cmp_lt_u32 s{sT0}, 4
    s_cbranch_scc1 B_lnsync""")
    p.L("B_lnsync_ok")
    for i in range(4):
        for tt in range(2): p.I(f"ds_read_b64_tr_b16 {vr(X+4*i+2*tt,2)}, v16 offset:{tt*4*LNP + i*64}")
    p.I(f"v_mov_b32 v19, s{sTAG}")
    for i in range(4):
        p.I(f"s_mov_b32 s{sT0}, {i << 17}\ns_waitcnt lgkmcnt({6 - 2*i})")
        p.I(f"buffer_store_dwordx4 {vr(X+4*i,4)}, v17, {sr(SW,4)}, s{sT0} offen sc1")
    stamp(p, 3)
    p.I(f"""s_waitcnt vmcnt(0)
    s_mov_b64 exec, 1
    buffer_store_dword v19, v18, {sr(SW,4)}, 0 offen sc1
    s_mov_b64 exec, -1
    s_barrier""")
    stamp(p, 4)
    p.I(f"s_cmp_eq_u32 s{sFT}, 15\ns_cbranch_scc1 F_cons")
    AK, AM, AS, TB, LB = 16, 32, 48, 64, 100
    NL = opt("nlu", 12)
    TA = [[2, 3, 4], [5, 6, 7], [8, 9, 10]]
    BI = 180
    p.I(f"""s_and_b32 s{sA}, s{sW4}, 1
    s_lshr_b32 s{sB}, s{sW4}, 1
    v_lshrrev_b32 v15, 5, v1
    s_mul_i32 s{sT0}, s{sFT}, 192
    s_lshl_b32 s{sT1}, s{sA}, 7
    s_add_u32 s{sT1}, s{sT1}, s{sT0}
    v_lshl_add_u32 v12, v15, 3, s{sT1}
    s_lshl_b32 s{sT1}, s{sA}, 5
    s_add_u32 s{sT1}, s{sT1}, s{sT0}
    s_add_u32 s{sT1}, s{sT1}, 64
    v_lshl_add_u32 v13, v15, 3, s{sT1}""")
    srd(p, SB, P_B1, 2752)
    for g in range(4): p.I(f"buffer_load_dwordx2 {vr(BI+2*g,2)}, v12, {sr(SB,4)}, 0 offen offset:{16*g}")
    for g in range(2): p.I(f"buffer_load_dwordx2 {vr(BI+8+2*g,2)}, v13, {sr(SB,4)}, 0 offen offset:{16*g}")
    p.I(f"""s_lshr_b32 s{sT0}, s{sDU}, 1
    s_lshl_b32 s{sT0}, s{sT0}, 14
    s_add_u32 s{sT0}, s{sT0}, {FH}
    s_lshl_b32 s{sT1}, s{sA}, 13
    s_add_u32 s{sT0}, s{sT0}, s{sT1}
    v_lshl_add_u32 v12, v1, 7, s{sT0}
    s_lshl_b32 s{sT1}, s98, 9
    s_add_u32 s{sT3}, s{sT0}, s{sT1}
    s_lshl_b32 s{sT0}, s{sDU}, 1
    s_add_u32 s{sT0}, s{sT0}, s{sB}
    s_lshl_b32 s{sT0}, s{sT0}, 17
    s_lshl_b32 s{sT1}, s{sA}, 10
    s_add_u32 s{sT0}, s{sT0}, s{sT1}
    s_add_u32 s{sT0}, s{sT0}, {HF}
    v_lshl_add_u32 v11, v1, 4, s{sT0}
    v_bfe_u32 v13, v1, 2, 2
    v_lshl_add_u32 v13, v15, 3, v13
    v_mul_u32_u24 v13, 192, v13
    v_bfe_u32 v14, v1, 4, 1
    v_lshl_add_u32 v13, v14, 5, v13
    v_and_b32 v14, 3, v1
    v_lshl_add_u32 v13, v14, 3, v13
    s_mul_i32 s{sT0}, s{sA}, {16*192}
    s_add_u32 s{sT1}, s{sT0}, 64
    v_add_u32 v5, s{sT1}, v13
    s_lshl_b32 s{sT1}, s{sA}, 7
    s_add_u32 s{sT2}, s{sT0}, s{sT1}
    v_add_u32 v2, s{sT2}, v13
    s_sub_u32 s{sT2}, s{sT0}, s{sT1}
    s_add_u32 s{sT2}, s{sT2}, 128
    v_add_u32 v8, s{sT2}, v13""")
    for b in range(3):
        p.I(f"v_add_u32 v{TA[b][1]}, 0x10000, v{TA[b][0]}\nv_add_u32 v{TA[b][2]}, 0x20000, v{TA[b][0]}")
    q = VQ(p)
    q.add("BI", 6)
    if "vpoll" in OPT: poll(p, "B_pollh", 12, 14)
    else: spoll(p, "B_pollh", sT3, 16)
    stamp(p, 5)
    def lload(g):
        if g == 8 and "vpoll" not in OPT:
            p.I(f"buffer_load_dword v14, v12, {sr(SW,4)}, 0 offen sc1"); q.add("PH")
        if g == 16 and "vpoll" not in OPT:
            q.wait("PH")
            if "nopoll" not in OPT:
                p.I(f"v_cmp_ne_u32 vcc, s{sTAG}, v14\ns_cbranch_vccz B_pollh2_ok")
            poll(p, "B_pollh2", 12, 14)
        if g == 0: p.I(f"s_lshl_b32 s{sOF}, s98, 13")
        elif g % 2 == 0:
            p.I(f"s_add_u32 s{sOF}, s{sOF}, 4096")
            if g % 4 == 0: p.I(f"s_and_b32 s{sOF}, s{sOF}, 0x1ffff")
        if "noL" in OPT and g >= NL: return
        p.I(f"buffer_load_dwordx4 {vr(LB+4*(g % NL),4)}, v11, {sr(SW,4)}, s{sOF} offen offset:{(g & 1) * 2048} sc1")
        q.add(f"L{g}")
    def treads(g):
        n, i = g >> 2, g & 3
        o = (n % UND) * USLOT + i * 32 * 192
        return [f"ds_read_b64_tr_b16 {vr(TB+12*(g%3)+4*b+2*tt,2)}, " + lds_ref(TA[b], o + tt * 4 * 192) for b in range(3) for tt in range(2)]
    for g in range(NL): lload(g)
    q.wait("BI")
    for i in range(8):
        p.I(f"v_lshlrev_b32 v{AK+2*i}, 16, v{BI+i}\nv_and_b32 v{AK+2*i+1}, 0xffff0000, v{BI+i}")
    p.I("s_barrier")
    emit(p, treads(0) + treads(1))
    G = 64
    for g in range(G):
        Lr = vr(LB + 4 * (g % NL), 4)
        M = [f"{MFMA} {vr(a,16)}, {vr(TB+12*(g%3)+4*b,4)}, {Lr}, {'0' if (g == 0 and b > 0) else vr(a,16)}" for b, a in enumerate((AK, AM, AS))]
        nxt = g + 2
        p.I(f"s_waitcnt lgkmcnt({6 if g + 1 < G else 0})")
        q.wait(f"L{g}")
        if "ust" in OPT and g % 16 == 0: stamp(p, 9 + g // 16)
        p.I(M[0])
        if nxt < G:
            if nxt % 4 == 0: p.I("s_waitcnt lgkmcnt(0)\ns_barrier")
            R = treads(nxt)
            if "noR" in OPT: R = []
            if "r222" in OPT: emit(p, R[:2] + [M[1]] + R[2:4] + [M[2]] + R[4:])
            else: emit(p, R[:3] + [M[1]] + R[3:] + [M[2]])
        else: emit(p, M[1:])
        if "lbunch" in OPT:
            if g % 4 in (0, 1):
                for gg in (g + NL + (g % 4), g + NL + (g % 4) + 1):
                    if gg - 2 < G and gg - 2 >= NL: lload(gg - 2)
        elif g + NL < G: lload(g + NL)
    stamp(p, 6)
    RSC = (15 % UND) * USLOT
    c1 = -2.0 * math.sqrt(2.0 / math.pi) * LOG2E
    c2 = c1 * 0.044715
    p.I(f"""s_mul_i32 s{sT0}, s{sW4}, 6144
    s_add_u32 s{sT0}, s{sT0}, {RSC}
    v_lshl_add_u32 v2, v1, 4, s{sT0}
    s_xor_b32 s{sT0}, s{sW4}, 1
    s_mul_i32 s{sT0}, s{sT0}, 6144
    s_add_u32 s{sT0}, s{sT0}, {RSC}
    v_lshl_add_u32 v3, v1, 4, s{sT0}
    s_cmp_eq_u32 s{sA}, 1
    s_cselect_b64 s[32:33], -1, 0
    s_barrier""")
    MK, MS = 64, 72
    for i in range(8):
        p.I(f"v_cndmask_b32 v{MS+i}, v{AM+8+i}, v{AM+i}, s[32:33]")
        p.I(f"v_cndmask_b32 v{MK+i}, v{AM+i}, v{AM+8+i}, s[32:33]")
    for k in range(2): p.I(f"ds_write_b128 v3, {vr(MS+4*k,4)} offset:{4096+k*1024}")
    for k in range(4): p.I(f"ds_write_b128 v3, {vr(AS+4*k,4)} offset:{k*1024}")
    for i in range(4):
        p.I(f"v_lshlrev_b32 v{AM+2*i}, 16, v{BI+8+i}\nv_and_b32 v{AM+2*i+1}, 0xffff0000, v{BI+8+i}")
    for i in range(4): p.I(f"v_pk_add_f32 {vr(AM+2*i,2)}, {vr(AM+2*i,2)}, {vr(MK+2*i,2)}")
    p.I(f"""s_mov_b32 s34, {f32(c2)}
    s_mov_b32 s35, {f32(c2)}
    v_mov_b32 v12, {f32(c1)}
    v_mov_b32 v13, {f32(c1)}
    s_lshl_b32 s{sT0}, s{sDU}, 1
    s_add_u32 s{sT0}, s{sT0}, s{sB}
    s_mul_i32 s{sT1}, s{sT0}, {GFS}
    s_mul_i32 s{sT2}, s{sFT}, 6
    s_add_u32 s{sT1}, s{sT1}, s{sT2}
    s_lshl_b32 s{sT1}, s{sT1}, 10
    s_add_u32 s{sT1}, s{sT1}, {GF}
    v_lshl_add_u32 v14, v1, 4, s{sT1}
    s_lshl_b32 s36, s{sA}, 12
    s_lshl_b32 s37, s{sA}, 10
    s_add_u32 s37, s37, 2048
    s_lshl_b32 s{sT0}, s{sT0}, 5
    s_lshl_b32 s{sT1}, s{sFT}, 1
    s_add_u32 s{sT0}, s{sT0}, s{sT1}
    s_add_u32 s{sT0}, s{sT0}, s{sA}
    s_lshl_b32 s{sT0}, s{sT0}, 7
    s_add_u32 s{sT0}, s{sT0}, {FG}
    v_mov_b32 v15, s{sT0}
    v_mov_b32 v11, s{sTAG}
    s_cmp_eq_u32 s{sFT}, 14
    s_cselect_b32 s38, 0, -1
    s_waitcnt lgkmcnt(0)
    s_barrier""")
    E = 64
    for k in range(6): p.I(f"ds_read_b128 {vr(E+4*k,4)}, v2 offset:{k*1024}")
    p.I("s_waitcnt lgkmcnt(0)")
    U = AK
    for i in range(12): p.I(f"v_pk_add_f32 {vr(U+2*i,2)}, {vr(U+2*i,2)}, {vr(E+2*i,2)}")
    for i in range(12): p.I(f"v_pk_mul_f32 {vr(E+2*i,2)}, {vr(U+2*i,2)}, {vr(U+2*i,2)}")
    for i in range(12): p.I(f"v_pk_fma_f32 {vr(E+2*i,2)}, {vr(E+2*i,2)}, s[34:35], v[12:13]")
    for i in range(12): p.I(f"v_pk_mul_f32 {vr(E+2*i,2)}, {vr(E+2*i,2)}, {vr(U+2*i,2)}")
    for i in range(24): p.I(f"v_exp_f32 v{E+i}, v{E+i}")
    for i in range(12): p.I(f"v_pk_add_f32 {vr(E+2*i,2)}, {vr(E+2*i,2)}, 1.0 op_sel_hi:[1,0]")
    for i in range(24): p.I(f"v_rcp_f32 v{E+i}, v{E+i}")
    for i in range(12): p.I(f"v_pk_mul_f32 {vr(E+2*i,2)}, {vr(E+2*i,2)}, {vr(U+2*i,2)}")
    for i in range(12): p.I(f"v_cvt_pk_bf16_f32 v{48+i}, v{E+2*i}, v{E+2*i+1}")
    for i in range(4): p.I(f"v_and_b32 v{56+i}, s38, v{56+i}")
    p.I(f"""buffer_store_dwordx4 v[48:51], v14, {sr(SW,4)}, s36 offen sc1
    buffer_store_dwordx4 v[52:55], v14, {sr(SW,4)}, s36 offen offset:1024 sc1
    buffer_store_dwordx4 v[56:59], v14, {sr(SW,4)}, s37 offen sc1""")
    stamp(p, 7)
    p.I(f"""s_waitcnt vmcnt(0)
    s_mov_b64 exec, 1
    buffer_store_dword v11, v15, {sr(SW,4)}, 0 offen sc1
    s_mov_b64 exec, -1""")
    stamp(p, 8)

def gen_F(p):
    p.L("F_cons")
    if "noF" in OPT:
        p.I("s_barrier"); stamp_out(p, 14); p.I("s_endpgm")
    p.I("s_barrier")
    A0, A1, A2, TB, LB = 16, 32, 48, 64, 88
    NL = opt("nlf", 12)
    TA = [[2, 3, 4], [5, 6, 7]]
    p.I(f"""s_and_b32 s{sA}, s{sW4}, 1
    s_lshr_b32 s{sB}, s{sW4}, 1
    v_lshrrev_b32 v9, 5, v1
    s_lshl_b32 s{sT0}, s{sST}, 6
    s_lshl_b32 s{sT1}, s{sB}, 5
    s_add_u32 s{sT0}, s{sT0}, s{sT1}
    v_and_b32 v10, 31, v1
    v_add_u32 v10, s{sT0}, v10
    v_lshlrev_b32 v11, 1, v10
    v_lshlrev_b32 v14, 10, v10
    s_lshl_b32 s{sT0}, s{sDT}, 7
    s_lshl_b32 s{sT1}, s{sA}, 6
    s_add_u32 s{sT0}, s{sT0}, s{sT1}
    v_add_u32 v14, s{sT0}, v14
    v_lshl_add_u32 v15, v9, 4, v14
    v_lshl_add_u32 v14, v9, 3, v14""")
    srd(p, SA, P_X, 0x200000); srd(p, SB, P_B2, 4096)
    for g in range(4): p.I(f"buffer_load_dwordx2 {vr(TB+2*g,2)}, v14, {sr(SA,4)}, 0 offen offset:{16*g}")
    p.I(f"buffer_load_ushort v{TB+8}, v11, {sr(SB,4)}, 0 offen")
    p.I(f"""v_bfe_u32 v10, v1, 4, 1
    v_lshlrev_b32 v10, 1, v10
    v_bfe_u32 v11, v1, 1, 1
    v_add_u32 v10, v10, v11
    v_bfe_u32 v11, v1, 3, 1
    v_lshl_add_u32 v10, v11, 2, v10
    v_lshlrev_b32 v10, 4, v10
    v_and_b32 v11, 1, v1
    v_lshl_add_u32 v10, v11, 3, v10
    v_bfe_u32 v11, v1, 2, 2
    v_lshl_add_u32 v10, v11, 7, v10
    v_lshl_add_u32 v8, v9, 9, v10
    s_lshl_b32 s{sT0}, s{sDT}, 1
    s_add_u32 s{sT0}, s{sT0}, s{sA}
    s_lshl_b32 s{sT1}, s{sT0}, 12
    s_add_u32 s{sT1}, s{sT1}, {FG}
    v_lshl_add_u32 v12, v1, 7, s{sT1}
    s_mov_b32 s{sT3}, s{sT1}
    s_mul_i32 s{sT0}, s{sT0}, {GFS*1024}
    s_lshl_b32 s{sT1}, s{sB}, 10
    s_add_u32 s{sT0}, s{sT0}, s{sT1}
    s_add_u32 s{sT0}, s{sT0}, {GF}
    v_lshl_add_u32 v10, v1, 4, s{sT0}
    s_lshl_b32 s{sT0}, s{sST}, 1
    s_add_u32 s{sT0}, s{sT0}, s{sB}
    s_lshl_b32 s{sT1}, s{sT0}, 11
    s_add_u32 s{sT1}, s{sT1}, {FO}
    v_lshl_add_u32 v13, v1, 7, s{sT1}
    s_lshl_b32 s{sT0}, s{sT0}, 15
    s_lshl_b32 s{sT1}, s{sA}, 10
    s_add_u32 s{sT0}, s{sT0}, s{sT1}
    s_add_u32 s{sT0}, s{sT0}, {OF}
    v_lshl_add_u32 v11, v1, 4, s{sT0}""")
    def set_taddr(skh):
        return [f"s_mul_i32 s{sT0}, s{skh}, {2048 + 64}", f"v_xor_b32 v2, s{sT0}, v8", "v_xor_b32 v5, 64, v2",
                "v_add_u32 v3, 0x10000, v2", "v_add_u32 v4, 0x20000, v2", "v_add_u32 v6, 0x10000, v5", "v_add_u32 v7, 0x20000, v5"]
    emit(p, set_taddr(sB))
    stamp(p, 9)
    q = VQ(p)
    q.add("XB", 5)
    if "vpoll" in OPT or "vpollg" in OPT:
        set_exec(p, 30)
        poll(p, "F_pollg", 12, 14, 1, opt("gsl", 2))
    else: spoll(p, "F_pollg", sT3, 30, opt("gsl", 1))
    stamp(p, 10)
    GY, G = 44, 60
    def lload(g):
        part, gg = ("Y", g) if g < GY else ("O", g - GY)
        if g == GY:
            stamp(p, 11)
            q.wait("PO")
            set_exec(p, 16)
            if "nopoll" not in OPT:
                p.I(f"v_cmp_ne_u32 vcc, s{sTAG}, v14\ns_cbranch_vccz F_pollo_ok")
            poll(p, "F_pollo", 13, 14)
            stamp(p, 12)
        if g == GY - opt("poe", 6):
            set_exec(p, 16)
            p.I(f"buffer_load_dword v14, v13, {sr(SW,4)}, 0 offen sc1\ns_mov_b64 exec, -1")
            q.add("PO")
        if gg == 0: p.I(f"s_lshl_b32 s{sOF}, s{sROT[part]}, 13")
        elif gg % 2 == 0:
            p.I(f"s_add_u32 s{sOF}, s{sOF}, 4096")
            if gg % 4 == 0: p.I(f"s_cmp_eq_u32 s{sOF}, {FCNT[part] * 8192}\ns_cselect_b32 s{sOF}, 0, s{sOF}")
        p.I(f"buffer_load_dwordx4 {vr(LB+4*(g % NL),4)}, v{10 if part == 'Y' else 11}, {sr(SW,4)}, s{sOF} offen offset:{(gg & 1) * 2048} sc1")
        q.add(f"L{g}")
    def treads(g):
        n, i = g >> 2, g & 3
        o = fslot(n) + i * 4096
        L = set_taddr(sA) if g == GY else []
        return L + [f"ds_read_b64_tr_b16 {vr(TB+8*(g%3)+4*b+2*tt,2)}, " + lds_ref(TA[b], o + tt * 1024) for b in range(2) for tt in range(2)]
    for g in range(NL): lload(g)
    q.wait("XB")
    p.I(f"v_lshlrev_b32 v{TB+8}, 16, v{TB+8}")
    for i in range(8):
        p.I(f"v_lshlrev_b32 v{A0+2*i}, 16, v{TB+i}\nv_and_b32 v{A0+2*i+1}, 0xffff0000, v{TB+i}")
    for i in range(16): p.I(f"v_add_f32 v{A0+i}, v{A0+i}, v{TB+8}")
    p.I("s_barrier")
    emit(p, treads(0) + treads(1))
    for g in range(G):
        Lr = vr(LB + 4 * (g % NL), 4)
        M = []
        for blk in range(2):
            acc = A0 if blk == 0 else (A1 if g < GY else A2)
            T = vr(TB + 8 * (g % 3) + 4 * blk, 4)
            a, b = (Lr, T) if g < GY else (T, Lr)
            c = "0" if (blk == 1 and g in (0, GY)) else vr(acc, 16)
            M.append(f"{MFMA} {vr(acc,16)}, {a}, {b}, {c}")
        nxt = g + 2
        p.I(f"s_waitcnt lgkmcnt({4 if g + 1 < G else 0})")
        q.wait(f"L{g}")
        p.I(M[0])
        if nxt < G:
            if nxt % 4 == 0: p.I("s_waitcnt lgkmcnt(0)\ns_barrier")
            emit(p, treads(nxt))
        p.I(M[1])
        if g + NL < G: lload(g + NL)
    stamp(p, 13)
    p.I(f"""s_lshl_b32 s{sT0}, s{sW4}, 12
    s_add_u32 s{sT0}, s{sT0}, 16384
    v_lshl_add_u32 v9, v1, 4, s{sT0}
    v_xor_b32 v10, 8192, v9
    v_xor_b32 v11, 4096, v9""")
    srd(p, SA, P_OUT, 0x200000)
    for k in range(4): p.I(f"ds_write_b128 v10, {vr(A1+4*k,4)} offset:{k*1024}")
    for k in range(4): p.I(f"ds_write_b128 v11, {vr(A2+4*k,4)} offset:{16384 + k*1024}")
    p.I("s_waitcnt lgkmcnt(0)\ns_barrier")
    for k in range(4): p.I(f"ds_read_b128 {vr(A1+4*k,4)}, v9 offset:{k*1024}")
    for k in range(4): p.I(f"ds_read_b128 {vr(A2+4*k,4)}, v9 offset:{16384 + k*1024}")
    p.I("s_waitcnt lgkmcnt(4)")
    for i in range(8): p.I(f"v_pk_add_f32 {vr(A0+2*i,2)}, {vr(A0+2*i,2)}, {vr(A1+2*i,2)}")
    p.I("s_waitcnt lgkmcnt(0)")
    for i in range(8): p.I(f"v_pk_add_f32 {vr(A0+2*i,2)}, {vr(A0+2*i,2)}, {vr(A2+2*i,2)}")
    for i in range(8): p.I(f"v_cvt_pk_bf16_f32 v{32+i}, v{A0+2*i}, v{A0+2*i+1}")
    p.I(f"""v_permlane32_swap_b32 v32, v34
    v_permlane32_swap_b32 v33, v35
    v_permlane32_swap_b32 v36, v38
    v_permlane32_swap_b32 v37, v39
    buffer_store_dwordx4 v[32:35], v15, {sr(SA,4)}, 0 offen
    buffer_store_dwordx4 v[36:39], v15, {sr(SA,4)}, 0 offen offset:32""")
    stamp_out(p, 14)
    p.I("s_endpgm")
    p.L("F_load")
    if "noF" in OPT:
        stamp_out(p, 14); p.I("s_endpgm")
    stamp(p, 9)
    p.I(f"""s_cmp_lg_u32 s{sWV}, 4
    s_cbranch_scc1 F_l_go
    v_mov_b32 v2, 0
    v_mov_b32 v3, 1
    s_mov_b64 exec, 1
    global_atomic_add v2, v3, {sr(P_DBG,2)}
    s_mov_b64 exec, -1""")
    p.L("F_l_go")
    nf = len(FSEQ)
    p.I("s_bitcmp0_b32 s2, 3\ns_cbranch_scc1 F_l_A")
    for role, burst in (("B", opt("fbb", FND - 1)), ("A", opt("fba", FPRE))):
        if role == "A": p.L("F_l_A")
        q = VQ(p)
        for n in range(FPRE): q.add(f"F{n}", 4)
        for n in range(FPRE, burst): emit(p, f_dma(n)); q.add(f"F{n}", 4)
        paced(p, q, "F", f_dma, burst, nf, FND, opt("fml", 2))
        if role == "B": p.I("s_branch F_l_end")
    p.I(f"""s_lshl_b32 s{sT0}, s2, 3
    s_add_u32 s{sT0}, s{sT0}, s{sWV}
    s_cmp_lg_u32 s{sT0}, 4
    s_cbranch_scc1 F_l_end
    s_barrier
    s_mov_b32 s{sSPIN}, 0
    v_mov_b32 v2, 0
    s_mov_b64 exec, 1""")
    p.L("F_ep_spin")
    p.I(f"""global_load_dword v3, v2, {sr(P_DBG,2)} sc1
    s_add_u32 s{sSPIN}, s{sSPIN}, 1
    s_waitcnt vmcnt(0)
    v_readfirstlane_b32 s{sT0}, v3
    s_cmp_ge_u32 s{sSPIN}, {SPIN_MAX}
    s_cbranch_scc1 F_ep_ok
    s_cmp_lt_u32 s{sT0}, 256
    s_cbranch_scc1 F_ep_spin""")
    p.L("F_ep_ok")
    p.I(f"""v_mov_b32 v2, {FLG}
    v_mov_b32 v3, s{sTAG}
    buffer_store_dword v3, v2, {sr(SW,4)}, 0 offen
    s_mov_b64 exec, -1""")
    p.L("F_l_end")
    stamp_out(p, 14)

def main():
    hdr = open("parallel_sum__sliding_block__mixer_token_mlp__prompt.s.ref").read().split("; Override launch")[0]
    out = hdr + f"; @launch grid=(256,1,1) block=(512,1,1) lds={LDS}\n"
    out += '.amdgcn_target "amdgcn-amd-amdhsa--gfx950"\n.text\n'
    p = Prog(); gen(p); out += p.finalize()
    out += "CODE_END:\n.fill 1100, 4, 0xbf800000\n"
    out += f""".section .rodata,"a"
.p2align 6
.amdhsa_kernel {NAME}
  .amdhsa_next_free_vgpr 256
  .amdhsa_next_free_sgpr 102
  .amdhsa_accum_offset 256
  .amdhsa_group_segment_fixed_size 0
  .amdhsa_kernarg_size 88
  .amdhsa_user_sgpr_count 2
  .amdhsa_user_sgpr_kernarg_segment_ptr 1
  .amdhsa_system_sgpr_workgroup_id_x 1
.end_amdhsa_kernel
"""
    open(sys.argv[1], "w").write(out)
main()
```

```python
import sys, math, struct, re
from asmlib import Prog

NAME = "parallel_sum__sliding_block__mixer_token_mlp__prompt_kernel"
HF, KF, VF, GF, OF = 0x0, 0x200000, 0x400000, 0x600000, 0x800000
FLG = 0xA00000
ST = FLG + 0x1000
FH = ST + 0x8000
FK = FH + 0x10000
FG = FK + 0x10000
FO = FG + 0x10000
WS_USED = FO + 0x20000
GFS = 90
LDS = 163840
def f32(x): return "0x%08x" % struct.unpack("<I", struct.pack("<f", x))[0]
LOG2E = 1.4426950408889634
MFMA = "v_mfma_f32_32x32x16_bf16"
MFMA16 = "v_mfma_f32_16x16x32_bf16"
def vr(a, n): return f"v[{a}:{a+n-1}]"
def sr(a, n): return f"s[{a}:{a+n-1}]"
OPT = sys.argv[2:]
STAMP = "--stamp" in OPT
def opt(name, default):
    for o in OPT:
        if o.startswith(name + "="): return int(o.split("=")[1])
    return default
SPIN_MAX = 100000
P_X, P_WQKV, P_WO, P_W1, P_B1, P_W2, P_B2, P_OUT, P_DBG, P_WS = 64, 66, 68, 72, 74, 76, 78, 80, 82, 84
SA, SB, SW, SC, SD = 4, 8, 12, 16, 20
sWV, sW4, sR, sC, sK, sST, sDT, sTAG = 3, 24, 25, 26, 27, 29, 30, 31
sT0, sT1, sT2, sT3 = 28, 86, 87, 88
sM0, sOF, sA, sB, sSPIN, sFT, sDU, sHQ, sRT, sN = 89, 90, 91, 92, 93, 94, 95, 94, 95, 96
VST = 255

def emit(p, L):
    for x in L: p.I(x)
def stamp(p, idx):
    if not STAMP: return
    if idx == 0: return
    if idx == 1 or idx == -1:
        p.I("s_waitcnt lgkmcnt(0)")
        p.I(f"v_writelane_b32 v{VST}, s58, 0")
        if idx == -1: return
    p.I("s_memtime s[100:101]" if "cyc" in OPT else "s_memrealtime s[100:101]")
    p.I("s_waitcnt lgkmcnt(0)")
    p.I(f"v_writelane_b32 v{VST}, s100, {idx}")
def stamp_out(p, n):
    if not STAMP: return
    p.I("s_waitcnt vmcnt(0)")
    stamp(p, n)
    p.I(f"""s_lshl_b32 s98, s2, 3
    s_add_u32 s98, s98, s{sWV}
    s_lshl_b32 s98, s98, 6
    s_add_u32 s98, s98, 0x1000000
    v_lshl_add_u32 v2, v1, 2, s98
    s_mov_b64 exec, 0xffff
    global_store_dword v2, v{VST}, {sr(P_WS,2)}""")
def dpp_add(v, m): return f"v_add_f32_dpp v{v}, v{v}, v{v} {m} row_mask:0xf bank_mask:0xf"
def interleave(main, fill, upto=None):
    out = []; n = upto or len(main); k = 0
    for i, m in enumerate(main):
        out.append(m)
        tgt = min(len(fill), (len(fill) * (i + 1) + n - 1) // n)
        while k < tgt: out.append(fill[k]); k += 1
    return out
def srd(p, s, ptr, size):
    p.I(f"s_mov_b32 s{s}, s{ptr}\ns_mov_b32 s{s+1}, s{ptr+1}\ns_mov_b32 s{s+2}, {size}\ns_mov_b32 s{s+3}, 0x00020000")
def set_exec(p, nl):
    m = (1 << nl) - 1
    p.I(f"s_mov_b32 exec_lo, {hex(m & 0xffffffff)}\ns_mov_b32 exec_hi, {hex(m >> 32)}")
def poll(p, lab, vaddr, vdat, ndw=1, sleep=2):
    if "nopoll" in OPT:
        p.I("s_waitcnt vmcnt(0)\ns_mov_b64 exec, -1"); return
    ld = {1: "dword", 2: "dwordx2"}[ndw]
    p.I(f"s_mov_b32 s{sSPIN}, 0")
    p.L(lab)
    p.I(f"buffer_load_{ld} {'v%d' % vdat if ndw == 1 else vr(vdat, ndw)}, v{vaddr}, {sr(SW,4)}, 0 offen sc1")
    p.I(f"s_add_u32 s{sSPIN}, s{sSPIN}, 1")
    p.I("s_waitcnt vmcnt(0)")
    if ndw == 2:
        p.I(f"v_xor_b32 v{vdat}, s{sTAG}, v{vdat}\nv_xor_b32 v{vdat+1}, s{sTAG}, v{vdat+1}\nv_or_b32 v{vdat}, v{vdat}, v{vdat+1}\nv_cmp_ne_u32 vcc, 0, v{vdat}")
    else:
        p.I(f"v_cmp_ne_u32 vcc, s{sTAG}, v{vdat}")
    p.I(f"""s_cmp_ge_u32 s{sSPIN}, {SPIN_MAX}
    s_cbranch_scc1 {lab}_ok
    s_cbranch_vccz {lab}_ok
    s_sleep {sleep}
    s_branch {lab}""")
    p.L(lab + "_ok")
    p.I("s_mov_b64 exec, -1")
def spoll(p, lab, soff, n, sleep=1):
    if "nopoll" in OPT: return
    tp = 100
    p.I(f"s_add_u32 s62, s{P_WS}, s{soff}\ns_addc_u32 s63, s{P_WS+1}, 0")
    p.I(f"s_mov_b32 s{sSPIN}, 0\ns_mov_b32 s{tp}, s{sTAG}\ns_mov_b32 s{tp+1}, s{sTAG}")
    p.L(lab)
    for i in range(n): p.I(f"s_load_dword s{32+i}, s[62:63], {i*128} glc")
    p.I(f"s_add_u32 s{sSPIN}, s{sSPIN}, 1")
    p.I("s_waitcnt lgkmcnt(0)")
    for i in range(n // 2): p.I(f"s_xor_b64 {sr(32+2*i,2)}, {sr(32+2*i,2)}, {sr(tp,2)}")
    for i in range(1, n // 2): p.I(f"s_or_b64 s[32:33], s[32:33], {sr(32+2*i,2)}")
    p.I(f"""s_cbranch_scc0 {lab}_ok
    s_cmp_ge_u32 s{sSPIN}, {SPIN_MAX}
    s_cbranch_scc1 {lab}_ok
    s_sleep {sleep}
    s_branch {lab}""")
    p.L(lab + "_ok")
class VQ:
    def __init__(self, p): self.p = p; self.q = []
    def add(self, tag, n=1): self.q += [tag] * n
    def wait(self, tag):
        if tag not in self.q: return
        idx = max(i for i, x in enumerate(self.q) if x == tag)
        self.p.I(f"s_waitcnt vmcnt({min(63, len(self.q) - 1 - idx)})")
        del self.q[:idx + 1]
    def clear(self): self.q = []
def lds_ref(regs, off):
    return f"v{regs[off >> 16]} offset:{off & 0xffff}"
def get_tag(p):
    p.I(f"s_mov_b32 s{sT0}, {FLG}\ns_load_dword s{sTAG}, {sr(P_WS,2)}, s{sT0}")
def fin_tag(p):
    p.I(f"s_waitcnt lgkmcnt(0)\ns_add_u32 s{sTAG}, s{sTAG}, 1")

FND = 10
fslot = lambda n: ((n + 6) % FND) * 16384
FY, FOP = [("Y", k, 4096) for k in range(11)], [("O", k, 1024) for k in range(4)]
OFIRST = "yfirst" not in OPT
FSEQ = FOP + FY if OFIRST else FY + FOP
FCNT = {"Y": 11, "O": 4, "U": 16}
sROT = {"Y": 97, "O": 99, "U": 98}
FV = {"Y": 240, "O": 244}
FSRD = {"Y": SC, "O": SD}
def f_loader_setup(p):
    srd(p, SC, P_W2, 1376 * 4096); srd(p, SD, P_WO, 512 * 1024)
    p.I(f"""v_lshrrev_b32 v248, 3, v1
    s_lshl_b32 s{sT0}, s{sW4}, 5
    v_add_u32 v248, s{sT0}, v248
    v_bfe_u32 v249, v1, 4, 1
    v_lshlrev_b32 v249, 2, v249
    v_and_b32 v250, 7, v1
    v_xor_b32 v249, v249, v250
    v_lshlrev_b32 v249, 4, v249""")
    for name, stride, scol in (("Y", 4096, sST), ("O", 1024, sDT)):
        d = FV[name]
        p.I(f"""s_lshl_b32 s{sT0}, s{scol}, 7
        v_mul_u32_u24 v{d}, {stride}, v248
        v_add3_u32 v{d}, v{d}, v249, s{sT0}""")
        for u in range(1, 4): p.I(f"v_add_u32 v{d+u}, {u*(8*stride-1024)}, v{d}")
def f_dma(n):
    if "nofp" in OPT: return []
    name, k, st = FSEQ[n]
    L = [f"s_lshl_b32 s{sT0}, s{sW4}, 12", f"s_add_u32 m0, s{sT0}, {fslot(n)}"]
    if k == 0: L.append(f"s_mul_i32 s{sN}, s{sROT[name]}, {128 * st}")
    else: L += [f"s_add_u32 s{sN}, s{sN}, {128 * st}", f"s_cmp_eq_u32 s{sN}, {128 * st * FCNT[name]}", f"s_cselect_b32 s{sN}, 0, s{sN}"]
    L += [f"buffer_load_dwordx4 v{FV[name]+u}, {sr(FSRD[name],4)}, s{sN} offen offset:{u*1024} lds" for u in range(4)]
    return L
def split_dma(L):
    out = []; cur = []
    for x in L:
        cur.append(x)
        if x.startswith("buffer_load"): out.append(cur); cur = []
    if cur: out[-1] += cur
    return out
def paced(p, q, tag, dma, first, total, nslots, minlead, hook=None):
    items = [(n, g) for n in range(first, total) for g in split_dma(dma(n))]
    last_it = max(1, total - minlead)
    k = 0
    for t in range(total):
        q.wait(f"{tag}{t}")
        p.I("s_barrier")
        tgt = min(len(items), -(-len(items) * (t + 1) // last_it))
        while k < len(items) and items[k][0] <= t + nslots - 1 and (k < tgt or items[k][0] <= t + minlead):
            emit(p, items[k][1]); q.add(f"{tag}{items[k][0]}"); k += 1
        if hook: hook(t, k == len(items))
    assert k == len(items)
FPA = opt('fpa', 3)
FPRE = 4

def gen(p):
    p.I(f".globl {NAME}\n.p2align 8\n.type {NAME},@function")
    p.L(NAME)
    if STAMP: p.I("s_memtime s[58:59]" if "cyc" in OPT else "s_memrealtime s[58:59]")
    p.I(f"""s_cmp_ge_u32 s2, 256
    s_cbranch_scc1 L_end
    s_load_dwordx16 s[64:79], s[0:1], 0
    s_load_dwordx4 s[80:83], s[0:1], 64
    s_load_dwordx2 s[84:85], s[0:1], 80""")
    p.I(f"""v_lshrrev_b32 v2, 6, v0
    v_and_b32 v1, 63, v0
    v_readfirstlane_b32 s{sWV}, v2
    s_and_b32 s{sT0}, s2, 7
    s_lshr_b32 s{sT1}, s2, 3
    s_lshr_b32 s{sR}, s{sT0}, 1
    s_and_b32 s{sC}, s{sT0}, 1
    s_lshr_b32 s{sK}, s{sT1}, 1
    s_lshr_b32 s{sT2}, s{sT1}, 2
    s_lshl_b32 s{sST}, s{sR}, 3
    s_add_u32 s{sST}, s{sST}, s{sT2}
    s_and_b32 s{sT3}, s{sT1}, 3
    s_lshl_b32 s{sDT}, s{sC}, 2
    s_add_u32 s{sDT}, s{sDT}, s{sT3}
    s_and_b32 s{sW4}, s{sWV}, 3""")
    if "norot" in OPT: p.I("s_mov_b32 s97, 0\ns_mov_b32 s99, 0")
    else: p.I(f"""s_lshl_b32 s97, s{sT3}, 1
    s_add_u32 s97, s97, s{sT2}
    s_mul_i32 s97, s97, 11
    s_lshr_b32 s97, s97, 3
    s_mul_i32 s99, s{sC}, 3
    s_add_u32 s97, s97, s99
    s_cmp_ge_u32 s97, 11
    s_cselect_b32 s99, 11, 0
    s_sub_u32 s97, s97, s99
    s_add_u32 s99, s{sT3}, s{sT2}
    s_and_b32 s99, s99, 3""")
    stamp(p, 0)
    if "fonly" in OPT:
        p.I("s_waitcnt lgkmcnt(0)")
        stamp(p, -1)
        srd(p, SW, P_WS, WS_USED)
        p.I(f"s_mov_b32 s{sTAG}, 0\ns_cmp_lt_u32 s{sWV}, 4\ns_cbranch_scc1 FO_c")
        f_loader_setup(p)
        p.I("s_bitcmp1_b32 s2, 3\ns_cbranch_scc1 FO_b")
        for n in range(FPA): emit(p, f_dma(n))
        p.I("s_waitcnt vmcnt(0)\ns_barrier\ns_branch F_load")
        p.L("FO_b")
        for n in range(FPRE): emit(p, f_dma(n))
        p.I("s_waitcnt vmcnt(0)\ns_barrier\ns_branch F_load")
        p.L("FO_c")
        p.I("s_branch F_cons")
    p.I(f"""s_bitcmp1_b32 s2, 3
    s_cbranch_scc1 B_entry""")
    if "noA" in OPT: p.I("s_endpgm")
    gen_A(p)
    gen_B(p)
    gen_F(p)
    p.L("L_end")
    p.I("s_endpgm")

QSLOT = 40960; QSCR = 3 * QSLOT
KA_, VA_, QA_ = 0, 49152, 98304
def gen_A(p):
    p.I(f"""s_lshr_b32 s{sT0}, s{sK}, 2
    s_lshl_b32 s{sRT}, s{sR}, 2
    s_add_u32 s{sRT}, s{sRT}, s{sT0}
    s_and_b32 s{sT0}, s{sK}, 3
    s_lshl_b32 s{sHQ}, s{sC}, 2
    s_add_u32 s{sHQ}, s{sHQ}, s{sT0}
    s_cmp_ge_u32 s{sWV}, 4
    s_cbranch_scc1 A_load""")
    if "scpf" in OPT:
        p.I(f"""s_getpc_b64 s[60:61]
        s_lshl_b32 s62, s{sK}, 2
        s_add_u32 s62, s62, s{sW4}
        s_lshl_b32 s62, s62, 7
        s_add_u32 s60, s60, s62
        s_addc_u32 s61, s61, 0""")
        for i in range(5): p.I(f"s_load_dword s{32+i}, s[60:61], {i * 8192}")
    p.I("s_branch A_cons")
    p.L("A_load")
    p.I(f"""v_lshrrev_b32 v10, 3, v1
    s_lshl_b32 s{sT0}, s{sW4}, 4
    v_add_u32 v10, s{sT0}, v10
    v_lshrrev_b32 v11, 4, v1
    v_and_b32 v12, 7, v1
    v_xor_b32 v13, v11, v12
    v_lshlrev_b32 v14, 10, v10
    s_lshl_b32 s{sT0}, s{sRT}, 17
    v_add_u32 v14, s{sT0}, v14
    v_lshl_add_u32 v2, v13, 4, v14
    v_xor_b32 v3, 64, v2
    v_add_u32 v3, {8*1024 - 1024}, v3
    v_and_b32 v11, 1, v11
    v_lshlrev_b32 v11, 2, v11
    v_xor_b32 v13, v11, v12
    v_mul_u32_u24 v14, 3072, v10
    s_lshl_b32 s{sT0}, s{sHQ}, 7
    v_add_u32 v14, s{sT0}, v14
    v_lshl_add_u32 v4, v13, 4, v14
    v_add_u32 v5, {8*3072 - 1024}, v4
    s_lshl_b32 s{sM0}, s{sW4}, 11
    s_waitcnt lgkmcnt(0)""")
    srd(p, SA, P_X, 0x200000); srd(p, SB, P_WQKV, 0x180000)
    if "rotq" in OPT: p.I(f"s_add_u32 s98, s{sRT}, s{sHQ}\ns_and_b32 s98, s98, 3\ns_lshl_b32 s98, s98, 1")
    else: p.I("s_mov_b32 s98, 0")
    def qdma(t):
        L = [f"s_lshl_b32 s{sT2}, s98, 7", f"s_mul_i32 s{sT3}, s98, 196608", "s_add_u32 s98, s98, 1", "s_and_b32 s98, s98, 7"]
        for b in range(5):
            L.append(f"s_add_u32 m0, s{sM0}, {(t % 3) * QSLOT + b * 8192}")
            L.append(f"s_add_u32 s{sOF}, s{sT2}, {b * 65536}" if b < 2 else f"s_add_u32 s{sOF}, s{sT3}, {(b - 2) * 1024}")
            v, s_ = (2, SA) if b < 2 else (4, SB)
            nt = " nt" if t >= opt("qnt", 99) else ""
            L.append(f"buffer_load_dwordx4 v{v}, {sr(s_,4)}, s{sOF} offen{nt} lds")
            L.append(f"buffer_load_dwordx4 v{v+1}, {sr(s_,4)}, s{sOF} offen offset:1024{nt} lds")
        return L
    emit(p, qdma(0) + qdma(1))
    stamp(p, 1)
    get_tag(p)
    srd(p, SW, P_WS, WS_USED)
    f_loader_setup(p)
    fin_tag(p)
    APF = [int(c) for c in str(opt("apf", 0))] if opt("apf", 0) else []
    HPF = [int(c) for c in str(opt("hpf", 0))] if opt("hpf", 0) else []
    if APF:
        p.I(f"""s_mov_b32 s32, s{P_W1}
        s_mov_b32 s33, s{P_W1+1}
        s_mov_b32 s34, {2048*2752}
        s_mov_b32 s35, 0x00020000
        s_lshl_b32 s{sT0}, s{sK}, 2
        s_add_u32 s{sT0}, s{sT0}, s{sW4}
        s_lshl_b32 s{sT0}, s{sT0}, 4
        s_add_u32 s{sT0}, s{sT0}, 1024
        v_lshrrev_b32 v16, 3, v1
        v_add_u32 v16, s{sT0}, v16
        v_mul_u32_u24 v16, 2752, v16
        v_and_b32 v17, 7, v1
        v_min_u32 v17, 6, v17
        v_lshl_add_u32 v16, v17, 7, v16
        s_mul_i32 s36, s{sR}, 768
        s_add_u32 s37, s36, {8*2752}""")
    if HPF:
        p.I(f"""s_lshl_b32 s{sT0}, s{sK}, 2
        s_add_u32 s{sT0}, s{sT0}, s{sW4}
        s_and_b32 s38, s{sT0}, 7
        s_lshl_b32 s38, s38, 17
        s_lshr_b32 s{sT0}, s{sT0}, 3
        s_lshl_b32 s{sT0}, s{sT0}, 13
        s_add_u32 s38, s38, s{sT0}
        s_lshl_b32 s{sT0}, s{sC}, 20
        s_add_u32 s38, s38, s{sT0}
        s_add_u32 s38, s38, {HF + 65536}
        v_lshlrev_b32 v19, 7, v1""")
    q = VQ(p); q.add("S0", 10); q.add("S1", 10)
    for t in range(8):
        q.wait(f"S{t}")
        p.I("s_barrier")
        if t + 2 < 8: emit(p, qdma(t + 2)); q.add(f"S{t+2}", 10)
        for i, tt in enumerate(APF):
            if tt == t: p.I(f"buffer_load_dword v251, v16, s[32:35], s{36+i} offen"); q.add("PF")
        if t in HPF: p.I(f"buffer_load_dword v251, v19, {sr(SW,4)}, s38 offen sc1"); q.add("PF")
    stamp(p, 2)
    p.I("s_barrier")
    p.I("s_branch A_attn")
    p.L("A_cons")
    if "nocpf" not in OPT:
        p.I("s_getpc_b64 s[86:87]")
        p.L("A_pc")
        p.I(f"""s_sub_u32 s86, s86, A_pc-{NAME}
        s_subb_u32 s87, s87, 0
        v_lshlrev_b32 v22, 7, v0
        v_add_u32 v21, 0x8000, v22
        v_min_u32 v21, CODE_END-{NAME}-4, v21
        global_load_dword v22, v22, s[86:87]
        global_load_dword v21, v21, s[86:87]""")
    XA, WA = [[2, 3, 4, 5], [6, 7, 8, 9]], [[10, 11], [12, 13]]
    p.I(f"""s_and_b32 s{sA}, s{sW4}, 1
    s_lshr_b32 s{sB}, s{sW4}, 1
    v_lshrrev_b32 v23, 5, v1
    v_and_b32 v24, 31, v1
    v_bfe_u32 v26, v1, 1, 3
    v_xor_b32 v26, v26, v23
    s_lshl_b32 s{sT0}, s{sA}, 13
    v_lshlrev_b32 v27, 7, v24
    v_add_u32 v27, s{sT0}, v27""")
    for pp in range(4):
        p.I(f"""s_xor_b32 s{sT0}, s{sA}, {pp}
        s_lshl_b32 s{sT0}, s{sT0}, 1
        v_xor_b32 v28, s{sT0}, v26
        v_lshl_add_u32 v{XA[0][pp]}, v28, 4, v27
        v_add_u32 v{XA[1][pp]}, 0x10000, v{XA[0][pp]}""")
    p.I(f"""v_bfe_u32 v26, v1, 2, 2
    v_lshl_add_u32 v27, v23, 3, v26
    v_lshlrev_b32 v27, 7, v27
    v_bfe_u32 v28, v1, 4, 1
    v_lshlrev_b32 v28, 1, v28
    v_bfe_u32 v29, v1, 1, 1
    v_add_u32 v28, v28, v29
    s_lshl_b32 s{sT0}, s{sB}, 2
    v_add_u32 v28, s{sT0}, v28
    v_bfe_u32 v29, v1, 3, 1
    v_lshlrev_b32 v29, 2, v29
    v_xor_b32 v28, v28, v29
    v_lshl_add_u32 v27, v28, 4, v27
    v_and_b32 v29, 1, v1
    v_lshl_add_u32 v27, v29, 3, v27
    s_lshl_b32 s{sT0}, s{sA}, 11
    v_add_u32 v10, s{sT0}, v27
    v_xor_b32 v11, 2048, v10
    v_add_u32 v12, 0x10000, v10
    v_add_u32 v13, 0x10000, v11
    v_and_b32 v26, 15, v1
    v_bfe_u32 v27, v1, 4, 1
    v_cmp_eq_u32 vcc, v26, v27
    v_mov_b32 v28, 0x3f803f80
    v_cndmask_b32 v28, 0, v28, vcc
    v_mov_b32 v29, v28
    v_mov_b32 v30, v28
    v_mov_b32 v31, v28
    s_mul_i32 s{sT0}, s{sW4}, 384
    s_add_u32 s{sT0}, s{sT0}, {QSCR}
    v_lshl_add_u32 v14, v1, 2, s{sT0}
    s_mul_i32 s{sT0}, s{sB}, 768
    s_add_u32 s{sT0}, s{sT0}, {QSCR}
    v_lshl_add_u32 v15, v23, 4, s{sT0}
    v_lshl_add_u32 v16, v24, 2, s{sT0}
    s_lshl_b32 s{sT0}, s{sW4}, 9
    s_add_u32 s{sT0}, s{sT0}, {QSCR + 1536}
    v_lshl_add_u32 v17, v1, 2, s{sT0}
    v_lshl_add_u32 v18, v23, 4, s{sT0}
    v_lshl_add_u32 v25, v24, 2, s{sT0}
    s_lshl_b32 s{sT0}, s{sRT}, 7
    s_lshl_b32 s{sT1}, s{sA}, 6
    s_add_u32 s{sT0}, s{sT0}, s{sT1}
    s_lshl_b32 s{sT0}, s{sT0}, 4
    s_add_u32 s{sT0}, s{sT0}, {ST}
    v_lshl_add_u32 v19, v1, 4, s{sT0}
    s_waitcnt lgkmcnt(0)""")
    get_tag(p)
    srd(p, SW, P_WS, WS_USED)
    fin_tag(p)
    ACC = {("q", 0): 32, ("q", 1): 48, ("k", 0): 64, ("k", 1): 80, ("v", 0): 96, ("v", 1): 112}
    CS, FB = 128, 140
    def reads(g):
        t, pp = g >> 2, g & 3
        o = (t % 3) * QSLOT; b = FB + 20 * (g % 3)
        L = [f"ds_read_b128 {vr(b+4*rb,4)}, " + lds_ref([XA[0][pp], XA[1][pp]], o + rb * 4096) for rb in range(2)]
        for seg in range(3):
            for tt in range(2):
                L.append(f"ds_read_b64_tr_b16 {vr(b+8+4*seg+2*tt,2)}, " + lds_ref([WA[0][pp & 1], WA[1][pp & 1]], o + 16384 + seg * 8192 + (pp >> 1) * 4096 + tt * 512))
        return L
    def mfmas(g):
        b = FB + 20 * (g % 3); z = g == 0
        big = []
        for seg, nm in enumerate("qkv"):
            for rb in range(2):
                a = vr(ACC[(nm, rb)], 16); X = vr(b + 4 * rb, 4); W = vr(b + 8 + 4 * seg, 4)
                ops = (X, W) if nm == "v" else (W, X)
                big.append(f"{MFMA} {a}, {ops[0]}, {ops[1]}, {'0' if z else a}")
        small = []
        if g % 2 == 0:
            for seg in range(3):
                c = vr(CS + 4 * seg, 4)
                small.append(f"{MFMA16} {c}, v[28:31], {vr(b+8+4*seg,4)}, {'0' if z else c}")
        return big, small
    GR = 200
    stamp(p, 1)
    p.I("s_barrier")
    emit(p, reads(0) + reads(1))
    stamp(p, 2)
    for g in range(32):
        big, small = mfmas(g)
        M = (small + big) if g == 30 else (big + small)
        nxt = g + 2
        if g == 24: p.I(f"buffer_load_dwordx4 {vr(GR,4)}, v19, {sr(SW,4)}, 0 offen sc1")
        if nxt < 32:
            p.I("s_waitcnt lgkmcnt(8)")
            if nxt % 4 == 0:
                emit(p, M[:2])
                p.I("s_waitcnt lgkmcnt(0)")
                p.I("s_barrier")
                emit(p, interleave(M[2:], reads(nxt), upto=4))
            else:
                emit(p, interleave(M, reads(nxt), upto=5))
        elif g == 30:
            p.I("s_waitcnt lgkmcnt(0)")
            emit(p, M[:6])
            p.I("s_mov_b64 exec, 0xffff")
            for seg in range(3):
                p.I(f"ds_write_b32 v14, v{CS+4*seg} offset:{seg*128}")
                p.I(f"ds_write_b32 v14, v{CS+4*seg+1} offset:{seg*128+64}")
            p.I("s_mov_b64 exec, -1")
            emit(p, M[6:])
        else:
            emit(p, M[:2])
            p.I("s_waitcnt vmcnt(0)")
            if "nopoll" not in OPT:
                p.I(f"""v_cmp_ne_u32 vcc, s{sTAG}, v{GR+2}
                s_mov_b32 s{sSPIN}, 0
                s_cbranch_vccz A_st_ok""")
                p.L("A_st_spin")
                p.I(f"""buffer_load_dwordx4 {vr(GR,4)}, v19, {sr(SW,4)}, 0 offen sc1
                s_add_u32 s{sSPIN}, s{sSPIN}, 1
                s_waitcnt vmcnt(0)
                v_cmp_ne_u32 vcc, s{sTAG}, v{GR+2}
                s_cmp_ge_u32 s{sSPIN}, {SPIN_MAX}
                s_cbranch_scc1 A_st_ok
                s_cbranch_vccnz A_st_spin""")
                p.L("A_st_ok")
            p.I(f"""ds_write_b32 v17, v{GR}
            ds_write_b32 v17, v{GR+1} offset:256
            s_waitcnt lgkmcnt(0)
            s_barrier""")
            emit(p, M[2:])
    stamp(p, 3)
    CQ, CK, C2, NM, RS = 204, 220, 140, 156, 172
    for k in range(4): p.I(f"ds_read_b128 {vr(CK+4*k,4)}, v15 offset:{128+k*32}")
    for k in range(4): p.I(f"ds_read_b128 {vr(C2+4*k,4)}, v15 offset:{384+128+k*32}")
    p.I("""ds_read_b32 v2, v25
    ds_read_b32 v4, v25 offset:256
    ds_read_b32 v6, v25 offset:128
    ds_read_b32 v8, v25 offset:384
    ds_read_b32 v10, v16 offset:256
    ds_read_b32 v11, v16 offset:640""")
    p.I(f"""s_lshl_b32 s{sT0}, s{sHQ}, 1
    s_add_u32 s{sT0}, s{sT0}, s{sB}
    s_lshl_b32 s{sT1}, s{sRT}, 2
    s_lshl_b32 s{sT2}, s{sA}, 1
    s_add_u32 s{sT1}, s{sT1}, s{sT2}
    s_lshl_b32 s{sT2}, s{sT0}, 17
    s_lshl_b32 s{sT3}, s{sT1}, 10
    s_add_u32 s{sT3}, s{sT3}, s{sT2}
    s_add_u32 s{sT3}, s{sT3}, {KF}
    v_lshl_add_u32 v20, v1, 4, s{sT3}
    s_lshl_b32 s{sT3}, s{sT1}, 11
    s_add_u32 s{sT3}, s{sT3}, s{sT2}
    s_add_u32 s{sT3}, s{sT3}, {VF}
    v_lshl_add_u32 v21, v1, 4, s{sT3}
    s_lshl_b32 s{sT0}, s{sT0}, 6
    s_add_u32 s{sT0}, s{sT0}, s{sT1}
    s_lshl_b32 s{sT0}, s{sT0}, 6
    s_add_u32 s{sT0}, s{sT0}, {FK}
    v_mov_b32 v22, s{sT0}
    s_mul_i32 s{sT0}, s{sB}, 24576
    s_lshl_b32 s{sT1}, s{sA}, 11
    s_add_u32 s{sT2}, s{sT0}, s{sT1}
    s_add_u32 s{sT2}, s{sT2}, {KA_ + 8192}
    v_lshl_add_u32 v26, v1, 4, s{sT2}
    s_lshl_b32 s{sT2}, s{sA}, 12
    s_add_u32 s{sT2}, s{sT2}, s{sT0}
    s_add_u32 s{sT2}, s{sT2}, {VA_ + 16384}
    v_lshl_add_u32 v27, v1, 4, s{sT2}
    s_lshl_b32 s{sT2}, s{sB}, 13
    s_add_u32 s{sT2}, s{sT2}, s{sT1}
    s_add_u32 s{sT2}, s{sT2}, {QA_}
    v_lshl_add_u32 v28, v1, 4, s{sT2}
    s_mov_b32 s{sOF}, 65536
    v_mov_b32 v29, s{sTAG}
    s_waitcnt lgkmcnt(0)""")
    for k in range(4): p.I(f"ds_read_b128 {vr(NM+4*k,4)}, v18 offset:{k*32}")
    for k in range(4): p.I(f"ds_read_b128 {vr(RS+4*k,4)}, v18 offset:{256+k*32}")
    for i in range(8): p.I(f"v_pk_add_f32 {vr(CK+2*i,2)}, {vr(CK+2*i,2)}, {vr(C2+2*i,2)}")
    p.I("v_add_f32 v10, v10, v11")
    def qk(acc, cs, nm, rs):
        for i in range(8): p.I(f"v_pk_fma_f32 {vr(acc+2*i,2)}, {vr(cs+2*i,2)}, {vr(nm,2)}, {vr(acc+2*i,2)} op_sel_hi:[1,0,1]")
        for i in range(8): p.I(f"v_pk_mul_f32 {vr(acc+2*i,2)}, {vr(acc+2*i,2)}, {vr(rs,2)} op_sel_hi:[1,0]")
        for i in range(8): p.I(f"v_cvt_pk_bf16_f32 v{acc+i}, v{acc+2*i}, v{acc+2*i+1}")
    def vv(acc):
        for i in range(8): p.I(f"v_pk_fma_f32 {vr(acc+2*i,2)}, {vr(NM+2*i,2)}, v[10:11], {vr(acc+2*i,2)} op_sel_hi:[1,0,1]")
        for i in range(8): p.I(f"v_pk_mul_f32 {vr(acc+2*i,2)}, {vr(acc+2*i,2)}, {vr(RS+2*i,2)}")
        for i in range(8): p.I(f"v_cvt_pk_bf16_f32 v{acc+i}, v{acc+2*i}, v{acc+2*i+1}")
    for rb in range(2):
        a = ACC[("k", rb)]
        qk(a, CK, 2 + 4 * rb, 4 + 4 * rb)
        p.I(f"buffer_store_dwordx4 {vr(a,4)}, v20, {sr(SW,4)}, 0 offen offset:{rb*1024} sc1")
        p.I(f"buffer_store_dwordx4 {vr(a+4,4)}, v20, {sr(SW,4)}, s{sOF} offen offset:{rb*1024} sc1")
    for rb in range(2):
        a = ACC[("v", rb)]
        p.I("s_waitcnt lgkmcnt(0)")
        vv(a)
        if rb == 0:
            for k in range(4): p.I(f"ds_read_b128 {vr(NM+4*k,4)}, v18 offset:{128+k*32}")
            for k in range(4): p.I(f"ds_read_b128 {vr(RS+4*k,4)}, v18 offset:{384+k*32}")
        else:
            for k in range(4): p.I(f"ds_read_b128 {vr(CQ+4*k,4)}, v15 offset:{k*32}")
            for k in range(4): p.I(f"ds_read_b128 {vr(C2+4*k,4)}, v15 offset:{384+k*32}")
        p.I(f"buffer_store_dwordx4 {vr(a,4)}, v21, {sr(SW,4)}, 0 offen offset:{rb*2048} sc1")
        p.I(f"buffer_store_dwordx4 {vr(a+4,4)}, v21, {sr(SW,4)}, 0 offen offset:{rb*2048+1024} sc1")
        if rb == 0:
            for r2 in range(2):
                k_ = ACC[("k", r2)]
                p.I(f"ds_write_b128 v26, {vr(k_,4)} offset:{r2*1024}")
                p.I(f"ds_write_b128 v26, {vr(k_+4,4)} offset:{12288+r2*1024}")
    for r2 in range(2):
        a = ACC[("v", r2)]
        p.I(f"ds_write_b128 v27, {vr(a,4)} offset:{r2*2048}")
        p.I(f"ds_write_b128 v27, {vr(a+4,4)} offset:{r2*2048+1024}")
    p.I(f"""v_mul_f32 v4, {f32(0.25*LOG2E)}, v4
    v_mul_f32 v8, {f32(0.25*LOG2E)}, v8
    s_waitcnt lgkmcnt(4)""")
    for i in range(8): p.I(f"v_pk_add_f32 {vr(CQ+2*i,2)}, {vr(CQ+2*i,2)}, {vr(C2+2*i,2)}")
    for rb in range(2):
        a = ACC[("q", rb)]
        qk(a, CQ, 2 + 4 * rb, 4 + 4 * rb)
        p.I(f"ds_write_b128 v28, {vr(a,4)} offset:{rb*1024}")
        p.I(f"ds_write_b128 v28, {vr(a+4,4)} offset:{4096+rb*1024}")
    p.I("v_mov_b32 v252, v22\nv_mov_b32 v253, v29")
    stamp(p, 4)
    p.L("A_attn")
    if "noattn" in OPT:
        stamp_out(p, 14); p.I("s_endpgm")
    sHP, sTB, sNB, sNB1, sHB, sQB = sA, sB, sOF, sM0, 8, 9
    p.I(f"""v_lshlrev_b32 v3, 4, v1
    s_lshr_b32 s{sHP}, s{sW4}, 1
    s_and_b32 s{sQB}, s{sWV}, 1
    s_cmp_lt_u32 s{sWV}, 4
    s_cselect_b32 s{sT0}, 2, 0
    s_add_u32 s{sQB}, s{sQB}, s{sT0}
    s_lshl_b32 s{sTB}, s{sRT}, 2
    s_add_u32 s{sTB}, s{sTB}, s{sQB}
    s_min_u32 s{sNB}, s{sTB}, 8
    s_mov_b32 s{sNB1}, {'s%d' % sNB if 'truemax' in OPT else 0}
    v_and_b32 v4, 31, v1
    v_lshrrev_b32 v5, 5, v1
    v_lshlrev_b32 v5, 2, v5
    v_sub_u32 v4, v4, v5""")
    msk = lambda r: f"s[{32+2*r}:{33+2*r}]"
    for r in range(16): p.I(f"v_cmp_le_i32 {msk(r)}, {(r & 3) + 8 * (r >> 2)}, v4")
    p.I(f"""v_mov_b32 v6, {f32(-1e30)}
    s_mul_i32 s{sT0}, s{sHP}, 24576
    s_lshl_b32 s{sT1}, s{sQB}, 10
    s_add_u32 s{sT2}, s{sT0}, s{sT1}
    v_add_u32 v4, s{sT2}, v3
    s_add_u32 s{sT2}, s{sT2}, s{sT1}
    s_add_u32 s{sT2}, s{sT2}, {VA_}
    v_add_u32 v5, s{sT2}, v3
    s_lshl_b32 s{sT2}, s{sHP}, 13
    s_add_u32 s{sT2}, s{sT2}, s{sT1}
    s_add_u32 s{sT2}, s{sT2}, {QA_}
    v_add_u32 v7, s{sT2}, v3
    s_mov_b32 s4, 0x0000ffff
    s_mov_b32 s5, 0x0000ffff
    s_mov_b32 s6, 0xffff0000
    s_mov_b32 s7, 0xffff0000""")
    for r in range(176, 208): p.I(f"v_mov_b32 v{r}, 0x3f803f80")
    p.I("s_waitcnt lgkmcnt(0)")
    p.I("s_barrier")
    stamp(p, 5)
    p.I("ds_read_b128 v[8:11], v7\nds_read_b128 v[12:15], v7 offset:4096")
    p.I(f"""s_mov_b32 s{sHB}, 99
    s_cmp_ge_u32 s{sWV}, 4
    s_cbranch_scc1 A_halo
    s_waitcnt vmcnt(0)
    s_mov_b64 exec, 1
    buffer_store_dword v253, v252, {sr(SW,4)}, 0 offen sc1
    s_mov_b64 exec, -1
    s_cmp_eq_u32 s{sRT}, 0
    s_cbranch_scc1 A_h_done""")
    if "noearly" in OPT or "truemax" in OPT: p.I("s_branch A_h_done")
    p.I(f"""s_mov_b32 s{sHB}, s{sQB}
    s_branch A_p1""")
    p.L("A_halo")
    p.I(f"""s_cmp_eq_u32 s{sRT}, 0
    s_cbranch_scc1 A_h_done
    s_lshl_b32 s{sT1}, s{sHQ}, 1
    s_add_u32 s{sT1}, s{sT1}, s{sHP}
    s_lshl_b32 s{sT2}, s{sRT}, 2
    s_lshl_b32 s{sT3}, s{sT1}, 6
    s_add_u32 s{sT3}, s{sT3}, s{sT2}
    s_lshl_b32 s{sT3}, s{sT3}, 6
    s_add_u32 s{sT3}, s{sT3}, {FK - 512}
    v_lshl_add_u32 v2, v1, 7, s{sT3}
    s_cmp_eq_u32 s{sRT}, 1
    s_cselect_b32 exec_lo, 12, 15
    s_mov_b32 exec_hi, 0""")
    if opt("kd", 0): p.I(f"s_sleep {opt('kd', 0)}")
    poll(p, "A_pollk", 2, 16, 1, opt("ksl", 2))
    p.I(f"""s_lshl_b32 s{sT1}, s{sT1}, 17
    s_lshl_b32 s{sT0}, s{sQB}, 16
    s_add_u32 s{sT0}, s{sT0}, s{sT1}
    s_lshl_b32 s{sT2}, s{sRT}, 12
    s_add_u32 s{sT0}, s{sT0}, s{sT2}
    s_add_u32 s{sT0}, s{sT0}, {KF - 8192}
    s_mul_i32 s{sT3}, s{sW4}, 12288""")
    def halo8():
        for hf in range(2):
            p.I(f"s_add_u32 m0, s{sT3}, {hf*4096}")
            if hf: p.I(f"s_add_u32 s{sT0}, s{sT0}, 4096")
            for u in range(4): p.I(f"buffer_load_dwordx4 v3, {sr(SW,4)}, s{sT0} offen offset:{u*1024} sc1 lds")
    halo8()
    p.I(f"""s_lshl_b32 s{sT3}, s{sQB}, 13
    s_add_u32 s{sT0}, s{sT1}, s{sT3}
    s_lshl_b32 s{sT2}, s{sRT}, 13
    s_add_u32 s{sT0}, s{sT0}, s{sT2}
    s_add_u32 s{sT0}, s{sT0}, {VF - 16384}
    s_mul_i32 s{sT2}, s{sHP}, 24576
    s_add_u32 s{sT3}, s{sT3}, s{sT2}
    s_add_u32 s{sT3}, s{sT3}, {VA_}""")
    halo8()
    p.L("A_h_done")
    p.I("s_waitcnt vmcnt(0) lgkmcnt(0)")
    p.I("s_barrier")
    stamp(p, 6)
    p.I(f"s_cmp_lt_u32 s{sWV}, 4\ns_cbranch_scc1 A_p1")
    for n in range(FPA): emit(p, f_dma(n))
    if "aprio" in OPT: p.I("s_setprio 1")
    NA, NB, OA, OB = 16, 32, 48, 64
    SBUF = [[80, 96], [112, 128]]; KR = [[144, 148], [152, 156]]; PR = [160, 168]; VR = [176, 192]
    kread = lambda jb, s: [f"ds_read_b128 {vr(KR[s][0],4)}, v4 offset:{jb*1024}", f"ds_read_b128 {vr(KR[s][1],4)}, v4 offset:{12288+jb*1024}"]
    smm = lambda s, cA, cB: [f"{MFMA} {vr(SBUF[s][0],16)}, {vr(KR[s][0],4)}, v[8:11], {cA}", f"{MFMA} {vr(SBUF[s][1],16)}, {vr(KR[s][1],4)}, v[12:15], {cB}"]
    def maxes(s):
        L = []
        for i in range(8):
            L.append(f"v_max3_f32 v208, v{SBUF[s][0]+2*i}, v{SBUF[s][0]+2*i+1}, v208")
            L.append(f"v_max3_f32 v209, v{SBUF[s][1]+2*i}, v{SBUF[s][1]+2*i+1}, v209")
        return L
    p.L("A_p1")
    emit(p, kread(8, 0) + kread(7, 1))
    for r in range(16): p.I(f"v_cndmask_b32 v{NA+r}, v6, 0, {msk(r)}")
    p.I("v_mov_b32 v208, v6\nv_mov_b32 v209, v6")
    p.I("s_waitcnt lgkmcnt(0)")
    emit(p, smm(0, vr(NA,16), vr(NA,16)))
    for r in range(OA, OB + 16): p.I(f"v_mov_b32 v{r}, 0")
    for n in range(8):
        s = n & 1
        p.I(f"s_cmp_lt_u32 s{sNB1}, {n+1}\ns_cbranch_scc1 A_p1_last{s}")
        if n + 1 == 8:
            for r in range(16): p.I(f"v_cndmask_b32 v{NB+r}, 0, v6, {msk(r)}")
        p.I("s_waitcnt lgkmcnt(0)")
        c = vr(NB,16) if n + 1 == 8 else "0"
        emit(p, smm(s ^ 1, c, c))
        if n + 2 <= 8: emit(p, kread(8 - (n + 2), s))
        emit(p, maxes(s))
    p.I("s_nop 7\ns_nop 3")
    p.I("s_branch A_p1_last0")
    p.L("A_p1_last1")
    p.I("s_nop 7\ns_nop 3")
    emit(p, maxes(1))
    p.I("s_branch A_p1_done")
    p.L("A_p1_last0")
    emit(p, maxes(0))
    p.L("A_p1_done")
    p.I("s_waitcnt lgkmcnt(0)")
    stamp(p, 7)
    vread = lambda jb, s: ["s_mov_b64 exec, s[4:5]",
                f"ds_read_b128 {vr(VR[s],4)}, v5 offset:{jb*2048}", f"ds_read_b128 {vr(VR[s]+4,4)}, v5 offset:{jb*2048+1024}",
                "s_mov_b64 exec, s[6:7]",
                f"ds_read_b128 {vr(VR[s]+8,4)}, v5 offset:{jb*2048}", f"ds_read_b128 {vr(VR[s]+12,4)}, v5 offset:{jb*2048+1024}",
                "s_mov_b64 exec, -1"]
    emit(p, kread(8, 0) + kread(7, 1) + vread(8, 0))
    p.I("""v_mov_b32 v210, v208
    v_mov_b32 v211, v209
    v_permlane32_swap_b32 v208, v210
    v_permlane32_swap_b32 v209, v211
    v_max_f32 v208, v208, v210
    v_max_f32 v209, v209, v211
    v_sub_f32 v208, 0, v208
    v_sub_f32 v209, 0, v209""")
    for r in range(16):
        p.I(f"v_cndmask_b32 v{SBUF[0][0]+r}, v6, v208, {msk(r)}")
        p.I(f"v_cndmask_b32 v{SBUF[0][1]+r}, v6, v209, {msk(r)}")
    p.I("s_waitcnt lgkmcnt(0)")
    emit(p, smm(0, vr(SBUF[0][0],16), vr(SBUF[0][1],16)))
    for r in range(16):
        p.I(f"v_mov_b32 v{NA+r}, v208")
        p.I(f"v_mov_b32 v{NB+r}, v209")
    def softp(s, hd):
        S = SBUF[s][hd]; P = PR[hd]; V = VR[s] + 8 * hd; O = (OA, OB)[hd]
        L = [f"v_exp_f32 v{S+i}, v{S+i}" for i in range(8)]
        L += [f"v_cvt_pk_bf16_f32 v{P+i}, v{S+2*i}, v{S+2*i+1}" for i in range(4)]
        L += [f"v_exp_f32 v{S+i}, v{S+i}" for i in range(8, 10)]
        L += [f"{MFMA} {vr(O,16)}, {vr(V,4)}, {vr(P,4)}, {vr(O,16)}"]
        L += [f"v_exp_f32 v{S+i}, v{S+i}" for i in range(10, 16)]
        L += [f"v_cvt_pk_bf16_f32 v{P+i}, v{S+2*i}, v{S+2*i+1}" for i in range(4, 8)]
        return L, [f"{MFMA} {vr(O,16)}, {vr(V+4,4)}, {vr(P+4,4)}, {vr(O,16)}"]
    def soft(s):
        a, a2 = softp(s, 0); b, b2 = softp(s, 1)
        return a + b[:2] + a2 + b[2:] + b2
    for n in range(8):
        s = n & 1
        if n in (3, 4): p.L(f"A_p2_it{n}")
        p.I(f"s_cmp_lt_u32 s{sNB}, {n+1}\ns_cbranch_scc1 A_p2_last{s}")
        if n in (2, 3): p.I(f"s_cmp_eq_u32 s{sHB}, {n}\ns_cbranch_scc1 A_p2_hw{n}")
        if n + 1 == 8:
            for r in range(16):
                p.I(f"v_cndmask_b32 v{NA+r}, v208, v6, {msk(r)}")
                p.I(f"v_cndmask_b32 v{NB+r}, v209, v6, {msk(r)}")
        p.I("s_waitcnt lgkmcnt(0)")
        emit(p, smm(s ^ 1, vr(NA,16), vr(NB,16)))
        if n + 2 <= 8: emit(p, kread(8 - (n + 2), s))
        emit(p, vread(8 - (n + 1), s ^ 1))
        emit(p, soft(s))
    p.L("A_p2_last0")
    p.I("s_waitcnt lgkmcnt(0)\ns_nop 7\ns_nop 3")
    emit(p, soft(0))
    p.I("s_branch A_p2_done")
    for n in (2, 3):
        s = n & 1
        p.L(f"A_p2_hw{n}")
        p.I("s_waitcnt lgkmcnt(0)")
        emit(p, soft(s))
        p.I("s_barrier")
        stamp(p, 6)
        emit(p, kread(8 - (n + 1), s ^ 1) + kread(8 - (n + 2), s) + vread(8 - (n + 1), s ^ 1))
        p.I("s_waitcnt lgkmcnt(6)")
        emit(p, smm(s ^ 1, vr(NA,16), vr(NB,16)))
        p.I(f"s_branch A_p2_it{n+1}")
    p.L("A_p2_last1")
    p.I("s_waitcnt lgkmcnt(0)\ns_nop 7\ns_nop 3")
    emit(p, soft(1))
    p.L("A_p2_done")
    p.I(f"""s_lshl_b32 s{sT0}, s{sHQ}, 1
    s_add_u32 s{sT0}, s{sT0}, s{sHP}
    s_lshl_b32 s{sT1}, s{sTB}, 15
    s_lshl_b32 s{sT2}, s{sT0}, 11
    s_add_u32 s{sT1}, s{sT1}, s{sT2}
    s_add_u32 s{sT1}, s{sT1}, {OF}
    v_add_u32 v2, s{sT1}, v3
    s_lshl_b32 s{sT1}, s{sTB}, 4
    s_add_u32 s{sT1}, s{sT1}, s{sT0}
    s_lshl_b32 s{sT1}, s{sT1}, 7
    s_add_u32 s{sT1}, s{sT1}, {FO}
    v_mov_b32 v210, {f32(2.0**64)}
    v_max_f32 v211, v{OA+8}, v{OB}
    v_add_f32 v209, v{OA+8}, v{OB}
    v_cmp_u_f32 vcc, v209, v209
    v_cmp_ngt_f32 s[10:11], v210, v211
    s_or_b64 vcc, vcc, s[10:11]
    s_cbranch_vccz A_fin
    s_cmp_eq_u32 s{sNB1}, s{sNB}
    s_cbranch_scc1 A_fin
    s_mov_b32 s{sNB1}, s{sNB}
    s_mov_b32 s{sHB}, 99
    s_branch A_p1""")
    p.L("A_fin")
    p.I(f"""v_mov_b32 v4, s{sT1}
    v_mov_b32 v5, s{sTAG}
    v_rcp_f32 v208, v{OA+8}
    v_rcp_f32 v210, v{OB}""")
    for i in range(4): p.I(f"v_pk_mul_f32 {vr(OA+2*i,2)}, {vr(OA+2*i,2)}, v[208:209] op_sel_hi:[1,0]")
    for i in range(4): p.I(f"v_pk_mul_f32 {vr(OB+8+2*i,2)}, {vr(OB+8+2*i,2)}, v[210:211] op_sel_hi:[1,0]")
    for i in range(4): p.I(f"v_cvt_pk_bf16_f32 v{160+i}, v{OA+2*i}, v{OA+2*i+1}")
    for i in range(4): p.I(f"v_cvt_pk_bf16_f32 v{164+i}, v{OB+8+2*i}, v{OB+8+2*i+1}")
    p.I(f"""buffer_store_dwordx4 v[160:163], v2, {sr(SW,4)}, 0 offen sc1
    buffer_store_dwordx4 v[164:167], v2, {sr(SW,4)}, 0 offen offset:1024 sc1""")
    stamp(p, 8)
    p.I(f"""s_waitcnt vmcnt(0)
    s_mov_b64 exec, 1
    buffer_store_dword v5, v4, {sr(SW,4)}, 0 offen sc1
    s_mov_b64 exec, -1
    s_cmp_lt_u32 s{sWV}, 4
    s_cbranch_scc0 F_load""")
    if "wpf" in OPT:
        srd(p, SB, P_W2, 1376 * 4096)
        p.I(f"""s_lshl_b32 s{sT0}, s{sK}, 2
        s_add_u32 s{sT0}, s{sT0}, s{sWV}
        v_lshrrev_b32 v250, 3, v1
        v_lshlrev_b32 v250, 12, v250
        v_and_b32 v249, 7, v1
        v_lshl_add_u32 v250, v249, 7, v250
        s_lshl_b32 s{sT1}, s{sT0}, 15
        s_lshl_b32 s{sT2}, s{sR}, 10
        s_add_u32 s{sT1}, s{sT1}, s{sT2}
        buffer_load_dword v251, v250, {sr(SB,4)}, s{sT1} offen
        s_add_u32 s{sT1}, s{sT1}, {64 << 15}
        buffer_load_dword v251, v250, {sr(SB,4)}, s{sT1} offen
        s_add_u32 s{sT1}, s{sT1}, {64 << 15}
        buffer_load_dword v251, v250, {sr(SB,4)}, s{sT1} offen""")
    p.I("s_branch F_cons2")

UBLK = opt('ublk', 8)
USLOT = 24576; UND = 6; LNP = 1088; LNS = 5 * USLOT
def gen_B(p):
    p.L("B_entry")
    if "noB" in OPT: p.I("s_endpgm")
    p.I(f"""s_lshl_b32 s{sT0}, s{sR}, 4
    s_add_u32 s{sT0}, s{sT0}, s{sK}
    s_lshr_b32 s{sFT}, s{sT0}, 2
    s_and_b32 s{sT0}, s{sT0}, 3
    s_lshl_b32 s{sDU}, s{sC}, 2
    s_add_u32 s{sDU}, s{sDU}, s{sT0}""")
    if "norot" in OPT or "norotu" in OPT: p.I("s_mov_b32 s98, 0")
    else: p.I(f"s_add_u32 s98, s{sFT}, s{sDU}\ns_and_b32 s98, s98, 3\ns_mul_i32 s98, s98, {UBLK // 4}")
    p.I(f"""s_cmp_lt_u32 s{sWV}, 4
    s_cbranch_scc1 B_cons""")
    for j in range(3):
        p.I(f"""v_add_u32 v10, {64*j}, v1
        v_mul_u32_u24 v11, 5462, v10
        v_lshrrev_b32 v11, 16, v11
        v_mul_u32_u24 v12, 12, v11
        v_sub_u32 v12, v10, v12
        s_lshl_b32 s{sT0}, s{sW4}, 5
        v_add_u32 v11, s{sT0}, v11
        v_mul_u32_u24 v11, 2752, v11
        v_lshl_add_u32 v11, v12, 4, v11
        s_mul_i32 s{sT0}, s{sFT}, 192
        s_sub_u32 s{sT0}, s{sT0}, {1024*j}
        v_add_u32 v{2+j}, s{sT0}, v11
        s_cmp_eq_u32 s{sFT}, 14
        s_cselect_b32 s{sT0}, 4, 12
        v_cmp_le_u32 vcc, s{sT0}, v12
        v_mov_b32 v13, 0x7fff0000
        v_cndmask_b32 v{2+j}, v{2+j}, v13, vcc
        v_add_u32 v{5+j}, {16*2752}, v{2+j}""")
    p.I(f"s_mul_i32 s{sM0}, s{sW4}, 6144\ns_waitcnt lgkmcnt(0)")
    srd(p, SA, P_W1, 2048 * 2752)
    srd(p, SW, P_WS, WS_USED)
    p.I(f"s_mov_b32 s{sTAG}, 0")
    def udma(n):
        L = [f"s_add_u32 m0, s{sM0}, {(n % UND) * USLOT}"]
        L += [f"s_add_u32 s{sOF}, s98, {n % UBLK}", f"s_and_b32 s{sOF}, s{sOF}, {UBLK - 1}", f"s_add_u32 s{sOF}, s{sOF}, {n - n % UBLK}", f"s_mul_i32 s{sOF}, s{sOF}, {128*2752}"]
        nt = " nt" if n >= opt("unt", 99) else ""
        L += [f"buffer_load_dwordx4 v{2+j}, {sr(SA,4)}, s{sOF} offen offset:{j*1024}{nt} lds" for j in range(3)]
        L.append(f"s_add_u32 m0, s{sM0}, {(n % UND) * USLOT + 3072}")
        L += [f"buffer_load_dwordx4 v{5+j}, {sr(SA,4)}, s{sOF} offen offset:{j*1024}{nt} lds" for j in range(3)]
        return L
    p.I(f"s_cmp_eq_u32 s{sFT}, 15\ns_cbranch_scc1 B_l_spare")
    q = VQ(p)
    UB1 = opt("ub1", 2); UB2 = opt("ub2", 6)
    p.I("s_barrier")
    for n in range(UB1): emit(p, udma(n)); q.add(f"U{n}", 6)
    stamp(p, 1)
    f_loader_setup(p)
    p.I("s_barrier")
    for n in range(UB1, UB2): emit(p, udma(n)); q.add(f"U{n}", 6)
    stamp(p, 2)
    iu = UB2; jf = 0
    def f_free(n, t):
        a, b = fslot(n), fslot(n) + 16384
        for d in range(t, 16):
            a2 = (d % UND) * USLOT
            if a < a2 + USLOT and a2 < b: return False
        return True
    jfl = [0]
    def fhook(t, done):
        while "fearly" in OPT and done and jfl[0] < FPRE and f_free(jfl[0], t):
            emit(p, f_dma(jfl[0])); q.add(f"F{jfl[0]}", 0 if "nofp" in OPT else 4); jfl[0] += 1
    paced(p, q, "U", udma, UB2, 16, UND, opt("uml", 2), fhook)
    jf = jfl[0]
    stamp(p, 3)
    p.I("s_barrier\ns_barrier\ns_barrier")
    for n in range(jf, FPRE): emit(p, f_dma(n))
    p.I("s_branch F_load")
    p.L("B_l_spare")
    stamp(p, -1)
    f_loader_setup(p)
    p.I("s_barrier\ns_barrier")
    if "nopf" not in OPT:
        p.I(f"""v_lshlrev_b32 v24, 7, v1
        s_lshl_b32 s{sT2}, s{sDU}, 2
        s_add_u32 s{sT2}, s{sT2}, s{sW4}
        s_lshl_b32 s{sOF}, s{sT2}, 14
        buffer_load_dword v30, v24, {sr(SD,4)}, s{sOF} offen
        s_add_u32 s{sOF}, s{sOF}, 8192
        buffer_load_dword v30, v24, {sr(SD,4)}, s{sOF} offen""")
    p.I("s_barrier")
    for n in range(FPRE): emit(p, f_dma(n))
    p.I("s_branch F_load")
    p.L("B_cons")
    if "cprio" in OPT: p.I("s_setprio 3")
    RAW, X, T = 32, 48, 80
    p.I(f"""s_lshl_b32 s{sT0}, s{sR}, 9
    s_lshl_b32 s{sT1}, s{sC}, 8
    s_add_u32 s{sT0}, s{sT0}, s{sT1}
    s_lshl_b32 s{sT1}, s{sK}, 4
    s_add_u32 s{sA}, s{sT0}, s{sT1}
    s_lshl_b32 s{sT1}, s{sW4}, 2
    v_lshrrev_b32 v10, 4, v1
    v_add_u32 v10, s{sT1}, v10
    v_and_b32 v11, 15, v1
    v_add_u32 v12, s{sA}, v10
    v_lshlrev_b32 v13, 10, v12
    v_lshl_add_u32 v13, v11, 4, v13
    s_waitcnt lgkmcnt(0)""")
    srd(p, SA, P_X, 0x200000)
    for k in range(4): p.I(f"buffer_load_dwordx4 {vr(RAW+4*k,4)}, v13, {sr(SA,4)}, 0 offen offset:{k*256}")
    p.I(f"v_mov_b32 v20, {LDS - 16}\nv_mov_b32 v21, 0\nds_write_b32 v20, v21\ns_waitcnt lgkmcnt(0)")
    p.I("s_barrier")
    get_tag(p)
    srd(p, SW, P_WS, WS_USED)
    p.I(f"""v_lshlrev_b32 v14, 4, v12
    v_add_u32 v14, {ST}, v14
    v_mul_u32_u24 v15, {LNP}, v10
    v_lshl_add_u32 v15, v11, 4, v15
    v_add_u32 v15, {LNS}, v15
    v_bfe_u32 v16, v1, 2, 2
    v_lshrrev_b32 v17, 5, v1
    v_lshl_add_u32 v16, v17, 3, v16
    v_mul_u32_u24 v16, {LNP}, v16
    v_bfe_u32 v17, v1, 4, 1
    v_lshl_add_u32 v16, v17, 5, v16
    v_and_b32 v17, 3, v1
    v_lshl_add_u32 v16, v17, 3, v16
    s_lshl_b32 s{sT0}, s{sW4}, 8
    s_add_u32 s{sT0}, s{sT0}, {LNS}
    v_add_u32 v16, s{sT0}, v16
    s_lshl_b32 s{sT0}, s{sW4}, 19
    s_lshl_b32 s{sT1}, s{sA}, 6
    s_add_u32 s{sT0}, s{sT0}, s{sT1}
    s_add_u32 s{sT0}, s{sT0}, {HF}
    v_lshl_add_u32 v17, v1, 4, s{sT0}
    s_lshl_b32 s{sT0}, s{sW4}, 14
    s_lshr_b32 s{sT1}, s{sA}, 5
    s_lshl_b32 s{sT1}, s{sT1}, 7
    s_add_u32 s{sT0}, s{sT0}, s{sT1}
    s_and_b32 s{sT1}, s{sA}, 16
    s_lshl_b32 s{sT1}, s{sT1}, 9
    s_add_u32 s{sT0}, s{sT0}, s{sT1}
    s_add_u32 s{sT0}, s{sT0}, {FH}
    v_mov_b32 v18, s{sT0}""")
    fin_tag(p)
    def red16(v): return [dpp_add(v, m) for m in ("quad_perm:[1,0,3,2]", "quad_perm:[2,3,0,1]", "row_half_mirror", "row_mirror")]
    def ln(first, closed=False):
        for i in range(16):
            p.I(f"v_lshlrev_b32 v{X+2*i}, 16, v{RAW+i}\nv_and_b32 v{X+2*i+1}, 0xffff0000, v{RAW+i}")
        for i in range(4): p.I(f"v_pk_add_f32 {vr(T+2*i,2)}, {vr(X+4*i,2)}, {vr(X+4*i+2,2)}")
        for i in range(8, 16): p.I(f"v_pk_add_f32 {vr(T+2*(i&3),2)}, {vr(T+2*(i&3),2)}, {vr(X+2*i,2)}")
        p.I(f"v_pk_add_f32 {vr(T,2)}, {vr(T,2)}, {vr(T+2,2)}\nv_pk_add_f32 {vr(T+4,2)}, {vr(T+4,2)}, {vr(T+6,2)}")
        p.I(f"v_pk_add_f32 {vr(T,2)}, {vr(T,2)}, {vr(T+4,2)}\nv_add_f32 v{T}, v{T}, v{T+1}")
        emit(p, red16(T))
        p.I(f"v_mul_f32 v{T+8}, {f32(-1.0/512)}, v{T}")
        for i in range(16): p.I(f"v_pk_add_f32 {vr(X+2*i,2)}, {vr(X+2*i,2)}, {vr(T+8,2)} op_sel_hi:[1,0]")
        for i in range(4): p.I(f"v_pk_mul_f32 {vr(T+2*i,2)}, {vr(X+2*i,2)}, {vr(X+2*i,2)}")
        for i in range(4, 16): p.I(f"v_pk_fma_f32 {vr(T+2*(i&3),2)}, {vr(X+2*i,2)}, {vr(X+2*i,2)}, {vr(T+2*(i&3),2)}")
        p.I(f"v_pk_add_f32 {vr(T,2)}, {vr(T,2)}, {vr(T+2,2)}\nv_pk_add_f32 {vr(T+4,2)}, {vr(T+4,2)}, {vr(T+6,2)}")
        p.I(f"v_pk_add_f32 {vr(T,2)}, {vr(T,2)}, {vr(T+4,2)}\nv_add_f32 v{T}, v{T}, v{T+1}")
        emit(p, red16(T))
        p.I(f"v_mov_b32 v{T+1}, {f32(1e-5)}\nv_fmac_f32 v{T+1}, {f32(1.0/512)}, v{T}\nv_rsq_f32 v{T+2}, v{T+1}")
        if first:
            p.I(f"""v_mov_b32 v{T+9}, v{T+2}
            v_mov_b32 v{T+10}, s{sTAG}
            v_mov_b32 v{T+11}, s{sTAG}
            s_mov_b32 exec_lo, 0x00010001
            s_mov_b32 exec_hi, 0x00010001
            buffer_store_dwordx4 {vr(T+8,4)}, v14, {sr(SW,4)}, 0 offen sc1
            s_mov_b64 exec, -1""")
        if closed:
            p.I(f"""v_mul_f32 v{T+3}, v{T+2}, v{T+2}
            v_mul_f32 v{T+3}, v{T+3}, v{T}
            v_mov_b32 v{T+4}, {f32(1e-5)}
            v_fmac_f32 v{T+4}, {f32(1.0/512)}, v{T+3}
            v_rsq_f32 v{T+4}, v{T+4}
            v_mul_f32 v{T+2}, v{T+2}, v{T+4}""")
        for i in range(16): p.I(f"v_pk_mul_f32 {vr(X+2*i,2)}, {vr(X+2*i,2)}, {vr(T+2,2)} op_sel_hi:[1,0]")
        for i in range(16): p.I(f"v_cvt_pk_bf16_f32 v{RAW+i}, v{X+2*i}, v{X+2*i+1}")
    stamp(p, 1)
    p.I("s_waitcnt vmcnt(0)")
    stamp(p, 2)
    if "cf2" in OPT: ln(True, True)
    else: ln(True); ln(False)
    for k in range(4): p.I(f"ds_write_b128 v15, {vr(RAW+4*k,4)} offset:{k*256}")
    p.I(f"""v_mov_b32 v21, 1
    s_waitcnt lgkmcnt(0)
    s_mov_b64 exec, 1
    ds_add_u32 v20, v21
    s_mov_b64 exec, -1
    s_mov_b32 s{sSPIN}, 0""")
    p.L("B_lnsync")
    p.I(f"""ds_read_b32 v21, v20
    s_add_u32 s{sSPIN}, s{sSPIN}, 1
    s_waitcnt lgkmcnt(0)
    v_readfirstlane_b32 s{sT0}, v21
    s_cmp_ge_u32 s{sSPIN}, {SPIN_MAX}
    s_cbranch_scc1 B_lnsync_ok
    s_cmp_lt_u32 s{sT0}, 4
    s_cbranch_scc1 B_lnsync""")
    p.L("B_lnsync_ok")
    for i in range(4):
        for tt in range(2): p.I(f"ds_read_b64_tr_b16 {vr(X+4*i+2*tt,2)}, v16 offset:{tt*4*LNP + i*64}")
    p.I(f"v_mov_b32 v19, s{sTAG}")
    for i in range(4):
        p.I(f"s_mov_b32 s{sT0}, {i << 17}\ns_waitcnt lgkmcnt({6 - 2*i})")
        p.I(f"buffer_store_dwordx4 {vr(X+4*i,4)}, v17, {sr(SW,4)}, s{sT0} offen sc1")
    if "b2late" not in OPT: p.I("s_barrier")
    stamp(p, 3)
    p.I(f"""s_waitcnt vmcnt(0)
    s_mov_b64 exec, 1
    buffer_store_dword v19, v18, {sr(SW,4)}, 0 offen sc1
    s_mov_b64 exec, -1""")
    if "b2late" in OPT: p.I("s_barrier")
    stamp(p, 4)
    p.I(f"s_cmp_eq_u32 s{sFT}, 15\ns_cbranch_scc1 F_cons")
    AK, AM, AS, TB, LB = 16, 32, 48, 64, 100
    NL = opt("nlu", 12)
    TA = [[2, 3, 4], [5, 6, 7], [8, 9, 10]]
    BI = 180
    p.I(f"""s_and_b32 s{sA}, s{sW4}, 1
    s_lshr_b32 s{sB}, s{sW4}, 1
    v_lshrrev_b32 v15, 5, v1
    s_mul_i32 s{sT0}, s{sFT}, 192
    s_lshl_b32 s{sT1}, s{sA}, 7
    s_add_u32 s{sT1}, s{sT1}, s{sT0}
    v_lshl_add_u32 v12, v15, 3, s{sT1}
    s_lshl_b32 s{sT1}, s{sA}, 5
    s_add_u32 s{sT1}, s{sT1}, s{sT0}
    s_add_u32 s{sT1}, s{sT1}, 64
    v_lshl_add_u32 v13, v15, 3, s{sT1}""")
    srd(p, SB, P_B1, 2752)
    for g in range(4): p.I(f"buffer_load_dwordx2 {vr(BI+2*g,2)}, v12, {sr(SB,4)}, 0 offen offset:{16*g}")
    for g in range(2): p.I(f"buffer_load_dwordx2 {vr(BI+8+2*g,2)}, v13, {sr(SB,4)}, 0 offen offset:{16*g}")
    p.I(f"""s_lshr_b32 s{sT0}, s{sDU}, 1
    s_lshl_b32 s{sT0}, s{sT0}, 14
    s_add_u32 s{sT0}, s{sT0}, {FH}
    s_lshl_b32 s{sT1}, s{sA}, 13
    s_add_u32 s{sT0}, s{sT0}, s{sT1}
    v_lshl_add_u32 v12, v1, 7, s{sT0}
    s_lshl_b32 s{sT1}, s98, 9
    s_add_u32 s{sT3}, s{sT0}, s{sT1}
    s_lshl_b32 s{sT0}, s{sDU}, 1
    s_add_u32 s{sT0}, s{sT0}, s{sB}
    s_lshl_b32 s{sT0}, s{sT0}, 17
    s_lshl_b32 s{sT1}, s{sA}, 10
    s_add_u32 s{sT0}, s{sT0}, s{sT1}
    s_add_u32 s{sT0}, s{sT0}, {HF}
    v_lshl_add_u32 v11, v1, 4, s{sT0}
    v_bfe_u32 v13, v1, 2, 2
    v_lshl_add_u32 v13, v15, 3, v13
    v_mul_u32_u24 v13, 192, v13
    v_bfe_u32 v14, v1, 4, 1
    v_lshl_add_u32 v13, v14, 5, v13
    v_and_b32 v14, 3, v1
    v_lshl_add_u32 v13, v14, 3, v13
    s_mul_i32 s{sT0}, s{sA}, {16*192}
    s_add_u32 s{sT1}, s{sT0}, 64
    v_add_u32 v5, s{sT1}, v13
    s_lshl_b32 s{sT1}, s{sA}, 7
    s_add_u32 s{sT2}, s{sT0}, s{sT1}
    v_add_u32 v2, s{sT2}, v13
    s_sub_u32 s{sT2}, s{sT0}, s{sT1}
    s_add_u32 s{sT2}, s{sT2}, 128
    v_add_u32 v8, s{sT2}, v13""")
    for b in range(3):
        p.I(f"v_add_u32 v{TA[b][1]}, 0x10000, v{TA[b][0]}\nv_add_u32 v{TA[b][2]}, 0x20000, v{TA[b][0]}")
    q = VQ(p)
    q.add("BI", 6)
    if "vpoll" in OPT: poll(p, "B_pollh", 12, 14)
    else: spoll(p, "B_pollh", sT3, 16)
    stamp(p, 5)
    def lload(g):
        if g == 8 and "vpoll" not in OPT:
            p.I(f"buffer_load_dword v14, v12, {sr(SW,4)}, 0 offen sc1"); q.add("PH")
        if g == 16 and "vpoll" not in OPT:
            q.wait("PH")
            if "nopoll" not in OPT:
                p.I(f"v_cmp_ne_u32 vcc, s{sTAG}, v14\ns_cbranch_vccz B_pollh2_ok")
            poll(p, "B_pollh2", 12, 14)
        if g % 4 == 0:
            n = g // 4
            p.I(f"s_add_u32 s{sOF}, s98, {n % UBLK}\ns_and_b32 s{sOF}, s{sOF}, {UBLK - 1}\ns_add_u32 s{sOF}, s{sOF}, {n - n % UBLK}\ns_lshl_b32 s{sOF}, s{sOF}, 13")
        elif g % 2 == 0:
            p.I(f"s_add_u32 s{sOF}, s{sOF}, 4096")
        if "noL" in OPT and g >= NL: return
        p.I(f"buffer_load_dwordx4 {vr(LB+4*(g % NL),4)}, v11, {sr(SW,4)}, s{sOF} offen offset:{(g & 1) * 2048} sc1")
        q.add(f"L{g}")
    def treads(g):
        n, i = g >> 2, g & 3
        o = (n % UND) * USLOT + i * 32 * 192
        return [f"ds_read_b64_tr_b16 {vr(TB+12*(g%3)+4*b+2*tt,2)}, " + lds_ref(TA[b], o + tt * 4 * 192) for b in range(3) for tt in range(2)]
    for g in range(NL): lload(g)
    q.wait("BI")
    for i in range(8):
        p.I(f"v_lshlrev_b32 v{AK+2*i}, 16, v{BI+i}\nv_and_b32 v{AK+2*i+1}, 0xffff0000, v{BI+i}")
    p.I("s_barrier")
    emit(p, treads(0) + treads(1))
    G = 64
    for g in range(G):
        Lr = vr(LB + 4 * (g % NL), 4)
        M = [f"{MFMA} {vr(a,16)}, {vr(TB+12*(g%3)+4*b,4)}, {Lr}, {'0' if (g == 0 and b > 0) else vr(a,16)}" for b, a in enumerate((AK, AM, AS))]
        nxt = g + 2
        p.I(f"s_waitcnt lgkmcnt({6 if g + 1 < G else 0})")
        q.wait(f"L{g}")
        if "ust" in OPT and g % 16 == 0: stamp(p, 9 + g // 16)
        p.I(M[0])
        if nxt < G:
            if nxt % 4 == 0: p.I("s_waitcnt lgkmcnt(0)\ns_barrier")
            R = treads(nxt)
            if "noR" in OPT: R = []
            if "r222" in OPT: emit(p, R[:2] + [M[1]] + R[2:4] + [M[2]] + R[4:])
            else: emit(p, R[:3] + [M[1]] + R[3:] + [M[2]])
        else: emit(p, M[1:])
        if "lbunch" in OPT:
            if g % 4 in (0, 1):
                for gg in (g + NL + (g % 4), g + NL + (g % 4) + 1):
                    if gg - 2 < G and gg - 2 >= NL: lload(gg - 2)
        elif g + NL < G: lload(g + NL)
    stamp(p, 6)
    RSC = (15 % UND) * USLOT
    c1 = -2.0 * math.sqrt(2.0 / math.pi) * LOG2E
    c2 = c1 * 0.044715
    p.I(f"""s_mul_i32 s{sT0}, s{sW4}, 6144
    s_add_u32 s{sT0}, s{sT0}, {RSC}
    v_lshl_add_u32 v2, v1, 4, s{sT0}
    s_xor_b32 s{sT0}, s{sW4}, 1
    s_mul_i32 s{sT0}, s{sT0}, 6144
    s_add_u32 s{sT0}, s{sT0}, {RSC}
    v_lshl_add_u32 v3, v1, 4, s{sT0}
    s_cmp_eq_u32 s{sA}, 1
    s_cselect_b64 s[32:33], -1, 0
    s_barrier""")
    MK, MS = 64, 72
    for i in range(8):
        p.I(f"v_cndmask_b32 v{MS+i}, v{AM+8+i}, v{AM+i}, s[32:33]")
        p.I(f"v_cndmask_b32 v{MK+i}, v{AM+i}, v{AM+8+i}, s[32:33]")
    for k in range(2): p.I(f"ds_write_b128 v3, {vr(MS+4*k,4)} offset:{4096+k*1024}")
    for k in range(4): p.I(f"ds_write_b128 v3, {vr(AS+4*k,4)} offset:{k*1024}")
    for i in range(4):
        p.I(f"v_lshlrev_b32 v{AM+2*i}, 16, v{BI+8+i}\nv_and_b32 v{AM+2*i+1}, 0xffff0000, v{BI+8+i}")
    for i in range(4): p.I(f"v_pk_add_f32 {vr(AM+2*i,2)}, {vr(AM+2*i,2)}, {vr(MK+2*i,2)}")
    p.I(f"""s_mov_b32 s34, {f32(c2)}
    s_mov_b32 s35, {f32(c2)}
    v_mov_b32 v12, {f32(c1)}
    v_mov_b32 v13, {f32(c1)}
    s_lshl_b32 s{sT0}, s{sDU}, 1
    s_add_u32 s{sT0}, s{sT0}, s{sB}
    s_mul_i32 s{sT1}, s{sT0}, {GFS}
    s_mul_i32 s{sT2}, s{sFT}, 6
    s_add_u32 s{sT1}, s{sT1}, s{sT2}
    s_lshl_b32 s{sT1}, s{sT1}, 10
    s_add_u32 s{sT1}, s{sT1}, {GF}
    v_lshl_add_u32 v14, v1, 4, s{sT1}
    s_lshl_b32 s36, s{sA}, 12
    s_lshl_b32 s37, s{sA}, 10
    s_add_u32 s37, s37, 2048
    s_lshl_b32 s{sT0}, s{sT0}, 5
    s_lshl_b32 s{sT1}, s{sFT}, 1
    s_add_u32 s{sT0}, s{sT0}, s{sT1}
    s_add_u32 s{sT0}, s{sT0}, s{sA}
    s_lshl_b32 s{sT0}, s{sT0}, 7
    s_add_u32 s{sT0}, s{sT0}, {FG}
    v_mov_b32 v15, s{sT0}
    v_mov_b32 v11, s{sTAG}
    s_cmp_eq_u32 s{sFT}, 14
    s_cselect_b32 s38, 0, -1
    s_waitcnt lgkmcnt(0)
    s_barrier""")
    E = 64
    for k in range(6): p.I(f"ds_read_b128 {vr(E+4*k,4)}, v2 offset:{k*1024}")
    p.I("s_waitcnt lgkmcnt(0)")
    U = AK
    for i in range(12): p.I(f"v_pk_add_f32 {vr(U+2*i,2)}, {vr(U+2*i,2)}, {vr(E+2*i,2)}")
    for i in range(12): p.I(f"v_pk_mul_f32 {vr(E+2*i,2)}, {vr(U+2*i,2)}, {vr(U+2*i,2)}")
    for i in range(12): p.I(f"v_pk_fma_f32 {vr(E+2*i,2)}, {vr(E+2*i,2)}, s[34:35], v[12:13]")
    for i in range(12): p.I(f"v_pk_mul_f32 {vr(E+2*i,2)}, {vr(E+2*i,2)}, {vr(U+2*i,2)}")
    for i in range(24): p.I(f"v_exp_f32 v{E+i}, v{E+i}")
    for i in range(12): p.I(f"v_pk_add_f32 {vr(E+2*i,2)}, {vr(E+2*i,2)}, 1.0 op_sel_hi:[1,0]")
    for i in range(24): p.I(f"v_rcp_f32 v{E+i}, v{E+i}")
    for i in range(12): p.I(f"v_pk_mul_f32 {vr(E+2*i,2)}, {vr(E+2*i,2)}, {vr(U+2*i,2)}")
    for i in range(12): p.I(f"v_cvt_pk_bf16_f32 v{48+i}, v{E+2*i}, v{E+2*i+1}")
    for i in range(4): p.I(f"v_and_b32 v{56+i}, s38, v{56+i}")
    p.I(f"""buffer_store_dwordx4 v[48:51], v14, {sr(SW,4)}, s36 offen sc1
    buffer_store_dwordx4 v[52:55], v14, {sr(SW,4)}, s36 offen offset:1024 sc1
    buffer_store_dwordx4 v[56:59], v14, {sr(SW,4)}, s37 offen sc1""")
    stamp(p, 7)
    p.I(f"""s_waitcnt vmcnt(0)
    s_mov_b64 exec, 1
    buffer_store_dword v11, v15, {sr(SW,4)}, 0 offen sc1
    s_mov_b64 exec, -1""")
    stamp(p, 8)

def gen_F(p):
    p.L("F_cons")
    p.I("s_barrier")
    p.L("F_cons2")
    if "noF" in OPT:
        stamp_out(p, 14); p.I("s_endpgm")
    A0, A1, A2, TB, LB = 16, 32, 48, 64, 88
    NL = opt("nlf", 12)
    TA = [[2, 3, 4], [5, 6, 7]]
    p.I(f"""s_and_b32 s{sA}, s{sW4}, 1
    s_lshr_b32 s{sB}, s{sW4}, 1
    v_lshrrev_b32 v9, 5, v1
    s_lshl_b32 s{sT0}, s{sST}, 6
    s_lshl_b32 s{sT1}, s{sB}, 5
    s_add_u32 s{sT0}, s{sT0}, s{sT1}
    v_and_b32 v10, 31, v1
    v_add_u32 v10, s{sT0}, v10
    v_lshlrev_b32 v11, 1, v10
    v_lshlrev_b32 v14, 10, v10
    s_lshl_b32 s{sT0}, s{sDT}, 7
    s_lshl_b32 s{sT1}, s{sA}, 6
    s_add_u32 s{sT0}, s{sT0}, s{sT1}
    v_add_u32 v14, s{sT0}, v14
    v_lshl_add_u32 v15, v9, 4, v14
    v_lshl_add_u32 v14, v9, 3, v14""")
    srd(p, SA, P_X, 0x200000); srd(p, SB, P_B2, 4096)
    for g in range(4): p.I(f"buffer_load_dwordx2 {vr(TB+2*g,2)}, v14, {sr(SA,4)}, 0 offen offset:{16*g}")
    p.I(f"buffer_load_ushort v{TB+8}, v11, {sr(SB,4)}, 0 offen")
    p.I(f"""v_bfe_u32 v10, v1, 4, 1
    v_lshlrev_b32 v10, 1, v10
    v_bfe_u32 v11, v1, 1, 1
    v_add_u32 v10, v10, v11
    v_bfe_u32 v11, v1, 3, 1
    v_lshl_add_u32 v10, v11, 2, v10
    v_lshlrev_b32 v10, 4, v10
    v_and_b32 v11, 1, v1
    v_lshl_add_u32 v10, v11, 3, v10
    v_bfe_u32 v11, v1, 2, 2
    v_lshl_add_u32 v10, v11, 7, v10
    v_lshl_add_u32 v8, v9, 9, v10
    s_lshl_b32 s{sT0}, s{sDT}, 1
    s_add_u32 s{sT0}, s{sT0}, s{sA}
    s_lshl_b32 s{sT1}, s{sT0}, 12
    s_add_u32 s{sT1}, s{sT1}, {FG}
    v_lshl_add_u32 v12, v1, 7, s{sT1}
    s_mov_b32 s{sT3}, s{sT1}
    s_mul_i32 s{sT0}, s{sT0}, {GFS*1024}
    s_lshl_b32 s{sT1}, s{sB}, 10
    s_add_u32 s{sT0}, s{sT0}, s{sT1}
    s_add_u32 s{sT0}, s{sT0}, {GF}
    v_lshl_add_u32 v10, v1, 4, s{sT0}
    s_lshl_b32 s{sT0}, s{sST}, 1
    s_add_u32 s{sT0}, s{sT0}, s{sB}
    s_lshl_b32 s{sT1}, s{sT0}, 11
    s_add_u32 s{sT1}, s{sT1}, {FO}
    v_lshl_add_u32 v13, v1, 7, s{sT1}
    s_lshl_b32 s{sT0}, s{sT0}, 15
    s_lshl_b32 s{sT1}, s{sA}, 10
    s_add_u32 s{sT0}, s{sT0}, s{sT1}
    s_add_u32 s{sT0}, s{sT0}, {OF}
    v_lshl_add_u32 v11, v1, 4, s{sT0}""")
    def set_taddr(skh):
        return [f"s_mul_i32 s{sT0}, s{skh}, {2048 + 64}", f"v_xor_b32 v2, s{sT0}, v8", "v_xor_b32 v5, 64, v2",
                "v_add_u32 v3, 0x10000, v2", "v_add_u32 v4, 0x20000, v2", "v_add_u32 v6, 0x10000, v5", "v_add_u32 v7, 0x20000, v5"]
    P0, P1 = ("O", "Y") if OFIRST else ("Y", "O")
    KH = {"Y": sB, "O": sA}; NFL = {"Y": 30, "O": 16}; VFL = {"Y": 12, "O": 13}; VL = {"Y": 10, "O": 11}; ACC1 = {"Y": A1, "O": A2}
    G0, G = 4 * FCNT[P0], 60
    emit(p, set_taddr(KH[P0]))
    p.I(f"""s_lshl_b32 s{sT0}, s{sW4}, 12
    s_add_u32 s{sT0}, s{sT0}, 16384
    v_lshl_add_u32 v9, v1, 4, s{sT0}
    v_xor_b32 v246, 8192, v9
    v_xor_b32 v247, 4096, v9""")
    XW = {"Y": (246, 0), "O": (247, 16384)}
    stamp(p, 9)
    q = VQ(p)
    q.add("XB", 5)
    set_exec(p, NFL[P0])
    poll(p, "F_poll0", VFL[P0], 14, 1, opt("gsl", 2))
    stamp(p, 10)
    part_of = lambda g: (P0, g) if g < G0 else (P1, g - G0)
    def lload(g):
        part, gg = part_of(g)
        if g == G0:
            stamp(p, 11)
            q.wait("PO")
            set_exec(p, NFL[P1])
            if "nopoll" not in OPT:
                p.I(f"v_cmp_ne_u32 vcc, s{sTAG}, v14\ns_cbranch_vccz F_poll1_ok")
            poll(p, "F_poll1", VFL[P1], 14, 1, opt("gsl", 2))
            stamp(p, 12)
        if g == G0 - opt("poe", 6):
            set_exec(p, NFL[P1])
            p.I(f"buffer_load_dword v14, v{VFL[P1]}, {sr(SW,4)}, 0 offen sc1\ns_mov_b64 exec, -1")
            q.add("PO")
        if gg == 0: p.I(f"s_lshl_b32 s{sOF}, s{sROT[part]}, 13")
        elif gg % 2 == 0:
            p.I(f"s_add_u32 s{sOF}, s{sOF}, 4096")
            if gg % 4 == 0: p.I(f"s_cmp_eq_u32 s{sOF}, {FCNT[part] * 8192}\ns_cselect_b32 s{sOF}, 0, s{sOF}")
        p.I(f"buffer_load_dwordx4 {vr(LB+4*(g % NR),4)}, v{VL[part]}, {sr(SW,4)}, s{sOF} offen offset:{(gg & 1) * 2048} sc1")
        q.add(f"L{g}")
    def treads(g):
        n, i = g >> 2, g & 3
        o = fslot(n) + i * 4096
        L = set_taddr(KH[P1]) if g == G0 else []
        return L + [f"ds_read_b64_tr_b16 {vr(TB+8*(g%3)+4*b+2*tt,2)}, " + lds_ref(TA[b], o + tt * 1024) for b in range(2) for tt in range(2)]
    NR = 32
    FB1 = opt("fb1", 8)
    def upto(g):
        u = g + 1 + NL
        if OFIRST:
            if g < 0: u = G0
            elif g + 1 + NL <= G0: u = G0
            else: u = max(u, min(G0 + FB1 + (g + NL - G0), g + 1 + opt("nl2", 16)))
        return min(G, u, g + 1 + NR)
    il = 0
    while il < upto(-1): lload(il); il += 1
    q.wait("XB")
    p.I(f"v_lshlrev_b32 v{TB+8}, 16, v{TB+8}")
    for i in range(8):
        p.I(f"v_lshlrev_b32 v{A0+2*i}, 16, v{TB+i}\nv_and_b32 v{A0+2*i+1}, 0xffff0000, v{TB+i}")
    for i in range(16): p.I(f"v_add_f32 v{A0+i}, v{A0+i}, v{TB+8}")
    p.I("s_barrier")
    emit(p, treads(0) + treads(1))
    EX = 224
    for g in range(G):
        part, gg = part_of(g)
        Lr = vr(LB + 4 * (g % NR), 4)
        M = []
        for blk in range(2):
            acc = A0 if blk == 0 else ACC1[part]
            T = vr(TB + 8 * (g % 3) + 4 * blk, 4)
            a, b = (Lr, T) if part == "Y" else (T, Lr)
            c = "0" if (blk == 1 and gg == 0) else vr(acc, 16)
            M.append(f"{MFMA} {vr(acc,16)}, {a}, {b}, {c}")
        nxt = g + 2
        p.I(f"s_waitcnt lgkmcnt({4 if g + 1 < G else 0})")
        q.wait(f"L{g}")
        p.I(M[0])
        if nxt < G:
            if nxt == 52:
                for k in range(4): p.I(f"ds_write_b128 v{XW[P0][0]}, {vr(ACC1[P0]+4*k,4)} offset:{XW[P0][1] + k*1024}")
            if nxt % 4 == 0: p.I("s_waitcnt lgkmcnt(0)\ns_barrier")
            if nxt == 52:
                for k in range(4): p.I(f"ds_read_b128 {vr(EX+4*k,4)}, v9 offset:{XW[P0][1] + k*1024}")
            emit(p, treads(nxt))
        p.I(M[1])
        while il < upto(g): lload(il); il += 1
    stamp(p, 13)
    srd(p, SA, P_OUT, 0x200000)
    for k in range(4): p.I(f"ds_write_b128 v{XW[P1][0]}, {vr(ACC1[P1]+4*k,4)} offset:{XW[P1][1] + k*1024}")
    for i in range(8): p.I(f"v_pk_add_f32 {vr(A0+2*i,2)}, {vr(A0+2*i,2)}, {vr(EX+2*i,2)}")
    p.I("s_waitcnt lgkmcnt(0)\ns_barrier")
    for k in range(4): p.I(f"ds_read_b128 {vr(EX+4*k,4)}, v9 offset:{XW[P1][1] + k*1024}")
    p.I("s_waitcnt lgkmcnt(0)")
    for i in range(8): p.I(f"v_pk_add_f32 {vr(A0+2*i,2)}, {vr(A0+2*i,2)}, {vr(EX+2*i,2)}")
    for i in range(8): p.I(f"v_cvt_pk_bf16_f32 v{32+i}, v{A0+2*i}, v{A0+2*i+1}")
    p.I(f"""v_permlane32_swap_b32 v32, v34
    v_permlane32_swap_b32 v33, v35
    v_permlane32_swap_b32 v36, v38
    v_permlane32_swap_b32 v37, v39
    buffer_store_dwordx4 v[32:35], v15, {sr(SA,4)}, 0 offen
    buffer_store_dwordx4 v[36:39], v15, {sr(SA,4)}, 0 offen offset:32""")
    stamp_out(p, 14)
    p.I("s_endpgm")
    p.L("F_load")
    if "noF" in OPT:
        stamp_out(p, 14); p.I("s_endpgm")
    stamp(p, 9)
    p.I(f"""s_lshl_b32 s{sT0}, s2, 3
    s_add_u32 s{sT0}, s{sT0}, s{sWV}
    s_cmp_lg_u32 s{sT0}, 4
    s_cbranch_scc1 F_l_go
    v_lshlrev_b32 v2, 7, v1
    v_add_u32 v2, {FH}, v2
    v_add_u32 v3, 8192, v2
    v_lshrrev_b32 v4, 4, v1
    v_lshlrev_b32 v4, 13, v4
    v_and_b32 v5, 15, v1
    v_lshl_add_u32 v4, v5, 8, v4
    v_add_u32 v4, {FK}, v4
    v_add_u32 v5, 32768, v4""")
    for i in range(4): poll(p, f"F_ep{i}", 2 + i, 6)
    p.I(f"""v_mov_b32 v2, {FLG}
    v_mov_b32 v3, s{sTAG}
    s_mov_b64 exec, 1
    buffer_store_dword v3, v2, {sr(SW,4)}, 0 offen
    s_mov_b64 exec, -1""")
    p.L("F_l_go")
    if "aprio" in OPT: p.I("s_setprio 0")
    nf = len(FSEQ)
    p.I("s_bitcmp0_b32 s2, 3\ns_cbranch_scc1 F_l_A")
    for role, pre, burst in (("B", FPRE, opt("fbb", FND - 1)), ("A", FPA, 4)):
        if role == "A": p.L("F_l_A")
        q = VQ(p)
        for n in range(pre): q.add(f"F{n}", 4)
        for n in range(pre, burst): emit(p, f_dma(n)); q.add(f"F{n}", 4)
        paced(p, q, "F", f_dma, burst, nf, FND, opt("fml", 2))
        if role == "B": p.I("s_branch F_l_end")
    p.L("F_l_end")
    stamp_out(p, 14)

def main():
    hdr = open("parallel_sum__sliding_block__mixer_token_mlp__prompt.s.ref").read().split("; Override launch")[0]
    out = hdr + f"; @launch grid=(256,1,1) block=(512,1,1) lds={LDS}\n"
    out += '.amdgcn_target "amdgcn-amd-amdhsa--gfx950"\n.text\n'
    p = Prog(); gen(p); out += p.finalize()
    out += "CODE_END:\n.fill 1400, 4, 0xbf800000\n"
    out += f""".section .rodata,"a"
.p2align 6
.amdhsa_kernel {NAME}
  .amdhsa_next_free_vgpr 256
  .amdhsa_next_free_sgpr 102
  .amdhsa_accum_offset 256
  .amdhsa_group_segment_fixed_size 0
  .amdhsa_kernarg_size 88
  .amdhsa_user_sgpr_count 2
  .amdhsa_user_sgpr_kernarg_segment_ptr 1
  .amdhsa_system_sgpr_workgroup_id_x 1
.end_amdhsa_kernel
"""
    if "nokv" in OPT:
        out = "\n".join(l for l in out.split("\n") if not (l.strip().startswith("buffer_store_dwordx4") and (", v20," in l or ", v21," in l)))
    open(sys.argv[1], "w").write(out)
main()
```

```python
import sys, math, struct, re
from asmlib import Prog

NAME = "parallel_sum__sliding_block__mixer_token_mlp__prompt_kernel"
HF, KF, VF, GF, OF = 0x0, 0x200000, 0x400000, 0x600000, 0x800000
FLG = 0xA00000
ST = FLG + 0x1000
FH = ST + 0x8000
FK = FH + 0x10000
FG = FK + 0x10000
FO = FG + 0x10000
WS_USED = FO + 0x20000
GFS = 90
LDS = 163840
def f32(x): return "0x%08x" % struct.unpack("<I", struct.pack("<f", x))[0]
LOG2E = 1.4426950408889634
MFMA = "v_mfma_f32_32x32x16_bf16"
MFMA16 = "v_mfma_f32_16x16x32_bf16"
def vr(a, n): return f"v[{a}:{a+n-1}]"
def sr(a, n): return f"s[{a}:{a+n-1}]"
OPT = sys.argv[2:]
STAMP = "--stamp" in OPT
def opt(name, default):
    for o in OPT:
        if o.startswith(name + "="): return int(o.split("=")[1])
    return default
SPIN_MAX = 100000
P_X, P_WQKV, P_WO, P_W1, P_B1, P_W2, P_B2, P_OUT, P_DBG, P_WS = 64, 66, 68, 72, 74, 76, 78, 80, 82, 84
SA, SB, SW, SC, SD = 4, 8, 12, 16, 20
sWV, sW4, sR, sC, sK, sST, sDT, sTAG = 3, 24, 25, 26, 27, 29, 30, 31
sT0, sT1, sT2, sT3 = 28, 86, 87, 88
sM0, sOF, sA, sB, sSPIN, sFT, sDU, sHQ, sRT, sN = 89, 90, 91, 92, 93, 94, 95, 94, 95, 96
VST = 255

def emit(p, L):
    for x in L: p.I(x)
def stamp(p, idx):
    if not STAMP: return
    if idx == 0: return
    if idx == 1 or idx == -1:
        p.I("s_waitcnt lgkmcnt(0)")
        p.I(f"v_writelane_b32 v{VST}, s58, 0")
        if idx == -1: return
    p.I("s_memtime s[100:101]" if "cyc" in OPT else "s_memrealtime s[100:101]")
    p.I("s_waitcnt lgkmcnt(0)")
    p.I(f"v_writelane_b32 v{VST}, s100, {idx}")
def stamp_out(p, n):
    if not STAMP: return
    p.I("s_waitcnt vmcnt(0)")
    stamp(p, n)
    p.I(f"""s_lshl_b32 s98, s2, 3
    s_add_u32 s98, s98, s{sWV}
    s_lshl_b32 s98, s98, 6
    s_add_u32 s98, s98, 0x1000000
    v_lshl_add_u32 v2, v1, 2, s98
    s_mov_b64 exec, 0xffff
    global_store_dword v2, v{VST}, {sr(P_WS,2)}""")
def dpp_add(v, m): return f"v_add_f32_dpp v{v}, v{v}, v{v} {m} row_mask:0xf bank_mask:0xf"
def interleave(main, fill, upto=None):
    out = []; n = upto or len(main); k = 0
    for i, m in enumerate(main):
        out.append(m)
        tgt = min(len(fill), (len(fill) * (i + 1) + n - 1) // n)
        while k < tgt: out.append(fill[k]); k += 1
    return out
def srd(p, s, ptr, size):
    p.I(f"s_mov_b32 s{s}, s{ptr}\ns_mov_b32 s{s+1}, s{ptr+1}\ns_mov_b32 s{s+2}, {size}\ns_mov_b32 s{s+3}, 0x00020000")
def set_exec(p, nl):
    m = (1 << nl) - 1
    p.I(f"s_mov_b32 exec_lo, {hex(m & 0xffffffff)}\ns_mov_b32 exec_hi, {hex(m >> 32)}")
def poll(p, lab, vaddr, vdat, ndw=1, sleep=2):
    if "nopoll" in OPT:
        p.I("s_waitcnt vmcnt(0)\ns_mov_b64 exec, -1"); return
    ld = {1: "dword", 2: "dwordx2"}[ndw]
    p.I(f"s_mov_b32 s{sSPIN}, 0")
    p.L(lab)
    p.I(f"buffer_load_{ld} {'v%d' % vdat if ndw == 1 else vr(vdat, ndw)}, v{vaddr}, {sr(SW,4)}, 0 offen sc1")
    p.I(f"s_add_u32 s{sSPIN}, s{sSPIN}, 1")
    p.I("s_waitcnt vmcnt(0)")
    if ndw == 2:
        p.I(f"v_xor_b32 v{vdat}, s{sTAG}, v{vdat}\nv_xor_b32 v{vdat+1}, s{sTAG}, v{vdat+1}\nv_or_b32 v{vdat}, v{vdat}, v{vdat+1}\nv_cmp_ne_u32 vcc, 0, v{vdat}")
    else:
        p.I(f"v_cmp_ne_u32 vcc, s{sTAG}, v{vdat}")
    p.I(f"""s_cmp_ge_u32 s{sSPIN}, {SPIN_MAX}
    s_cbranch_scc1 {lab}_ok
    s_cbranch_vccz {lab}_ok
    s_sleep {sleep}
    s_branch {lab}""")
    p.L(lab + "_ok")
    p.I("s_mov_b64 exec, -1")
def spoll(p, lab, soff, n, sleep=1):
    if "nopoll" in OPT: return
    tp = 100
    p.I(f"s_add_u32 s62, s{P_WS}, s{soff}\ns_addc_u32 s63, s{P_WS+1}, 0")
    p.I(f"s_mov_b32 s{sSPIN}, 0\ns_mov_b32 s{tp}, s{sTAG}\ns_mov_b32 s{tp+1}, s{sTAG}")
    p.L(lab)
    for i in range(n): p.I(f"s_load_dword s{32+i}, s[62:63], {i*128} glc")
    p.I(f"s_add_u32 s{sSPIN}, s{sSPIN}, 1")
    p.I("s_waitcnt lgkmcnt(0)")
    for i in range(n // 2): p.I(f"s_xor_b64 {sr(32+2*i,2)}, {sr(32+2*i,2)}, {sr(tp,2)}")
    for i in range(1, n // 2): p.I(f"s_or_b64 s[32:33], s[32:33], {sr(32+2*i,2)}")
    p.I(f"""s_cbranch_scc0 {lab}_ok
    s_cmp_ge_u32 s{sSPIN}, {SPIN_MAX}
    s_cbranch_scc1 {lab}_ok
    s_sleep {sleep}
    s_branch {lab}""")
    p.L(lab + "_ok")
class VQ:
    def __init__(self, p): self.p = p; self.q = []
    def add(self, tag, n=1): self.q += [tag] * n
    def wait(self, tag):
        if tag not in self.q: return
        idx = max(i for i, x in enumerate(self.q) if x == tag)
        self.p.I(f"s_waitcnt vmcnt({min(63, len(self.q) - 1 - idx)})")
        del self.q[:idx + 1]
    def clear(self): self.q = []
def lds_ref(regs, off):
    return f"v{regs[off >> 16]} offset:{off & 0xffff}"
def get_tag(p):
    p.I(f"s_mov_b32 s{sT0}, {FLG}\ns_load_dword s{sTAG}, {sr(P_WS,2)}, s{sT0}")
def fin_tag(p):
    p.I(f"s_waitcnt lgkmcnt(0)\ns_add_u32 s{sTAG}, s{sTAG}, 1")

FND = 10
fslot = lambda n: ((n + 6) % FND) * 16384
FY, FOP = [("Y", k, 4096) for k in range(11)], [("O", k, 1024) for k in range(4)]
OFIRST = "yfirst" not in OPT
FSEQ = FOP + FY if OFIRST else FY + FOP
FCNT = {"Y": 11, "O": 4, "U": 16}
sROT = {"Y": 97, "O": 99, "U": 98}
FV = {"Y": 240, "O": 244}
FSRD = {"Y": SC, "O": SD}
def f_loader_setup(p):
    srd(p, SC, P_W2, 1376 * 4096); srd(p, SD, P_WO, 512 * 1024)
    p.I(f"""v_lshrrev_b32 v248, 3, v1
    s_lshl_b32 s{sT0}, s{sW4}, 5
    v_add_u32 v248, s{sT0}, v248
    v_bfe_u32 v249, v1, 4, 1
    v_lshlrev_b32 v249, 2, v249
    v_and_b32 v250, 7, v1
    v_xor_b32 v249, v249, v250
    v_lshlrev_b32 v249, 4, v249""")
    for name, stride, scol in (("Y", 4096, sST), ("O", 1024, sDT)):
        d = FV[name]
        p.I(f"""s_lshl_b32 s{sT0}, s{scol}, 7
        v_mul_u32_u24 v{d}, {stride}, v248
        v_add3_u32 v{d}, v{d}, v249, s{sT0}""")
        for u in range(1, 4): p.I(f"v_add_u32 v{d+u}, {u*(8*stride-1024)}, v{d}")
def f_dma(n):
    if "nofp" in OPT: return []
    name, k, st = FSEQ[n]
    L = [f"s_lshl_b32 s{sT0}, s{sW4}, 12", f"s_add_u32 m0, s{sT0}, {fslot(n)}"]
    if k == 0: L.append(f"s_mul_i32 s{sN}, s{sROT[name]}, {128 * st}")
    else: L += [f"s_add_u32 s{sN}, s{sN}, {128 * st}", f"s_cmp_eq_u32 s{sN}, {128 * st * FCNT[name]}", f"s_cselect_b32 s{sN}, 0, s{sN}"]
    L += [f"buffer_load_dwordx4 v{FV[name]+u}, {sr(FSRD[name],4)}, s{sN} offen offset:{u*1024} lds" for u in range(4)]
    return L
def split_dma(L):
    out = []; cur = []
    for x in L:
        cur.append(x)
        if x.startswith("buffer_load"): out.append(cur); cur = []
    if cur: out[-1] += cur
    return out
def paced(p, q, tag, dma, first, total, nslots, minlead, hook=None):
    items = [(n, g) for n in range(first, total) for g in split_dma(dma(n))]
    last_it = max(1, total - minlead)
    k = 0
    for t in range(total):
        q.wait(f"{tag}{t}")
        p.I("s_barrier")
        tgt = min(len(items), -(-len(items) * (t + 1) // last_it))
        while k < len(items) and items[k][0] <= t + nslots - 1 and (k < tgt or items[k][0] <= t + minlead):
            emit(p, items[k][1]); q.add(f"{tag}{items[k][0]}"); k += 1
        if hook: hook(t, k == len(items))
    assert k == len(items)
FPA = opt('fpa', 3)
FPRE = 4

def gen(p):
    p.I(f".globl {NAME}\n.p2align 8\n.type {NAME},@function")
    p.L(NAME)
    if STAMP: p.I("s_memtime s[58:59]" if "cyc" in OPT else "s_memrealtime s[58:59]")
    p.I(f"""s_cmp_ge_u32 s2, 256
    s_cbranch_scc1 L_end
    s_load_dwordx16 s[64:79], s[0:1], 0
    s_load_dwordx4 s[80:83], s[0:1], 64
    s_load_dwordx2 s[84:85], s[0:1], 80""")
    p.I(f"""v_lshrrev_b32 v2, 6, v0
    v_and_b32 v1, 63, v0
    v_readfirstlane_b32 s{sWV}, v2
    s_and_b32 s{sT0}, s2, 7
    s_lshr_b32 s{sT1}, s2, 3
    s_lshr_b32 s{sR}, s{sT0}, 1
    s_and_b32 s{sC}, s{sT0}, 1
    s_lshr_b32 s{sK}, s{sT1}, 1
    s_lshr_b32 s{sT2}, s{sT1}, 2
    s_lshl_b32 s{sST}, s{sR}, 3
    s_add_u32 s{sST}, s{sST}, s{sT2}
    s_and_b32 s{sT3}, s{sT1}, 3
    s_lshl_b32 s{sDT}, s{sC}, 2
    s_add_u32 s{sDT}, s{sDT}, s{sT3}
    s_and_b32 s{sW4}, s{sWV}, 3""")
    if "norot" in OPT: p.I("s_mov_b32 s97, 0\ns_mov_b32 s99, 0")
    else: p.I(f"""s_lshl_b32 s97, s{sT3}, 1
    s_add_u32 s97, s97, s{sT2}
    s_mul_i32 s97, s97, 11
    s_lshr_b32 s97, s97, 3
    s_mul_i32 s99, s{sC}, 3
    s_add_u32 s97, s97, s99
    s_cmp_ge_u32 s97, 11
    s_cselect_b32 s99, 11, 0
    s_sub_u32 s97, s97, s99
    s_add_u32 s99, s{sT3}, s{sT2}
    s_and_b32 s99, s99, 3""")
    stamp(p, 0)
    if "fonly" in OPT:
        p.I("s_waitcnt lgkmcnt(0)")
        stamp(p, -1)
        srd(p, SW, P_WS, WS_USED)
        p.I(f"s_mov_b32 s{sTAG}, 0\ns_cmp_lt_u32 s{sWV}, 4\ns_cbranch_scc1 FO_c")
        f_loader_setup(p)
        p.I("s_bitcmp1_b32 s2, 3\ns_cbranch_scc1 FO_b")
        for n in range(FPA): emit(p, f_dma(n))
        p.I("s_waitcnt vmcnt(0)\ns_barrier\ns_branch F_load")
        p.L("FO_b")
        for n in range(FPRE): emit(p, f_dma(n))
        p.I("s_waitcnt vmcnt(0)\ns_barrier\ns_branch F_load")
        p.L("FO_c")
        p.I("s_branch F_cons")
    p.I(f"""s_bitcmp1_b32 s2, 3
    s_cbranch_scc1 B_entry""")
    if "noA" in OPT: p.I("s_endpgm")
    gen_A(p)
    gen_B(p)
    gen_F(p)
    p.L("L_end")
    p.I("s_endpgm")

QSLOT = 40960; QSCR = 3 * QSLOT
KA_, VA_, QA_ = 0, 49152, 98304
def gen_A(p):
    p.I(f"""s_lshr_b32 s{sT0}, s{sK}, 2
    s_lshl_b32 s{sRT}, s{sR}, 2
    s_add_u32 s{sRT}, s{sRT}, s{sT0}
    s_and_b32 s{sT0}, s{sK}, 3
    s_lshl_b32 s{sHQ}, s{sC}, 2
    s_add_u32 s{sHQ}, s{sHQ}, s{sT0}
    s_cmp_ge_u32 s{sWV}, 4
    s_cbranch_scc1 A_load""")
    if "scpf" in OPT:
        p.I(f"""s_getpc_b64 s[60:61]
        s_lshl_b32 s62, s{sK}, 2
        s_add_u32 s62, s62, s{sW4}
        s_lshl_b32 s62, s62, 7
        s_add_u32 s60, s60, s62
        s_addc_u32 s61, s61, 0""")
        for i in range(5): p.I(f"s_load_dword s{32+i}, s[60:61], {i * 8192}")
    p.I("s_branch A_cons")
    p.L("A_load")
    p.I(f"""v_lshrrev_b32 v10, 3, v1
    s_lshl_b32 s{sT0}, s{sW4}, 4
    v_add_u32 v10, s{sT0}, v10
    v_lshrrev_b32 v11, 4, v1
    v_and_b32 v12, 7, v1
    v_xor_b32 v13, v11, v12
    v_lshlrev_b32 v14, 10, v10
    s_lshl_b32 s{sT0}, s{sRT}, 17
    v_add_u32 v14, s{sT0}, v14
    v_lshl_add_u32 v2, v13, 4, v14
    v_xor_b32 v3, 64, v2
    v_add_u32 v3, {8*1024 - 1024}, v3
    v_and_b32 v11, 1, v11
    v_lshlrev_b32 v11, 2, v11
    v_xor_b32 v13, v11, v12
    v_mul_u32_u24 v14, 3072, v10
    s_lshl_b32 s{sT0}, s{sHQ}, 7
    v_add_u32 v14, s{sT0}, v14
    v_lshl_add_u32 v4, v13, 4, v14
    v_add_u32 v5, {8*3072 - 1024}, v4
    s_lshl_b32 s{sM0}, s{sW4}, 11
    s_waitcnt lgkmcnt(0)""")
    srd(p, SA, P_X, 0x200000); srd(p, SB, P_WQKV, 0x180000)
    if "rotq" in OPT: p.I(f"s_add_u32 s98, s{sRT}, s{sHQ}\ns_and_b32 s98, s98, 3\ns_lshl_b32 s98, s98, 1")
    else: p.I("s_mov_b32 s98, 0")
    def qdma(t):
        L = [f"s_lshl_b32 s{sT2}, s98, 7", f"s_mul_i32 s{sT3}, s98, 196608", "s_add_u32 s98, s98, 1", "s_and_b32 s98, s98, 7"]
        for b in range(5):
            L.append(f"s_add_u32 m0, s{sM0}, {(t % 3) * QSLOT + b * 8192}")
            L.append(f"s_add_u32 s{sOF}, s{sT2}, {b * 65536}" if b < 2 else f"s_add_u32 s{sOF}, s{sT3}, {(b - 2) * 1024}")
            v, s_ = (2, SA) if b < 2 else (4, SB)
            nt = " nt" if t >= opt("qnt", 99) else ""
            L.append(f"buffer_load_dwordx4 v{v}, {sr(s_,4)}, s{sOF} offen{nt} lds")
            L.append(f"buffer_load_dwordx4 v{v+1}, {sr(s_,4)}, s{sOF} offen offset:1024{nt} lds")
        return L
    emit(p, qdma(0) + qdma(1))
    stamp(p, 1)
    get_tag(p)
    srd(p, SW, P_WS, WS_USED)
    f_loader_setup(p)
    fin_tag(p)
    APF = [int(c) for c in str(opt("apf", 0))] if opt("apf", 0) else []
    HPF = [int(c) for c in str(opt("hpf", 0))] if opt("hpf", 0) else []
    if APF:
        p.I(f"""s_mov_b32 s32, s{P_W1}
        s_mov_b32 s33, s{P_W1+1}
        s_mov_b32 s34, {2048*2752}
        s_mov_b32 s35, 0x00020000
        s_lshl_b32 s{sT0}, s{sK}, 2
        s_add_u32 s{sT0}, s{sT0}, s{sW4}
        s_lshl_b32 s{sT0}, s{sT0}, 4
        s_add_u32 s{sT0}, s{sT0}, 1024
        v_lshrrev_b32 v16, 3, v1
        v_add_u32 v16, s{sT0}, v16
        v_mul_u32_u24 v16, 2752, v16
        v_and_b32 v17, 7, v1
        v_min_u32 v17, 6, v17
        v_lshl_add_u32 v16, v17, 7, v16
        s_mul_i32 s36, s{sR}, 768
        s_add_u32 s37, s36, {8*2752}""")
    if HPF:
        p.I(f"""s_lshl_b32 s{sT0}, s{sK}, 2
        s_add_u32 s{sT0}, s{sT0}, s{sW4}
        s_and_b32 s38, s{sT0}, 7
        s_lshl_b32 s38, s38, 17
        s_lshr_b32 s{sT0}, s{sT0}, 3
        s_lshl_b32 s{sT0}, s{sT0}, 13
        s_add_u32 s38, s38, s{sT0}
        s_lshl_b32 s{sT0}, s{sC}, 20
        s_add_u32 s38, s38, s{sT0}
        s_add_u32 s38, s38, {HF + 65536}
        v_lshlrev_b32 v19, 7, v1""")
    q = VQ(p); q.add("S0", 10); q.add("S1", 10)
    for t in range(8):
        q.wait(f"S{t}")
        p.I("s_barrier")
        if t + 2 < 8: emit(p, qdma(t + 2)); q.add(f"S{t+2}", 10)
        for i, tt in enumerate(APF):
            if tt == t: p.I(f"buffer_load_dword v251, v16, s[32:35], s{36+i} offen"); q.add("PF")
        if t in HPF: p.I(f"buffer_load_dword v251, v19, {sr(SW,4)}, s38 offen sc1"); q.add("PF")
    stamp(p, 2)
    p.I("s_barrier")
    p.I("s_branch A_attn")
    p.L("A_cons")
    if "nocpf" not in OPT:
        p.I("s_getpc_b64 s[86:87]")
        p.L("A_pc")
        p.I(f"""s_sub_u32 s86, s86, A_pc-{NAME}
        s_subb_u32 s87, s87, 0
        v_lshlrev_b32 v22, 7, v0
        v_add_u32 v21, 0x8000, v22
        v_min_u32 v21, CODE_END-{NAME}-4, v21
        global_load_dword v22, v22, s[86:87]
        global_load_dword v21, v21, s[86:87]""")
    XA, WA = [[2, 3, 4, 5], [6, 7, 8, 9]], [[10, 11], [12, 13]]
    p.I(f"""s_and_b32 s{sA}, s{sW4}, 1
    s_lshr_b32 s{sB}, s{sW4}, 1
    v_lshrrev_b32 v23, 5, v1
    v_and_b32 v24, 31, v1
    v_bfe_u32 v26, v1, 1, 3
    v_xor_b32 v26, v26, v23
    s_lshl_b32 s{sT0}, s{sA}, 13
    v_lshlrev_b32 v27, 7, v24
    v_add_u32 v27, s{sT0}, v27""")
    for pp in range(4):
        p.I(f"""s_xor_b32 s{sT0}, s{sA}, {pp}
        s_lshl_b32 s{sT0}, s{sT0}, 1
        v_xor_b32 v28, s{sT0}, v26
        v_lshl_add_u32 v{XA[0][pp]}, v28, 4, v27
        v_add_u32 v{XA[1][pp]}, 0x10000, v{XA[0][pp]}""")
    p.I(f"""v_bfe_u32 v26, v1, 2, 2
    v_lshl_add_u32 v27, v23, 3, v26
    v_lshlrev_b32 v27, 7, v27
    v_bfe_u32 v28, v1, 4, 1
    v_lshlrev_b32 v28, 1, v28
    v_bfe_u32 v29, v1, 1, 1
    v_add_u32 v28, v28, v29
    s_lshl_b32 s{sT0}, s{sB}, 2
    v_add_u32 v28, s{sT0}, v28
    v_bfe_u32 v29, v1, 3, 1
    v_lshlrev_b32 v29, 2, v29
    v_xor_b32 v28, v28, v29
    v_lshl_add_u32 v27, v28, 4, v27
    v_and_b32 v29, 1, v1
    v_lshl_add_u32 v27, v29, 3, v27
    s_lshl_b32 s{sT0}, s{sA}, 11
    v_add_u32 v10, s{sT0}, v27
    v_xor_b32 v11, 2048, v10
    v_add_u32 v12, 0x10000, v10
    v_add_u32 v13, 0x10000, v11
    v_and_b32 v26, 15, v1
    v_bfe_u32 v27, v1, 4, 1
    v_cmp_eq_u32 vcc, v26, v27
    v_mov_b32 v28, 0x3f803f80
    v_cndmask_b32 v28, 0, v28, vcc
    v_mov_b32 v29, v28
    v_mov_b32 v30, v28
    v_mov_b32 v31, v28
    s_mul_i32 s{sT0}, s{sW4}, 384
    s_add_u32 s{sT0}, s{sT0}, {QSCR}
    v_lshl_add_u32 v14, v1, 2, s{sT0}
    s_mul_i32 s{sT0}, s{sB}, 768
    s_add_u32 s{sT0}, s{sT0}, {QSCR}
    v_lshl_add_u32 v15, v23, 4, s{sT0}
    v_lshl_add_u32 v16, v24, 2, s{sT0}
    s_lshl_b32 s{sT0}, s{sW4}, 9
    s_add_u32 s{sT0}, s{sT0}, {QSCR + 1536}
    v_lshl_add_u32 v17, v1, 2, s{sT0}
    v_lshl_add_u32 v18, v23, 4, s{sT0}
    v_lshl_add_u32 v25, v24, 2, s{sT0}
    s_lshl_b32 s{sT0}, s{sRT}, 7
    s_lshl_b32 s{sT1}, s{sA}, 6
    s_add_u32 s{sT0}, s{sT0}, s{sT1}
    s_lshl_b32 s{sT0}, s{sT0}, 4
    s_add_u32 s{sT0}, s{sT0}, {ST}
    v_lshl_add_u32 v19, v1, 4, s{sT0}
    s_waitcnt lgkmcnt(0)""")
    get_tag(p)
    srd(p, SW, P_WS, WS_USED)
    fin_tag(p)
    ACC = {("q", 0): 32, ("q", 1): 48, ("k", 0): 64, ("k", 1): 80, ("v", 0): 96, ("v", 1): 112}
    CS, FB = 128, 140
    def reads(g):
        t, pp = g >> 2, g & 3
        o = (t % 3) * QSLOT; b = FB + 20 * (g % 3)
        L = [f"ds_read_b128 {vr(b+4*rb,4)}, " + lds_ref([XA[0][pp], XA[1][pp]], o + rb * 4096) for rb in range(2)]
        for seg in range(3):
            for tt in range(2):
                L.append(f"ds_read_b64_tr_b16 {vr(b+8+4*seg+2*tt,2)}, " + lds_ref([WA[0][pp & 1], WA[1][pp & 1]], o + 16384 + seg * 8192 + (pp >> 1) * 4096 + tt * 512))
        return L
    def mfmas(g):
        b = FB + 20 * (g % 3); z = g == 0
        big = []
        for seg, nm in enumerate("qkv"):
            for rb in range(2):
                a = vr(ACC[(nm, rb)], 16); X = vr(b + 4 * rb, 4); W = vr(b + 8 + 4 * seg, 4)
                ops = (X, W) if nm == "v" else (W, X)
                big.append(f"{MFMA} {a}, {ops[0]}, {ops[1]}, {'0' if z else a}")
        small = []
        if g % 2 == 0:
            for seg in range(3):
                c = vr(CS + 4 * seg, 4)
                small.append(f"{MFMA16} {c}, v[28:31], {vr(b+8+4*seg,4)}, {'0' if z else c}")
        return big, small
    GR = 200
    stamp(p, 1)
    p.I("s_barrier")
    emit(p, reads(0) + reads(1))
    stamp(p, 2)
    for g in range(32):
        big, small = mfmas(g)
        M = (small + big) if g == 30 else (big + small)
        nxt = g + 2
        if g == opt('grg', 24): p.I(f"buffer_load_dwordx4 {vr(GR,4)}, v19, {sr(SW,4)}, 0 offen sc1")
        if nxt < 32:
            p.I("s_waitcnt lgkmcnt(8)")
            if nxt % 4 == 0:
                emit(p, M[:2])
                p.I("s_waitcnt lgkmcnt(0)")
                p.I("s_barrier")
                emit(p, interleave(M[2:], reads(nxt), upto=4))
            else:
                emit(p, interleave(M, reads(nxt), upto=5))
        elif g == 30:
            p.I("s_waitcnt lgkmcnt(0)")
            emit(p, M[:6])
            p.I("s_mov_b64 exec, 0xffff")
            for seg in range(3):
                p.I(f"ds_write_b32 v14, v{CS+4*seg} offset:{seg*128}")
                p.I(f"ds_write_b32 v14, v{CS+4*seg+1} offset:{seg*128+64}")
            p.I("s_mov_b64 exec, -1")
            emit(p, M[6:])
        else:
            emit(p, M[:2])
            p.I("s_waitcnt vmcnt(0)")
            if "nopoll" not in OPT:
                p.I(f"""v_cmp_ne_u32 vcc, s{sTAG}, v{GR+2}
                s_mov_b32 s{sSPIN}, 0
                s_cbranch_vccz A_st_ok""")
                p.L("A_st_spin")
                p.I(f"""buffer_load_dwordx4 {vr(GR,4)}, v19, {sr(SW,4)}, 0 offen sc1
                s_add_u32 s{sSPIN}, s{sSPIN}, 1
                s_waitcnt vmcnt(0)
                v_cmp_ne_u32 vcc, s{sTAG}, v{GR+2}
                s_cmp_ge_u32 s{sSPIN}, {SPIN_MAX}
                s_cbranch_scc1 A_st_ok
                s_cbranch_vccnz A_st_spin""")
                p.L("A_st_ok")
            p.I(f"""ds_write_b32 v17, v{GR}
            ds_write_b32 v17, v{GR+1} offset:256
            s_waitcnt lgkmcnt(0)
            s_barrier""")
            emit(p, M[2:])
    stamp(p, 3)
    CQ, CK, C2, NM, RS = 204, 220, 140, 156, 172
    for k in range(4): p.I(f"ds_read_b128 {vr(CK+4*k,4)}, v15 offset:{128+k*32}")
    for k in range(4): p.I(f"ds_read_b128 {vr(C2+4*k,4)}, v15 offset:{384+128+k*32}")
    p.I("""ds_read_b32 v2, v25
    ds_read_b32 v4, v25 offset:256
    ds_read_b32 v6, v25 offset:128
    ds_read_b32 v8, v25 offset:384
    ds_read_b32 v10, v16 offset:256
    ds_read_b32 v11, v16 offset:640""")
    p.I(f"""s_lshl_b32 s{sT0}, s{sHQ}, 1
    s_add_u32 s{sT0}, s{sT0}, s{sB}
    s_lshl_b32 s{sT1}, s{sRT}, 2
    s_lshl_b32 s{sT2}, s{sA}, 1
    s_add_u32 s{sT1}, s{sT1}, s{sT2}
    s_lshl_b32 s{sT2}, s{sT0}, 17
    s_lshl_b32 s{sT3}, s{sT1}, 10
    s_add_u32 s{sT3}, s{sT3}, s{sT2}
    s_add_u32 s{sT3}, s{sT3}, {KF}
    v_lshl_add_u32 v20, v1, 4, s{sT3}
    s_lshl_b32 s{sT3}, s{sT1}, 11
    s_add_u32 s{sT3}, s{sT3}, s{sT2}
    s_add_u32 s{sT3}, s{sT3}, {VF}
    v_lshl_add_u32 v21, v1, 4, s{sT3}
    s_lshl_b32 s{sT0}, s{sT0}, 6
    s_add_u32 s{sT0}, s{sT0}, s{sT1}
    s_lshl_b32 s{sT0}, s{sT0}, 6
    s_add_u32 s{sT0}, s{sT0}, {FK}
    v_mov_b32 v22, s{sT0}
    s_mul_i32 s{sT0}, s{sB}, 24576
    s_lshl_b32 s{sT1}, s{sA}, 11
    s_add_u32 s{sT2}, s{sT0}, s{sT1}
    s_add_u32 s{sT2}, s{sT2}, {KA_ + 8192}
    v_lshl_add_u32 v26, v1, 4, s{sT2}
    s_lshl_b32 s{sT2}, s{sA}, 12
    s_add_u32 s{sT2}, s{sT2}, s{sT0}
    s_add_u32 s{sT2}, s{sT2}, {VA_ + 16384}
    v_lshl_add_u32 v27, v1, 4, s{sT2}
    s_lshl_b32 s{sT2}, s{sB}, 13
    s_add_u32 s{sT2}, s{sT2}, s{sT1}
    s_add_u32 s{sT2}, s{sT2}, {QA_}
    v_lshl_add_u32 v28, v1, 4, s{sT2}
    s_mov_b32 s{sOF}, 65536
    v_mov_b32 v29, s{sTAG}
    s_waitcnt lgkmcnt(0)""")
    for k in range(4): p.I(f"ds_read_b128 {vr(NM+4*k,4)}, v18 offset:{k*32}")
    for k in range(4): p.I(f"ds_read_b128 {vr(RS+4*k,4)}, v18 offset:{256+k*32}")
    for i in range(8): p.I(f"v_pk_add_f32 {vr(CK+2*i,2)}, {vr(CK+2*i,2)}, {vr(C2+2*i,2)}")
    p.I("v_add_f32 v10, v10, v11")
    def qk(acc, cs, nm, rs):
        for i in range(8): p.I(f"v_pk_fma_f32 {vr(acc+2*i,2)}, {vr(cs+2*i,2)}, {vr(nm,2)}, {vr(acc+2*i,2)} op_sel_hi:[1,0,1]")
        for i in range(8): p.I(f"v_pk_mul_f32 {vr(acc+2*i,2)}, {vr(acc+2*i,2)}, {vr(rs,2)} op_sel_hi:[1,0]")
        for i in range(8): p.I(f"v_cvt_pk_bf16_f32 v{acc+i}, v{acc+2*i}, v{acc+2*i+1}")
    def vv(acc):
        for i in range(8): p.I(f"v_pk_fma_f32 {vr(acc+2*i,2)}, {vr(NM+2*i,2)}, v[10:11], {vr(acc+2*i,2)} op_sel_hi:[1,0,1]")
        for i in range(8): p.I(f"v_pk_mul_f32 {vr(acc+2*i,2)}, {vr(acc+2*i,2)}, {vr(RS+2*i,2)}")
        for i in range(8): p.I(f"v_cvt_pk_bf16_f32 v{acc+i}, v{acc+2*i}, v{acc+2*i+1}")
    for rb in range(2):
        a = ACC[("k", rb)]
        qk(a, CK, 2 + 4 * rb, 4 + 4 * rb)
        p.I(f"buffer_store_dwordx4 {vr(a,4)}, v20, {sr(SW,4)}, 0 offen offset:{rb*1024} sc1")
        p.I(f"buffer_store_dwordx4 {vr(a+4,4)}, v20, {sr(SW,4)}, s{sOF} offen offset:{rb*1024} sc1")
    for rb in range(2):
        a = ACC[("v", rb)]
        p.I("s_waitcnt lgkmcnt(0)")
        vv(a)
        if rb == 0:
            for k in range(4): p.I(f"ds_read_b128 {vr(NM+4*k,4)}, v18 offset:{128+k*32}")
            for k in range(4): p.I(f"ds_read_b128 {vr(RS+4*k,4)}, v18 offset:{384+k*32}")
        else:
            for k in range(4): p.I(f"ds_read_b128 {vr(CQ+4*k,4)}, v15 offset:{k*32}")
            for k in range(4): p.I(f"ds_read_b128 {vr(C2+4*k,4)}, v15 offset:{384+k*32}")
        p.I(f"buffer_store_dwordx4 {vr(a,4)}, v21, {sr(SW,4)}, 0 offen offset:{rb*2048} sc1")
        p.I(f"buffer_store_dwordx4 {vr(a+4,4)}, v21, {sr(SW,4)}, 0 offen offset:{rb*2048+1024} sc1")
        if rb == 0:
            for r2 in range(2):
                k_ = ACC[("k", r2)]
                p.I(f"ds_write_b128 v26, {vr(k_,4)} offset:{r2*1024}")
                p.I(f"ds_write_b128 v26, {vr(k_+4,4)} offset:{12288+r2*1024}")
    for r2 in range(2):
        a = ACC[("v", r2)]
        p.I(f"ds_write_b128 v27, {vr(a,4)} offset:{r2*2048}")
        p.I(f"ds_write_b128 v27, {vr(a+4,4)} offset:{r2*2048+1024}")
    p.I(f"""v_mul_f32 v4, {f32(0.25*LOG2E)}, v4
    v_mul_f32 v8, {f32(0.25*LOG2E)}, v8
    s_waitcnt lgkmcnt(4)""")
    for i in range(8): p.I(f"v_pk_add_f32 {vr(CQ+2*i,2)}, {vr(CQ+2*i,2)}, {vr(C2+2*i,2)}")
    for rb in range(2):
        a = ACC[("q", rb)]
        qk(a, CQ, 2 + 4 * rb, 4 + 4 * rb)
        p.I(f"ds_write_b128 v28, {vr(a,4)} offset:{rb*1024}")
        p.I(f"ds_write_b128 v28, {vr(a+4,4)} offset:{4096+rb*1024}")
    p.I("v_mov_b32 v252, v22\nv_mov_b32 v253, v29")
    stamp(p, 4)
    p.L("A_attn")
    if "noattn" in OPT:
        stamp_out(p, 14); p.I("s_endpgm")
    sHP, sTB, sNB, sNB1, sHB, sQB = sA, sB, sOF, sM0, 8, 9
    p.I(f"""v_lshlrev_b32 v3, 4, v1
    s_lshr_b32 s{sHP}, s{sW4}, 1
    s_and_b32 s{sQB}, s{sWV}, 1
    s_cmp_lt_u32 s{sWV}, 4
    s_cselect_b32 s{sT0}, 2, 0
    s_add_u32 s{sQB}, s{sQB}, s{sT0}
    s_lshl_b32 s{sTB}, s{sRT}, 2
    s_add_u32 s{sTB}, s{sTB}, s{sQB}
    s_min_u32 s{sNB}, s{sTB}, 8
    s_mov_b32 s{sNB1}, {'s%d' % sNB if 'truemax' in OPT else 0}
    v_and_b32 v4, 31, v1
    v_lshrrev_b32 v5, 5, v1
    v_lshlrev_b32 v5, 2, v5
    v_sub_u32 v4, v4, v5""")
    msk = lambda r: f"s[{32+2*r}:{33+2*r}]"
    for r in range(16): p.I(f"v_cmp_le_i32 {msk(r)}, {(r & 3) + 8 * (r >> 2)}, v4")
    p.I(f"""v_mov_b32 v6, {f32(-1e30)}
    s_mul_i32 s{sT0}, s{sHP}, 24576
    s_lshl_b32 s{sT1}, s{sQB}, 10
    s_add_u32 s{sT2}, s{sT0}, s{sT1}
    v_add_u32 v4, s{sT2}, v3
    s_add_u32 s{sT2}, s{sT2}, s{sT1}
    s_add_u32 s{sT2}, s{sT2}, {VA_}
    v_add_u32 v5, s{sT2}, v3
    s_lshl_b32 s{sT2}, s{sHP}, 13
    s_add_u32 s{sT2}, s{sT2}, s{sT1}
    s_add_u32 s{sT2}, s{sT2}, {QA_}
    v_add_u32 v7, s{sT2}, v3
    s_mov_b32 s4, 0x0000ffff
    s_mov_b32 s5, 0x0000ffff
    s_mov_b32 s6, 0xffff0000
    s_mov_b32 s7, 0xffff0000""")
    for r in range(176, 208): p.I(f"v_mov_b32 v{r}, 0x3f803f80")
    if "wp2" in OPT:
        srd(p, SC, P_W2, 1376 * 4096); srd(p, SD, P_WO, 512 * 1024)
        p.I(f"""s_lshl_b32 s{sT0}, s{sK}, 3
        s_add_u32 s{sT0}, s{sT0}, s{sWV}
        v_lshrrev_b32 v248, 3, v1
        v_lshlrev_b32 v248, 12, v248
        v_and_b32 v250, 7, v1
        v_lshl_add_u32 v248, v250, 7, v248
        s_lshl_b32 s{sT1}, s{sT0}, 15
        s_lshl_b32 s{sT2}, s{sR}, 10
        s_add_u32 s{sT1}, s{sT1}, s{sT2}
        v_add_u32 v248, s{sT1}, v248
        v_add_u32 v249, {128 << 15}, v248
        v_lshrrev_b32 v250, 2, v1
        v_lshlrev_b32 v250, 10, v250
        v_and_b32 v212, 3, v1
        v_lshl_add_u32 v250, v212, 7, v250
        s_sub_u32 s{sT1}, s{sT0}, 44
        s_lshl_b32 s{sT1}, s{sT1}, 14
        s_lshl_b32 s{sT2}, s{sC}, 9
        s_add_u32 s{sT1}, s{sT1}, s{sT2}
        s_and_b32 s{sT1}, s{sT1}, 0x7fffffff
        v_add_u32 v250, s{sT1}, v250""")
    p.I("s_waitcnt lgkmcnt(0)")
    p.I("s_barrier")
    stamp(p, 5)
    p.I("ds_read_b128 v[8:11], v7\nds_read_b128 v[12:15], v7 offset:4096")
    p.I(f"""s_mov_b32 s{sHB}, 99
    s_cmp_ge_u32 s{sWV}, 4
    s_cbranch_scc1 A_halo
    s_waitcnt vmcnt(0)
    s_mov_b64 exec, 1
    buffer_store_dword v253, v252, {sr(SW,4)}, 0 offen sc1
    s_mov_b64 exec, -1
    s_cmp_eq_u32 s{sRT}, 0
    s_cbranch_scc1 A_h_done""")
    if "noearly" in OPT or "truemax" in OPT: p.I("s_branch A_h_done")
    p.I(f"""s_mov_b32 s{sHB}, s{sQB}
    s_branch A_p1""")
    p.L("A_halo")
    p.I(f"""s_cmp_eq_u32 s{sRT}, 0
    s_cbranch_scc1 A_h_done
    s_lshl_b32 s{sT1}, s{sHQ}, 1
    s_add_u32 s{sT1}, s{sT1}, s{sHP}
    s_lshl_b32 s{sT2}, s{sRT}, 2
    s_lshl_b32 s{sT3}, s{sT1}, 6
    s_add_u32 s{sT3}, s{sT3}, s{sT2}
    s_lshl_b32 s{sT3}, s{sT3}, 6
    s_add_u32 s{sT3}, s{sT3}, {FK - 512}
    v_lshl_add_u32 v2, v1, 7, s{sT3}
    s_cmp_eq_u32 s{sRT}, 1
    s_cselect_b32 exec_lo, 12, 15
    s_mov_b32 exec_hi, 0""")
    if opt("kd", 0): p.I(f"s_sleep {opt('kd', 0)}")
    poll(p, "A_pollk", 2, 16, 1, opt("ksl", 2))
    p.I(f"""s_lshl_b32 s{sT1}, s{sT1}, 17
    s_lshl_b32 s{sT0}, s{sQB}, 16
    s_add_u32 s{sT0}, s{sT0}, s{sT1}
    s_lshl_b32 s{sT2}, s{sRT}, 12
    s_add_u32 s{sT0}, s{sT0}, s{sT2}
    s_add_u32 s{sT0}, s{sT0}, {KF - 8192}
    s_mul_i32 s{sT3}, s{sW4}, 12288""")
    def halo8():
        for hf in range(2):
            p.I(f"s_add_u32 m0, s{sT3}, {hf*4096}")
            if hf: p.I(f"s_add_u32 s{sT0}, s{sT0}, 4096")
            for u in range(4): p.I(f"buffer_load_dwordx4 v3, {sr(SW,4)}, s{sT0} offen offset:{u*1024} sc1 lds")
    halo8()
    p.I(f"""s_lshl_b32 s{sT3}, s{sQB}, 13
    s_add_u32 s{sT0}, s{sT1}, s{sT3}
    s_lshl_b32 s{sT2}, s{sRT}, 13
    s_add_u32 s{sT0}, s{sT0}, s{sT2}
    s_add_u32 s{sT0}, s{sT0}, {VF - 16384}
    s_mul_i32 s{sT2}, s{sHP}, 24576
    s_add_u32 s{sT3}, s{sT3}, s{sT2}
    s_add_u32 s{sT3}, s{sT3}, {VA_}""")
    halo8()
    p.L("A_h_done")
    p.I("s_waitcnt vmcnt(0) lgkmcnt(0)")
    p.I("s_barrier")
    stamp(p, 6)
    p.I(f"s_cmp_lt_u32 s{sWV}, 4\ns_cbranch_scc1 A_p1")
    for n in range(FPA): emit(p, f_dma(n))
    if "aprio" in OPT: p.I("s_setprio 1")
    NA, NB, OA, OB = 16, 32, 48, 64
    SBUF = [[80, 96], [112, 128]]; KR = [[144, 148], [152, 156]]; PR = [160, 168]; VR = [176, 192]
    kread = lambda jb, s: [f"ds_read_b128 {vr(KR[s][0],4)}, v4 offset:{jb*1024}", f"ds_read_b128 {vr(KR[s][1],4)}, v4 offset:{12288+jb*1024}"]
    smm = lambda s, cA, cB: [f"{MFMA} {vr(SBUF[s][0],16)}, {vr(KR[s][0],4)}, v[8:11], {cA}", f"{MFMA} {vr(SBUF[s][1],16)}, {vr(KR[s][1],4)}, v[12:15], {cB}"]
    def maxes(s):
        L = []
        for i in range(8):
            L.append(f"v_max3_f32 v208, v{SBUF[s][0]+2*i}, v{SBUF[s][0]+2*i+1}, v208")
            L.append(f"v_max3_f32 v209, v{SBUF[s][1]+2*i}, v{SBUF[s][1]+2*i+1}, v209")
        return L
    p.L("A_p1")
    emit(p, kread(8, 0) + kread(7, 1))
    for r in range(16): p.I(f"v_cndmask_b32 v{NA+r}, v6, 0, {msk(r)}")
    p.I("v_mov_b32 v208, v6\nv_mov_b32 v209, v6")
    p.I("s_waitcnt lgkmcnt(0)")
    emit(p, smm(0, vr(NA,16), vr(NA,16)))
    for r in range(OA, OB + 16): p.I(f"v_mov_b32 v{r}, 0")
    for n in range(8):
        s = n & 1
        p.I(f"s_cmp_lt_u32 s{sNB1}, {n+1}\ns_cbranch_scc1 A_p1_last{s}")
        if n + 1 == 8:
            for r in range(16): p.I(f"v_cndmask_b32 v{NB+r}, 0, v6, {msk(r)}")
        p.I("s_waitcnt lgkmcnt(0)")
        c = vr(NB,16) if n + 1 == 8 else "0"
        emit(p, smm(s ^ 1, c, c))
        if n + 2 <= 8: emit(p, kread(8 - (n + 2), s))
        emit(p, maxes(s))
    p.I("s_nop 7\ns_nop 3")
    p.I("s_branch A_p1_last0")
    p.L("A_p1_last1")
    p.I("s_nop 7\ns_nop 3")
    emit(p, maxes(1))
    p.I("s_branch A_p1_done")
    p.L("A_p1_last0")
    emit(p, maxes(0))
    p.L("A_p1_done")
    p.I("s_waitcnt lgkmcnt(0)")
    stamp(p, 7)
    vread = lambda jb, s: ["s_mov_b64 exec, s[4:5]",
                f"ds_read_b128 {vr(VR[s],4)}, v5 offset:{jb*2048}", f"ds_read_b128 {vr(VR[s]+4,4)}, v5 offset:{jb*2048+1024}",
                "s_mov_b64 exec, s[6:7]",
                f"ds_read_b128 {vr(VR[s]+8,4)}, v5 offset:{jb*2048}", f"ds_read_b128 {vr(VR[s]+12,4)}, v5 offset:{jb*2048+1024}",
                "s_mov_b64 exec, -1"]
    emit(p, kread(8, 0) + kread(7, 1) + vread(8, 0))
    p.I("""v_mov_b32 v210, v208
    v_mov_b32 v211, v209
    v_permlane32_swap_b32 v208, v210
    v_permlane32_swap_b32 v209, v211
    v_max_f32 v208, v208, v210
    v_max_f32 v209, v209, v211
    v_sub_f32 v208, 0, v208
    v_sub_f32 v209, 0, v209""")
    for r in range(16):
        p.I(f"v_cndmask_b32 v{SBUF[0][0]+r}, v6, v208, {msk(r)}")
        p.I(f"v_cndmask_b32 v{SBUF[0][1]+r}, v6, v209, {msk(r)}")
    p.I("s_waitcnt lgkmcnt(0)")
    emit(p, smm(0, vr(SBUF[0][0],16), vr(SBUF[0][1],16)))
    for r in range(16):
        p.I(f"v_mov_b32 v{NA+r}, v208")
        p.I(f"v_mov_b32 v{NB+r}, v209")
    def softp(s, hd):
        S = SBUF[s][hd]; P = PR[hd]; V = VR[s] + 8 * hd; O = (OA, OB)[hd]
        L = [f"v_exp_f32 v{S+i}, v{S+i}" for i in range(8)]
        L += [f"v_cvt_pk_bf16_f32 v{P+i}, v{S+2*i}, v{S+2*i+1}" for i in range(4)]
        L += [f"v_exp_f32 v{S+i}, v{S+i}" for i in range(8, 10)]
        L += [f"{MFMA} {vr(O,16)}, {vr(V,4)}, {vr(P,4)}, {vr(O,16)}"]
        L += [f"v_exp_f32 v{S+i}, v{S+i}" for i in range(10, 16)]
        L += [f"v_cvt_pk_bf16_f32 v{P+i}, v{S+2*i}, v{S+2*i+1}" for i in range(4, 8)]
        return L, [f"{MFMA} {vr(O,16)}, {vr(V+4,4)}, {vr(P+4,4)}, {vr(O,16)}"]
    def soft(s):
        a, a2 = softp(s, 0); b, b2 = softp(s, 1)
        return a + b[:2] + a2 + b[2:] + b2
    for n in range(8):
        s = n & 1
        if n in (3, 4): p.L(f"A_p2_it{n}")
        p.I(f"s_cmp_lt_u32 s{sNB}, {n+1}\ns_cbranch_scc1 A_p2_last{s}")
        if n in (2, 3): p.I(f"s_cmp_eq_u32 s{sHB}, {n}\ns_cbranch_scc1 A_p2_hw{n}")
        if n + 1 == 8:
            for r in range(16):
                p.I(f"v_cndmask_b32 v{NA+r}, v208, v6, {msk(r)}")
                p.I(f"v_cndmask_b32 v{NB+r}, v209, v6, {msk(r)}")
        p.I("s_waitcnt lgkmcnt(0)")
        emit(p, smm(s ^ 1, vr(NA,16), vr(NB,16)))
        if n + 2 <= 8: emit(p, kread(8 - (n + 2), s))
        emit(p, vread(8 - (n + 1), s ^ 1))
        if "wp2" in OPT:
            w0 = opt("wpn", 4)
            if n == w0: p.I(f"buffer_load_dword v251, v248, {sr(SC,4)}, 0 offen")
            if n == w0 + 1: p.I(f"buffer_load_dword v251, v249, {sr(SC,4)}, 0 offen\nbuffer_load_dword v251, v250, {sr(SD,4)}, 0 offen")
        emit(p, soft(s))
    p.L("A_p2_last0")
    p.I("s_waitcnt lgkmcnt(0)\ns_nop 7\ns_nop 3")
    emit(p, soft(0))
    p.I("s_branch A_p2_done")
    for n in (2, 3):
        s = n & 1
        p.L(f"A_p2_hw{n}")
        p.I("s_waitcnt lgkmcnt(0)")
        emit(p, soft(s))
        p.I("s_barrier")
        stamp(p, 6)
        emit(p, kread(8 - (n + 1), s ^ 1) + kread(8 - (n + 2), s) + vread(8 - (n + 1), s ^ 1))
        p.I("s_waitcnt lgkmcnt(6)")
        emit(p, smm(s ^ 1, vr(NA,16), vr(NB,16)))
        p.I(f"s_branch A_p2_it{n+1}")
    p.L("A_p2_last1")
    p.I("s_waitcnt lgkmcnt(0)\ns_nop 7\ns_nop 3")
    emit(p, soft(1))
    p.L("A_p2_done")
    p.I(f"""s_lshl_b32 s{sT0}, s{sHQ}, 1
    s_add_u32 s{sT0}, s{sT0}, s{sHP}
    s_lshl_b32 s{sT1}, s{sTB}, 15
    s_lshl_b32 s{sT2}, s{sT0}, 11
    s_add_u32 s{sT1}, s{sT1}, s{sT2}
    s_add_u32 s{sT1}, s{sT1}, {OF}
    v_add_u32 v2, s{sT1}, v3
    s_lshl_b32 s{sT1}, s{sTB}, 4
    s_add_u32 s{sT1}, s{sT1}, s{sT0}
    s_lshl_b32 s{sT1}, s{sT1}, 7
    s_add_u32 s{sT1}, s{sT1}, {FO}
    v_mov_b32 v210, {f32(2.0**64)}
    v_max_f32 v211, v{OA+8}, v{OB}
    v_add_f32 v209, v{OA+8}, v{OB}
    v_cmp_u_f32 vcc, v209, v209
    v_cmp_ngt_f32 s[10:11], v210, v211
    s_or_b64 vcc, vcc, s[10:11]
    s_cbranch_vccz A_fin
    s_cmp_eq_u32 s{sNB1}, s{sNB}
    s_cbranch_scc1 A_fin
    s_mov_b32 s{sNB1}, s{sNB}
    s_mov_b32 s{sHB}, 99
    s_branch A_p1""")
    p.L("A_fin")
    p.I(f"""v_mov_b32 v4, s{sT1}
    v_mov_b32 v5, s{sTAG}
    v_rcp_f32 v208, v{OA+8}
    v_rcp_f32 v210, v{OB}""")
    for i in range(4): p.I(f"v_pk_mul_f32 {vr(OA+2*i,2)}, {vr(OA+2*i,2)}, v[208:209] op_sel_hi:[1,0]")
    for i in range(4): p.I(f"v_pk_mul_f32 {vr(OB+8+2*i,2)}, {vr(OB+8+2*i,2)}, v[210:211] op_sel_hi:[1,0]")
    for i in range(4): p.I(f"v_cvt_pk_bf16_f32 v{160+i}, v{OA+2*i}, v{OA+2*i+1}")
    for i in range(4): p.I(f"v_cvt_pk_bf16_f32 v{164+i}, v{OB+8+2*i}, v{OB+8+2*i+1}")
    p.I(f"""buffer_store_dwordx4 v[160:163], v2, {sr(SW,4)}, 0 offen sc1
    buffer_store_dwordx4 v[164:167], v2, {sr(SW,4)}, 0 offen offset:1024 sc1""")
    stamp(p, 8)
    p.I(f"""s_waitcnt vmcnt(0)
    s_mov_b64 exec, 1
    buffer_store_dword v5, v4, {sr(SW,4)}, 0 offen sc1
    s_mov_b64 exec, -1
    s_cmp_lt_u32 s{sWV}, 4
    s_cbranch_scc0 F_load""")
    if "wpf" in OPT:
        srd(p, SB, P_W2, 1376 * 4096)
        p.I(f"""s_lshl_b32 s{sT0}, s{sK}, 2
        s_add_u32 s{sT0}, s{sT0}, s{sWV}
        v_lshrrev_b32 v250, 3, v1
        v_lshlrev_b32 v250, 12, v250
        v_and_b32 v249, 7, v1
        v_lshl_add_u32 v250, v249, 7, v250
        s_lshl_b32 s{sT1}, s{sT0}, 15
        s_lshl_b32 s{sT2}, s{sR}, 10
        s_add_u32 s{sT1}, s{sT1}, s{sT2}
        buffer_load_dword v251, v250, {sr(SB,4)}, s{sT1} offen
        s_add_u32 s{sT1}, s{sT1}, {64 << 15}
        buffer_load_dword v251, v250, {sr(SB,4)}, s{sT1} offen
        s_add_u32 s{sT1}, s{sT1}, {64 << 15}
        buffer_load_dword v251, v250, {sr(SB,4)}, s{sT1} offen""")
    p.I("s_branch F_cons2")

UBLK = opt('ublk', 8)
USLOT = 24576; UND = 6; LNP = 1088; LNS = 5 * USLOT
def gen_B(p):
    p.L("B_entry")
    if "noB" in OPT: p.I("s_endpgm")
    p.I(f"""s_lshl_b32 s{sT0}, s{sR}, 4
    s_add_u32 s{sT0}, s{sT0}, s{sK}
    s_lshr_b32 s{sFT}, s{sT0}, 2
    s_and_b32 s{sT0}, s{sT0}, 3
    s_lshl_b32 s{sDU}, s{sC}, 2
    s_add_u32 s{sDU}, s{sDU}, s{sT0}""")
    if "norot" in OPT or "norotu" in OPT: p.I("s_mov_b32 s98, 0")
    else: p.I(f"s_add_u32 s98, s{sFT}, s{sDU}\ns_and_b32 s98, s98, 3\ns_mul_i32 s98, s98, {UBLK // 4}")
    p.I(f"""s_cmp_lt_u32 s{sWV}, 4
    s_cbranch_scc1 B_cons""")
    for j in range(3):
        p.I(f"""v_add_u32 v10, {64*j}, v1
        v_mul_u32_u24 v11, 5462, v10
        v_lshrrev_b32 v11, 16, v11
        v_mul_u32_u24 v12, 12, v11
        v_sub_u32 v12, v10, v12
        s_lshl_b32 s{sT0}, s{sW4}, 5
        v_add_u32 v11, s{sT0}, v11
        v_mul_u32_u24 v11, 2752, v11
        v_lshl_add_u32 v11, v12, 4, v11
        s_mul_i32 s{sT0}, s{sFT}, 192
        s_sub_u32 s{sT0}, s{sT0}, {1024*j}
        v_add_u32 v{2+j}, s{sT0}, v11
        s_cmp_eq_u32 s{sFT}, 14
        s_cselect_b32 s{sT0}, 4, 12
        v_cmp_le_u32 vcc, s{sT0}, v12
        v_mov_b32 v13, 0x7fff0000
        v_cndmask_b32 v{2+j}, v{2+j}, v13, vcc
        v_add_u32 v{5+j}, {16*2752}, v{2+j}""")
    p.I(f"s_mul_i32 s{sM0}, s{sW4}, 6144\ns_waitcnt lgkmcnt(0)")
    srd(p, SA, P_W1, 2048 * 2752)
    srd(p, SW, P_WS, WS_USED)
    p.I(f"s_mov_b32 s{sTAG}, 0")
    def udma(n):
        L = [f"s_add_u32 m0, s{sM0}, {(n % UND) * USLOT}"]
        L += [f"s_add_u32 s{sOF}, s98, {n % UBLK}", f"s_and_b32 s{sOF}, s{sOF}, {UBLK - 1}", f"s_add_u32 s{sOF}, s{sOF}, {n - n % UBLK}", f"s_mul_i32 s{sOF}, s{sOF}, {128*2752}"]
        nt = " nt" if n >= opt("unt", 99) else ""
        L += [f"buffer_load_dwordx4 v{2+j}, {sr(SA,4)}, s{sOF} offen offset:{j*1024}{nt} lds" for j in range(3)]
        L.append(f"s_add_u32 m0, s{sM0}, {(n % UND) * USLOT + 3072}")
        L += [f"buffer_load_dwordx4 v{5+j}, {sr(SA,4)}, s{sOF} offen offset:{j*1024}{nt} lds" for j in range(3)]
        return L
    p.I(f"s_cmp_eq_u32 s{sFT}, 15\ns_cbranch_scc1 B_l_spare")
    q = VQ(p)
    UB1 = opt("ub1", 2); UB2 = opt("ub2", 6)
    p.I("s_barrier")
    for n in range(UB1): emit(p, udma(n)); q.add(f"U{n}", 6)
    stamp(p, 1)
    f_loader_setup(p)
    p.I("s_barrier")
    for n in range(UB1, UB2): emit(p, udma(n)); q.add(f"U{n}", 6)
    stamp(p, 2)
    iu = UB2; jf = 0
    def f_free(n, t):
        a, b = fslot(n), fslot(n) + 16384
        for d in range(t, 16):
            a2 = (d % UND) * USLOT
            if a < a2 + USLOT and a2 < b: return False
        return True
    jfl = [0]
    def fhook(t, done):
        while "fearly" in OPT and done and jfl[0] < FPRE and f_free(jfl[0], t):
            emit(p, f_dma(jfl[0])); q.add(f"F{jfl[0]}", 0 if "nofp" in OPT else 4); jfl[0] += 1
    paced(p, q, "U", udma, UB2, 16, UND, opt("uml", 2), fhook)
    jf = jfl[0]
    stamp(p, 3)
    p.I("s_barrier\ns_barrier\ns_barrier")
    for n in range(jf, FPRE): emit(p, f_dma(n))
    p.I("s_branch F_load")
    p.L("B_l_spare")
    stamp(p, -1)
    f_loader_setup(p)
    p.I("s_barrier\ns_barrier")
    if "nopf" not in OPT:
        p.I(f"""v_lshlrev_b32 v24, 7, v1
        s_lshl_b32 s{sT2}, s{sDU}, 2
        s_add_u32 s{sT2}, s{sT2}, s{sW4}
        s_lshl_b32 s{sOF}, s{sT2}, 14
        buffer_load_dword v30, v24, {sr(SD,4)}, s{sOF} offen
        s_add_u32 s{sOF}, s{sOF}, 8192
        buffer_load_dword v30, v24, {sr(SD,4)}, s{sOF} offen""")
    p.I("s_barrier")
    for n in range(FPRE): emit(p, f_dma(n))
    p.I("s_branch F_load")
    p.L("B_cons")
    if "cprio" in OPT: p.I("s_setprio 3")
    RAW, X, T = 32, 48, 80
    p.I(f"""s_lshl_b32 s{sT0}, s{sR}, 9
    s_lshl_b32 s{sT1}, s{sC}, 8
    s_add_u32 s{sT0}, s{sT0}, s{sT1}
    s_lshl_b32 s{sT1}, s{sK}, 4
    s_add_u32 s{sA}, s{sT0}, s{sT1}
    s_lshl_b32 s{sT1}, s{sW4}, 2
    v_lshrrev_b32 v10, 4, v1
    v_add_u32 v10, s{sT1}, v10
    v_and_b32 v11, 15, v1
    v_add_u32 v12, s{sA}, v10
    v_lshlrev_b32 v13, 10, v12
    v_lshl_add_u32 v13, v11, 4, v13
    s_waitcnt lgkmcnt(0)""")
    srd(p, SA, P_X, 0x200000)
    for k in range(4): p.I(f"buffer_load_dwordx4 {vr(RAW+4*k,4)}, v13, {sr(SA,4)}, 0 offen offset:{k*256}")
    p.I(f"v_mov_b32 v20, {LDS - 16}\nv_mov_b32 v21, 0\nds_write_b32 v20, v21\ns_waitcnt lgkmcnt(0)")
    p.I("s_barrier")
    get_tag(p)
    srd(p, SW, P_WS, WS_USED)
    p.I(f"""v_lshlrev_b32 v14, 4, v12
    v_add_u32 v14, {ST}, v14
    v_mul_u32_u24 v15, {LNP}, v10
    v_lshl_add_u32 v15, v11, 4, v15
    v_add_u32 v15, {LNS}, v15
    v_bfe_u32 v16, v1, 2, 2
    v_lshrrev_b32 v17, 5, v1
    v_lshl_add_u32 v16, v17, 3, v16
    v_mul_u32_u24 v16, {LNP}, v16
    v_bfe_u32 v17, v1, 4, 1
    v_lshl_add_u32 v16, v17, 5, v16
    v_and_b32 v17, 3, v1
    v_lshl_add_u32 v16, v17, 3, v16
    s_lshl_b32 s{sT0}, s{sW4}, 8
    s_add_u32 s{sT0}, s{sT0}, {LNS}
    v_add_u32 v16, s{sT0}, v16
    s_lshl_b32 s{sT0}, s{sW4}, 19
    s_lshl_b32 s{sT1}, s{sA}, 6
    s_add_u32 s{sT0}, s{sT0}, s{sT1}
    s_add_u32 s{sT0}, s{sT0}, {HF}
    v_lshl_add_u32 v17, v1, 4, s{sT0}
    s_lshl_b32 s{sT0}, s{sW4}, 14
    s_lshr_b32 s{sT1}, s{sA}, 5
    s_lshl_b32 s{sT1}, s{sT1}, 7
    s_add_u32 s{sT0}, s{sT0}, s{sT1}
    s_and_b32 s{sT1}, s{sA}, 16
    s_lshl_b32 s{sT1}, s{sT1}, 9
    s_add_u32 s{sT0}, s{sT0}, s{sT1}
    s_add_u32 s{sT0}, s{sT0}, {FH}
    v_mov_b32 v18, s{sT0}""")
    fin_tag(p)
    def red16(v): return [dpp_add(v, m) for m in ("quad_perm:[1,0,3,2]", "quad_perm:[2,3,0,1]", "row_half_mirror", "row_mirror")]
    def ln(first, closed=False):
        for i in range(16):
            p.I(f"v_lshlrev_b32 v{X+2*i}, 16, v{RAW+i}\nv_and_b32 v{X+2*i+1}, 0xffff0000, v{RAW+i}")
        for i in range(4): p.I(f"v_pk_add_f32 {vr(T+2*i,2)}, {vr(X+4*i,2)}, {vr(X+4*i+2,2)}")
        for i in range(8, 16): p.I(f"v_pk_add_f32 {vr(T+2*(i&3),2)}, {vr(T+2*(i&3),2)}, {vr(X+2*i,2)}")
        p.I(f"v_pk_add_f32 {vr(T,2)}, {vr(T,2)}, {vr(T+2,2)}\nv_pk_add_f32 {vr(T+4,2)}, {vr(T+4,2)}, {vr(T+6,2)}")
        p.I(f"v_pk_add_f32 {vr(T,2)}, {vr(T,2)}, {vr(T+4,2)}\nv_add_f32 v{T}, v{T}, v{T+1}")
        emit(p, red16(T))
        p.I(f"v_mul_f32 v{T+8}, {f32(-1.0/512)}, v{T}")
        for i in range(16): p.I(f"v_pk_add_f32 {vr(X+2*i,2)}, {vr(X+2*i,2)}, {vr(T+8,2)} op_sel_hi:[1,0]")
        for i in range(4): p.I(f"v_pk_mul_f32 {vr(T+2*i,2)}, {vr(X+2*i,2)}, {vr(X+2*i,2)}")
        for i in range(4, 16): p.I(f"v_pk_fma_f32 {vr(T+2*(i&3),2)}, {vr(X+2*i,2)}, {vr(X+2*i,2)}, {vr(T+2*(i&3),2)}")
        p.I(f"v_pk_add_f32 {vr(T,2)}, {vr(T,2)}, {vr(T+2,2)}\nv_pk_add_f32 {vr(T+4,2)}, {vr(T+4,2)}, {vr(T+6,2)}")
        p.I(f"v_pk_add_f32 {vr(T,2)}, {vr(T,2)}, {vr(T+4,2)}\nv_add_f32 v{T}, v{T}, v{T+1}")
        emit(p, red16(T))
        p.I(f"v_mov_b32 v{T+1}, {f32(1e-5)}\nv_fmac_f32 v{T+1}, {f32(1.0/512)}, v{T}\nv_rsq_f32 v{T+2}, v{T+1}")
        if first:
            p.I(f"""v_mov_b32 v{T+9}, v{T+2}
            v_mov_b32 v{T+10}, s{sTAG}
            v_mov_b32 v{T+11}, s{sTAG}
            s_mov_b32 exec_lo, 0x00010001
            s_mov_b32 exec_hi, 0x00010001
            buffer_store_dwordx4 {vr(T+8,4)}, v14, {sr(SW,4)}, 0 offen sc1
            s_mov_b64 exec, -1""")
        if closed:
            p.I(f"""v_mul_f32 v{T+3}, v{T+2}, v{T+2}
            v_mul_f32 v{T+3}, v{T+3}, v{T}
            v_mov_b32 v{T+4}, {f32(1e-5)}
            v_fmac_f32 v{T+4}, {f32(1.0/512)}, v{T+3}
            v_rsq_f32 v{T+4}, v{T+4}
            v_mul_f32 v{T+2}, v{T+2}, v{T+4}""")
        for i in range(16): p.I(f"v_pk_mul_f32 {vr(X+2*i,2)}, {vr(X+2*i,2)}, {vr(T+2,2)} op_sel_hi:[1,0]")
        for i in range(16): p.I(f"v_cvt_pk_bf16_f32 v{RAW+i}, v{X+2*i}, v{X+2*i+1}")
    stamp(p, 1)
    p.I("s_waitcnt vmcnt(0)")
    stamp(p, 2)
    if "cf2" in OPT: ln(True, True)
    else: ln(True); ln(False)
    for k in range(4): p.I(f"ds_write_b128 v15, {vr(RAW+4*k,4)} offset:{k*256}")
    p.I(f"""v_mov_b32 v21, 1
    s_waitcnt lgkmcnt(0)
    s_mov_b64 exec, 1
    ds_add_u32 v20, v21
    s_mov_b64 exec, -1
    s_mov_b32 s{sSPIN}, 0""")
    p.L("B_lnsync")
    p.I(f"""ds_read_b32 v21, v20
    s_add_u32 s{sSPIN}, s{sSPIN}, 1
    s_waitcnt lgkmcnt(0)
    v_readfirstlane_b32 s{sT0}, v21
    s_cmp_ge_u32 s{sSPIN}, {SPIN_MAX}
    s_cbranch_scc1 B_lnsync_ok
    s_cmp_lt_u32 s{sT0}, 4
    s_cbranch_scc1 B_lnsync""")
    p.L("B_lnsync_ok")
    for i in range(4):
        for tt in range(2): p.I(f"ds_read_b64_tr_b16 {vr(X+4*i+2*tt,2)}, v16 offset:{tt*4*LNP + i*64}")
    p.I(f"v_mov_b32 v19, s{sTAG}")
    for i in range(4):
        p.I(f"s_mov_b32 s{sT0}, {i << 17}\ns_waitcnt lgkmcnt({6 - 2*i})")
        p.I(f"buffer_store_dwordx4 {vr(X+4*i,4)}, v17, {sr(SW,4)}, s{sT0} offen sc1")
    if "b2late" not in OPT: p.I("s_barrier")
    stamp(p, 3)
    p.I(f"""s_waitcnt vmcnt(0)
    s_mov_b64 exec, 1
    buffer_store_dword v19, v18, {sr(SW,4)}, 0 offen sc1
    s_mov_b64 exec, -1""")
    if "b2late" in OPT: p.I("s_barrier")
    stamp(p, 4)
    p.I(f"s_cmp_eq_u32 s{sFT}, 15\ns_cbranch_scc1 F_cons")
    AK, AM, AS, TB, LB = 16, 32, 48, 64, 100
    NL = opt("nlu", 12)
    TA = [[2, 3, 4], [5, 6, 7], [8, 9, 10]]
    BI = 180
    p.I(f"""s_and_b32 s{sA}, s{sW4}, 1
    s_lshr_b32 s{sB}, s{sW4}, 1
    v_lshrrev_b32 v15, 5, v1
    s_mul_i32 s{sT0}, s{sFT}, 192
    s_lshl_b32 s{sT1}, s{sA}, 7
    s_add_u32 s{sT1}, s{sT1}, s{sT0}
    v_lshl_add_u32 v12, v15, 3, s{sT1}
    s_lshl_b32 s{sT1}, s{sA}, 5
    s_add_u32 s{sT1}, s{sT1}, s{sT0}
    s_add_u32 s{sT1}, s{sT1}, 64
    v_lshl_add_u32 v13, v15, 3, s{sT1}""")
    srd(p, SB, P_B1, 2752)
    for g in range(4): p.I(f"buffer_load_dwordx2 {vr(BI+2*g,2)}, v12, {sr(SB,4)}, 0 offen offset:{16*g}")
    for g in range(2): p.I(f"buffer_load_dwordx2 {vr(BI+8+2*g,2)}, v13, {sr(SB,4)}, 0 offen offset:{16*g}")
    p.I(f"""s_lshr_b32 s{sT0}, s{sDU}, 1
    s_lshl_b32 s{sT0}, s{sT0}, 14
    s_add_u32 s{sT0}, s{sT0}, {FH}
    s_lshl_b32 s{sT1}, s{sA}, 13
    s_add_u32 s{sT0}, s{sT0}, s{sT1}
    v_lshl_add_u32 v12, v1, 7, s{sT0}
    s_lshl_b32 s{sT1}, s98, 9
    s_add_u32 s{sT3}, s{sT0}, s{sT1}
    s_lshl_b32 s{sT0}, s{sDU}, 1
    s_add_u32 s{sT0}, s{sT0}, s{sB}
    s_lshl_b32 s{sT0}, s{sT0}, 17
    s_lshl_b32 s{sT1}, s{sA}, 10
    s_add_u32 s{sT0}, s{sT0}, s{sT1}
    s_add_u32 s{sT0}, s{sT0}, {HF}
    v_lshl_add_u32 v11, v1, 4, s{sT0}
    v_bfe_u32 v13, v1, 2, 2
    v_lshl_add_u32 v13, v15, 3, v13
    v_mul_u32_u24 v13, 192, v13
    v_bfe_u32 v14, v1, 4, 1
    v_lshl_add_u32 v13, v14, 5, v13
    v_and_b32 v14, 3, v1
    v_lshl_add_u32 v13, v14, 3, v13
    s_mul_i32 s{sT0}, s{sA}, {16*192}
    s_add_u32 s{sT1}, s{sT0}, 64
    v_add_u32 v5, s{sT1}, v13
    s_lshl_b32 s{sT1}, s{sA}, 7
    s_add_u32 s{sT2}, s{sT0}, s{sT1}
    v_add_u32 v2, s{sT2}, v13
    s_sub_u32 s{sT2}, s{sT0}, s{sT1}
    s_add_u32 s{sT2}, s{sT2}, 128
    v_add_u32 v8, s{sT2}, v13""")
    for b in range(3):
        p.I(f"v_add_u32 v{TA[b][1]}, 0x10000, v{TA[b][0]}\nv_add_u32 v{TA[b][2]}, 0x20000, v{TA[b][0]}")
    q = VQ(p)
    q.add("BI", 6)
    if "vpoll" in OPT: poll(p, "B_pollh", 12, 14)
    else: spoll(p, "B_pollh", sT3, 16)
    stamp(p, 5)
    def lload(g):
        if g == 8 and "vpoll" not in OPT:
            p.I(f"buffer_load_dword v14, v12, {sr(SW,4)}, 0 offen sc1"); q.add("PH")
        if g == 16 and "vpoll" not in OPT:
            q.wait("PH")
            if "nopoll" not in OPT:
                p.I(f"v_cmp_ne_u32 vcc, s{sTAG}, v14\ns_cbranch_vccz B_pollh2_ok")
            poll(p, "B_pollh2", 12, 14)
        if g % 4 == 0:
            n = g // 4
            p.I(f"s_add_u32 s{sOF}, s98, {n % UBLK}\ns_and_b32 s{sOF}, s{sOF}, {UBLK - 1}\ns_add_u32 s{sOF}, s{sOF}, {n - n % UBLK}\ns_lshl_b32 s{sOF}, s{sOF}, 13")
        elif g % 2 == 0:
            p.I(f"s_add_u32 s{sOF}, s{sOF}, 4096")
        if "noL" in OPT and g >= NL: return
        p.I(f"buffer_load_dwordx4 {vr(LB+4*(g % NL),4)}, v11, {sr(SW,4)}, s{sOF} offen offset:{(g & 1) * 2048} sc1")
        q.add(f"L{g}")
    def treads(g):
        n, i = g >> 2, g & 3
        o = (n % UND) * USLOT + i * 32 * 192
        return [f"ds_read_b64_tr_b16 {vr(TB+12*(g%3)+4*b+2*tt,2)}, " + lds_ref(TA[b], o + tt * 4 * 192) for b in range(3) for tt in range(2)]
    for g in range(NL): lload(g)
    q.wait("BI")
    for i in range(8):
        p.I(f"v_lshlrev_b32 v{AK+2*i}, 16, v{BI+i}\nv_and_b32 v{AK+2*i+1}, 0xffff0000, v{BI+i}")
    p.I("s_barrier")
    emit(p, treads(0) + treads(1))
    G = 64
    for g in range(G):
        Lr = vr(LB + 4 * (g % NL), 4)
        M = [f"{MFMA} {vr(a,16)}, {vr(TB+12*(g%3)+4*b,4)}, {Lr}, {'0' if (g == 0 and b > 0) else vr(a,16)}" for b, a in enumerate((AK, AM, AS))]
        nxt = g + 2
        p.I(f"s_waitcnt lgkmcnt({6 if g + 1 < G else 0})")
        q.wait(f"L{g}")
        if "ust" in OPT and g % 16 == 0: stamp(p, 9 + g // 16)
        p.I(M[0])
        if nxt < G:
            if nxt % 4 == 0: p.I("s_waitcnt lgkmcnt(0)\ns_barrier")
            R = treads(nxt)
            if "noR" in OPT: R = []
            if "r222" in OPT: emit(p, R[:2] + [M[1]] + R[2:4] + [M[2]] + R[4:])
            else: emit(p, R[:3] + [M[1]] + R[3:] + [M[2]])
        else: emit(p, M[1:])
        if "lbunch" in OPT:
            if g % 4 in (0, 1):
                for gg in (g + NL + (g % 4), g + NL + (g % 4) + 1):
                    if gg - 2 < G and gg - 2 >= NL: lload(gg - 2)
        elif g + NL < G: lload(g + NL)
    stamp(p, 6)
    RSC = (15 % UND) * USLOT
    c1 = -2.0 * math.sqrt(2.0 / math.pi) * LOG2E
    c2 = c1 * 0.044715
    p.I(f"""s_mul_i32 s{sT0}, s{sW4}, 6144
    s_add_u32 s{sT0}, s{sT0}, {RSC}
    v_lshl_add_u32 v2, v1, 4, s{sT0}
    s_xor_b32 s{sT0}, s{sW4}, 1
    s_mul_i32 s{sT0}, s{sT0}, 6144
    s_add_u32 s{sT0}, s{sT0}, {RSC}
    v_lshl_add_u32 v3, v1, 4, s{sT0}
    s_cmp_eq_u32 s{sA}, 1
    s_cselect_b64 s[32:33], -1, 0
    s_barrier""")
    MK, MS = 64, 72
    for i in range(8):
        p.I(f"v_cndmask_b32 v{MS+i}, v{AM+8+i}, v{AM+i}, s[32:33]")
        p.I(f"v_cndmask_b32 v{MK+i}, v{AM+i}, v{AM+8+i}, s[32:33]")
    for k in range(2): p.I(f"ds_write_b128 v3, {vr(MS+4*k,4)} offset:{4096+k*1024}")
    for k in range(4): p.I(f"ds_write_b128 v3, {vr(AS+4*k,4)} offset:{k*1024}")
    for i in range(4):
        p.I(f"v_lshlrev_b32 v{AM+2*i}, 16, v{BI+8+i}\nv_and_b32 v{AM+2*i+1}, 0xffff0000, v{BI+8+i}")
    for i in range(4): p.I(f"v_pk_add_f32 {vr(AM+2*i,2)}, {vr(AM+2*i,2)}, {vr(MK+2*i,2)}")
    p.I(f"""s_mov_b32 s34, {f32(c2)}
    s_mov_b32 s35, {f32(c2)}
    v_mov_b32 v12, {f32(c1)}
    v_mov_b32 v13, {f32(c1)}
    s_lshl_b32 s{sT0}, s{sDU}, 1
    s_add_u32 s{sT0}, s{sT0}, s{sB}
    s_mul_i32 s{sT1}, s{sT0}, {GFS}
    s_mul_i32 s{sT2}, s{sFT}, 6
    s_add_u32 s{sT1}, s{sT1}, s{sT2}
    s_lshl_b32 s{sT1}, s{sT1}, 10
    s_add_u32 s{sT1}, s{sT1}, {GF}
    v_lshl_add_u32 v14, v1, 4, s{sT1}
    s_lshl_b32 s36, s{sA}, 12
    s_lshl_b32 s37, s{sA}, 10
    s_add_u32 s37, s37, 2048
    s_lshl_b32 s{sT0}, s{sT0}, 5
    s_lshl_b32 s{sT1}, s{sFT}, 1
    s_add_u32 s{sT0}, s{sT0}, s{sT1}
    s_add_u32 s{sT0}, s{sT0}, s{sA}
    s_lshl_b32 s{sT0}, s{sT0}, 7
    s_add_u32 s{sT0}, s{sT0}, {FG}
    v_mov_b32 v15, s{sT0}
    v_mov_b32 v11, s{sTAG}
    s_cmp_eq_u32 s{sFT}, 14
    s_cselect_b32 s38, 0, -1
    s_waitcnt lgkmcnt(0)
    s_barrier""")
    E = 64
    for k in range(6): p.I(f"ds_read_b128 {vr(E+4*k,4)}, v2 offset:{k*1024}")
    p.I("s_waitcnt lgkmcnt(0)")
    U = AK
    for i in range(12): p.I(f"v_pk_add_f32 {vr(U+2*i,2)}, {vr(U+2*i,2)}, {vr(E+2*i,2)}")
    for i in range(12): p.I(f"v_pk_mul_f32 {vr(E+2*i,2)}, {vr(U+2*i,2)}, {vr(U+2*i,2)}")
    for i in range(12): p.I(f"v_pk_fma_f32 {vr(E+2*i,2)}, {vr(E+2*i,2)}, s[34:35], v[12:13]")
    for i in range(12): p.I(f"v_pk_mul_f32 {vr(E+2*i,2)}, {vr(E+2*i,2)}, {vr(U+2*i,2)}")
    for i in range(24): p.I(f"v_exp_f32 v{E+i}, v{E+i}")
    for i in range(12): p.I(f"v_pk_add_f32 {vr(E+2*i,2)}, {vr(E+2*i,2)}, 1.0 op_sel_hi:[1,0]")
    for i in range(24): p.I(f"v_rcp_f32 v{E+i}, v{E+i}")
    for i in range(12): p.I(f"v_pk_mul_f32 {vr(E+2*i,2)}, {vr(E+2*i,2)}, {vr(U+2*i,2)}")
    for i in range(12): p.I(f"v_cvt_pk_bf16_f32 v{48+i}, v{E+2*i}, v{E+2*i+1}")
    for i in range(4): p.I(f"v_and_b32 v{56+i}, s38, v{56+i}")
    p.I(f"""buffer_store_dwordx4 v[48:51], v14, {sr(SW,4)}, s36 offen sc1
    buffer_store_dwordx4 v[52:55], v14, {sr(SW,4)}, s36 offen offset:1024 sc1
    buffer_store_dwordx4 v[56:59], v14, {sr(SW,4)}, s37 offen sc1""")
    stamp(p, 7)
    p.I(f"""s_waitcnt vmcnt(0)
    s_mov_b64 exec, 1
    buffer_store_dword v11, v15, {sr(SW,4)}, 0 offen sc1
    s_mov_b64 exec, -1""")
    stamp(p, 8)

def gen_F(p):
    p.L("F_cons")
    p.I("s_barrier")
    p.L("F_cons2")
    if "noF" in OPT:
        stamp_out(p, 14); p.I("s_endpgm")
    A0, A1, A2, TB, LB = 16, 32, 48, 64, 88
    NL = opt("nlf", 12)
    TA = [[2, 3, 4], [5, 6, 7]]
    p.I(f"""s_and_b32 s{sA}, s{sW4}, 1
    s_lshr_b32 s{sB}, s{sW4}, 1
    v_lshrrev_b32 v9, 5, v1
    s_lshl_b32 s{sT0}, s{sST}, 6
    s_lshl_b32 s{sT1}, s{sB}, 5
    s_add_u32 s{sT0}, s{sT0}, s{sT1}
    v_and_b32 v10, 31, v1
    v_add_u32 v10, s{sT0}, v10
    v_lshlrev_b32 v11, 1, v10
    v_lshlrev_b32 v14, 10, v10
    s_lshl_b32 s{sT0}, s{sDT}, 7
    s_lshl_b32 s{sT1}, s{sA}, 6
    s_add_u32 s{sT0}, s{sT0}, s{sT1}
    v_add_u32 v14, s{sT0}, v14
    v_lshl_add_u32 v15, v9, 4, v14
    v_lshl_add_u32 v14, v9, 3, v14""")
    srd(p, SA, P_X, 0x200000); srd(p, SB, P_B2, 4096)
    for g in range(4): p.I(f"buffer_load_dwordx2 {vr(TB+2*g,2)}, v14, {sr(SA,4)}, 0 offen offset:{16*g}")
    p.I(f"buffer_load_ushort v{TB+8}, v11, {sr(SB,4)}, 0 offen")
    p.I(f"""v_bfe_u32 v10, v1, 4, 1
    v_lshlrev_b32 v10, 1, v10
    v_bfe_u32 v11, v1, 1, 1
    v_add_u32 v10, v10, v11
    v_bfe_u32 v11, v1, 3, 1
    v_lshl_add_u32 v10, v11, 2, v10
    v_lshlrev_b32 v10, 4, v10
    v_and_b32 v11, 1, v1
    v_lshl_add_u32 v10, v11, 3, v10
    v_bfe_u32 v11, v1, 2, 2
    v_lshl_add_u32 v10, v11, 7, v10
    v_lshl_add_u32 v8, v9, 9, v10
    s_lshl_b32 s{sT0}, s{sDT}, 1
    s_add_u32 s{sT0}, s{sT0}, s{sA}
    s_lshl_b32 s{sT1}, s{sT0}, 12
    s_add_u32 s{sT1}, s{sT1}, {FG}
    v_lshl_add_u32 v12, v1, 7, s{sT1}
    s_mov_b32 s{sT3}, s{sT1}
    s_mul_i32 s{sT0}, s{sT0}, {GFS*1024}
    s_lshl_b32 s{sT1}, s{sB}, 10
    s_add_u32 s{sT0}, s{sT0}, s{sT1}
    s_add_u32 s{sT0}, s{sT0}, {GF}
    v_lshl_add_u32 v10, v1, 4, s{sT0}
    s_lshl_b32 s{sT0}, s{sST}, 1
    s_add_u32 s{sT0}, s{sT0}, s{sB}
    s_lshl_b32 s{sT1}, s{sT0}, 11
    s_add_u32 s{sT1}, s{sT1}, {FO}
    v_lshl_add_u32 v13, v1, 7, s{sT1}
    s_lshl_b32 s{sT0}, s{sT0}, 15
    s_lshl_b32 s{sT1}, s{sA}, 10
    s_add_u32 s{sT0}, s{sT0}, s{sT1}
    s_add_u32 s{sT0}, s{sT0}, {OF}
    v_lshl_add_u32 v11, v1, 4, s{sT0}""")
    def set_taddr(skh):
        return [f"s_mul_i32 s{sT0}, s{skh}, {2048 + 64}", f"v_xor_b32 v2, s{sT0}, v8", "v_xor_b32 v5, 64, v2",
                "v_add_u32 v3, 0x10000, v2", "v_add_u32 v4, 0x20000, v2", "v_add_u32 v6, 0x10000, v5", "v_add_u32 v7, 0x20000, v5"]
    P0, P1 = ("O", "Y") if OFIRST else ("Y", "O")
    KH = {"Y": sB, "O": sA}; NFL = {"Y": 30, "O": 16}; VFL = {"Y": 12, "O": 13}; VL = {"Y": 10, "O": 11}; ACC1 = {"Y": A1, "O": A2}
    G0, G = 4 * FCNT[P0], 60
    emit(p, set_taddr(KH[P0]))
    p.I(f"""s_lshl_b32 s{sT0}, s{sW4}, 12
    s_add_u32 s{sT0}, s{sT0}, 16384
    v_lshl_add_u32 v9, v1, 4, s{sT0}
    v_xor_b32 v246, 8192, v9
    v_xor_b32 v247, 4096, v9""")
    XW = {"Y": (246, 0), "O": (247, 16384)}
    stamp(p, 9)
    q = VQ(p)
    q.add("XB", 5)
    set_exec(p, NFL[P0])
    poll(p, "F_poll0", VFL[P0], 14, 1, opt("gsl", 2))
    stamp(p, 10)
    part_of = lambda g: (P0, g) if g < G0 else (P1, g - G0)
    def lload(g):
        part, gg = part_of(g)
        if g == G0:
            stamp(p, 11)
            q.wait("PO")
            set_exec(p, NFL[P1])
            if "nopoll" not in OPT:
                p.I(f"v_cmp_ne_u32 vcc, s{sTAG}, v14\ns_cbranch_vccz F_poll1_ok")
            poll(p, "F_poll1", VFL[P1], 14, 1, opt("gsl", 2))
            stamp(p, 12)
        if g == G0 - opt("poe", 6):
            set_exec(p, NFL[P1])
            p.I(f"buffer_load_dword v14, v{VFL[P1]}, {sr(SW,4)}, 0 offen sc1\ns_mov_b64 exec, -1")
            q.add("PO")
        if gg == 0: p.I(f"s_lshl_b32 s{sOF}, s{sROT[part]}, 13")
        elif gg % 2 == 0:
            p.I(f"s_add_u32 s{sOF}, s{sOF}, 4096")
            if gg % 4 == 0: p.I(f"s_cmp_eq_u32 s{sOF}, {FCNT[part] * 8192}\ns_cselect_b32 s{sOF}, 0, s{sOF}")
        p.I(f"buffer_load_dwordx4 {vr(LB+4*(g % NR),4)}, v{VL[part]}, {sr(SW,4)}, s{sOF} offen offset:{(gg & 1) * 2048} sc1")
        q.add(f"L{g}")
    def treads(g):
        n, i = g >> 2, g & 3
        o = fslot(n) + i * 4096
        L = set_taddr(KH[P1]) if g == G0 else []
        return L + [f"ds_read_b64_tr_b16 {vr(TB+8*(g%3)+4*b+2*tt,2)}, " + lds_ref(TA[b], o + tt * 1024) for b in range(2) for tt in range(2)]
    NR = 32
    FB1 = opt("fb1", 8)
    def upto(g):
        u = g + 1 + NL
        if OFIRST:
            if g < 0: u = G0
            elif g + 1 + NL <= G0: u = G0
            else: u = max(u, min(G0 + FB1 + (g + NL - G0), g + 1 + opt("nl2", 16)))
        return min(G, u, g + 1 + NR)
    il = 0
    while il < upto(-1): lload(il); il += 1
    q.wait("XB")
    p.I(f"v_lshlrev_b32 v{TB+8}, 16, v{TB+8}")
    for i in range(8):
        p.I(f"v_lshlrev_b32 v{A0+2*i}, 16, v{TB+i}\nv_and_b32 v{A0+2*i+1}, 0xffff0000, v{TB+i}")
    for i in range(16): p.I(f"v_add_f32 v{A0+i}, v{A0+i}, v{TB+8}")
    p.I("s_barrier")
    emit(p, treads(0) + treads(1))
    EX = 224
    for g in range(G):
        part, gg = part_of(g)
        Lr = vr(LB + 4 * (g % NR), 4)
        M = []
        for blk in range(2):
            acc = A0 if blk == 0 else ACC1[part]
            T = vr(TB + 8 * (g % 3) + 4 * blk, 4)
            a, b = (Lr, T) if part == "Y" else (T, Lr)
            c = "0" if (blk == 1 and gg == 0) else vr(acc, 16)
            M.append(f"{MFMA} {vr(acc,16)}, {a}, {b}, {c}")
        nxt = g + 2
        p.I(f"s_waitcnt lgkmcnt({4 if g + 1 < G else 0})")
        q.wait(f"L{g}")
        p.I(M[0])
        if nxt < G:
            if nxt == 52:
                for k in range(4): p.I(f"ds_write_b128 v{XW[P0][0]}, {vr(ACC1[P0]+4*k,4)} offset:{XW[P0][1] + k*1024}")
            if nxt % 4 == 0: p.I("s_waitcnt lgkmcnt(0)\ns_barrier")
            if nxt == 52:
                for k in range(4): p.I(f"ds_read_b128 {vr(EX+4*k,4)}, v9 offset:{XW[P0][1] + k*1024}")
            emit(p, treads(nxt))
        p.I(M[1])
        while il < upto(g): lload(il); il += 1
    stamp(p, 13)
    srd(p, SA, P_OUT, 0x200000)
    for k in range(4): p.I(f"ds_write_b128 v{XW[P1][0]}, {vr(ACC1[P1]+4*k,4)} offset:{XW[P1][1] + k*1024}")
    for i in range(8): p.I(f"v_pk_add_f32 {vr(A0+2*i,2)}, {vr(A0+2*i,2)}, {vr(EX+2*i,2)}")
    p.I("s_waitcnt lgkmcnt(0)\ns_barrier")
    for k in range(4): p.I(f"ds_read_b128 {vr(EX+4*k,4)}, v9 offset:{XW[P1][1] + k*1024}")
    p.I("s_waitcnt lgkmcnt(0)")
    for i in range(8): p.I(f"v_pk_add_f32 {vr(A0+2*i,2)}, {vr(A0+2*i,2)}, {vr(EX+2*i,2)}")
    for i in range(8): p.I(f"v_cvt_pk_bf16_f32 v{32+i}, v{A0+2*i}, v{A0+2*i+1}")
    p.I(f"""v_permlane32_swap_b32 v32, v34
    v_permlane32_swap_b32 v33, v35
    v_permlane32_swap_b32 v36, v38
    v_permlane32_swap_b32 v37, v39
    buffer_store_dwordx4 v[32:35], v15, {sr(SA,4)}, 0 offen
    buffer_store_dwordx4 v[36:39], v15, {sr(SA,4)}, 0 offen offset:32""")
    stamp_out(p, 14)
    p.I("s_endpgm")
    p.L("F_load")
    if "noF" in OPT:
        stamp_out(p, 14); p.I("s_endpgm")
    stamp(p, 9)
    p.I(f"""s_lshl_b32 s{sT0}, s2, 3
    s_add_u32 s{sT0}, s{sT0}, s{sWV}
    s_cmp_lg_u32 s{sT0}, 4
    s_cbranch_scc1 F_l_go
    v_lshlrev_b32 v2, 7, v1
    v_add_u32 v2, {FH}, v2
    v_add_u32 v3, 8192, v2
    v_lshrrev_b32 v4, 4, v1
    v_lshlrev_b32 v4, 13, v4
    v_and_b32 v5, 15, v1
    v_lshl_add_u32 v4, v5, 8, v4
    v_add_u32 v4, {FK}, v4
    v_add_u32 v5, 32768, v4""")
    for i in range(4): poll(p, f"F_ep{i}", 2 + i, 6)
    p.I(f"""v_mov_b32 v2, {FLG}
    v_mov_b32 v3, s{sTAG}
    s_mov_b64 exec, 1
    buffer_store_dword v3, v2, {sr(SW,4)}, 0 offen
    s_mov_b64 exec, -1""")
    p.L("F_l_go")
    if "aprio" in OPT: p.I("s_setprio 0")
    nf = len(FSEQ)
    p.I("s_bitcmp0_b32 s2, 3\ns_cbranch_scc1 F_l_A")
    for role, pre, burst in (("B", FPRE, opt("fbb", FND - 1)), ("A", FPA, 4)):
        if role == "A": p.L("F_l_A")
        q = VQ(p)
        for n in range(pre): q.add(f"F{n}", 4)
        for n in range(pre, burst): emit(p, f_dma(n)); q.add(f"F{n}", 4)
        paced(p, q, "F", f_dma, burst, nf, FND, opt("fml", 2))
        if role == "B": p.I("s_branch F_l_end")
    p.L("F_l_end")
    stamp_out(p, 14)

def main():
    hdr = open("hdr.txt").read().split("; Override launch")[0]
    out = hdr + f"; @launch grid=(256,1,1) block=(512,1,1) lds={LDS}\n"
    out += '.amdgcn_target "amdgcn-amd-amdhsa--gfx950"\n.text\n'
    p = Prog(); gen(p); out += p.finalize()
    out += "CODE_END:\n.fill 1400, 4, 0xbf800000\n"
    out += f""".section .rodata,"a"
.p2align 6
.amdhsa_kernel {NAME}
  .amdhsa_next_free_vgpr 256
  .amdhsa_next_free_sgpr 102
  .amdhsa_accum_offset 256
  .amdhsa_group_segment_fixed_size 0
  .amdhsa_kernarg_size 88
  .amdhsa_user_sgpr_count 2
  .amdhsa_user_sgpr_kernarg_segment_ptr 1
  .amdhsa_system_sgpr_workgroup_id_x 1
.end_amdhsa_kernel
"""
    if "nokv" in OPT:
        out = "\n".join(l for l in out.split("\n") if not (l.strip().startswith("buffer_store_dwordx4") and (", v20," in l or ", v21," in l)))
    open(sys.argv[1], "w").write(out)
main()
```

```python
import sys, math, struct, re
from asmlib import Prog

NAME = "parallel_sum__sliding_block__mixer_token_mlp__prompt_kernel"
HF, KF, VF, GF, OF = 0x0, 0x200000, 0x400000, 0x600000, 0x800000
FLG = 0xA00000
ST = FLG + 0x1000
FH = ST + 0x8000
FK = FH + 0x10000
FG = FK + 0x10000
FO = FG + 0x10000
WS_USED = FO + 0x20000
GFS = 90
LDS = 163840
def f32(x): return "0x%08x" % struct.unpack("<I", struct.pack("<f", x))[0]
LOG2E = 1.4426950408889634
MFMA = "v_mfma_f32_32x32x16_bf16"
MFMA16 = "v_mfma_f32_16x16x32_bf16"
def vr(a, n): return f"v[{a}:{a+n-1}]"
def sr(a, n): return f"s[{a}:{a+n-1}]"
OPT = sys.argv[2:]
STAMP = "--stamp" in OPT
def opt(name, default):
    for o in OPT:
        if o.startswith(name + "="): return int(o.split("=")[1])
    return default
SPIN_MAX = 100000
OSF = {0: '', 1: ' sc1', 2: ' nt', 3: ' sc0 sc1', 4: ' sc1 nt'}[opt('osf', 0)]
P_X, P_WQKV, P_WO, P_W1, P_B1, P_W2, P_B2, P_OUT, P_DBG, P_WS = 64, 66, 68, 72, 74, 76, 78, 80, 82, 84
SA, SB, SW, SC, SD = 4, 8, 12, 16, 20
sWV, sW4, sR, sC, sK, sST, sDT, sTAG = 3, 24, 25, 26, 27, 29, 30, 31
sT0, sT1, sT2, sT3 = 28, 86, 87, 88
sM0, sOF, sA, sB, sSPIN, sFT, sDU, sHQ, sRT, sN = 89, 90, 91, 92, 93, 94, 95, 94, 95, 96
VST = 255

def emit(p, L):
    for x in L: p.I(x)
def stamp(p, idx):
    if not STAMP: return
    if idx == 0: return
    if idx == 1 or idx == -1:
        p.I("s_waitcnt lgkmcnt(0)")
        p.I(f"v_writelane_b32 v{VST}, s58, 0")
        if idx == -1: return
    p.I("s_memtime s[100:101]" if "cyc" in OPT else "s_memrealtime s[100:101]")
    p.I("s_waitcnt lgkmcnt(0)")
    p.I(f"v_writelane_b32 v{VST}, s100, {idx}")
def stamp_out(p, n):
    if not STAMP: return
    p.I("s_waitcnt vmcnt(0)")
    stamp(p, n)
    p.I(f"""s_lshl_b32 s98, s2, 3
    s_add_u32 s98, s98, s{sWV}
    s_lshl_b32 s98, s98, 6
    s_add_u32 s98, s98, 0x1000000
    v_lshl_add_u32 v2, v1, 2, s98
    s_mov_b64 exec, 0xffff
    global_store_dword v2, v{VST}, {sr(P_WS,2)}""")
def dpp_add(v, m): return f"v_add_f32_dpp v{v}, v{v}, v{v} {m} row_mask:0xf bank_mask:0xf"
def interleave(main, fill, upto=None):
    out = []; n = upto or len(main); k = 0
    for i, m in enumerate(main):
        out.append(m)
        tgt = min(len(fill), (len(fill) * (i + 1) + n - 1) // n)
        while k < tgt: out.append(fill[k]); k += 1
    return out
def srd(p, s, ptr, size):
    p.I(f"s_mov_b32 s{s}, s{ptr}\ns_mov_b32 s{s+1}, s{ptr+1}\ns_mov_b32 s{s+2}, {size}\ns_mov_b32 s{s+3}, 0x00020000")
def set_exec(p, nl):
    m = (1 << nl) - 1
    p.I(f"s_mov_b32 exec_lo, {hex(m & 0xffffffff)}\ns_mov_b32 exec_hi, {hex(m >> 32)}")
def poll(p, lab, vaddr, vdat, ndw=1, sleep=2):
    if "nopoll" in OPT:
        p.I("s_waitcnt vmcnt(0)\ns_mov_b64 exec, -1"); return
    ld = {1: "dword", 2: "dwordx2"}[ndw]
    p.I(f"s_mov_b32 s{sSPIN}, 0")
    p.L(lab)
    p.I(f"buffer_load_{ld} {'v%d' % vdat if ndw == 1 else vr(vdat, ndw)}, v{vaddr}, {sr(SW,4)}, 0 offen sc1")
    p.I(f"s_add_u32 s{sSPIN}, s{sSPIN}, 1")
    p.I("s_waitcnt vmcnt(0)")
    if ndw == 2:
        p.I(f"v_xor_b32 v{vdat}, s{sTAG}, v{vdat}\nv_xor_b32 v{vdat+1}, s{sTAG}, v{vdat+1}\nv_or_b32 v{vdat}, v{vdat}, v{vdat+1}\nv_cmp_ne_u32 vcc, 0, v{vdat}")
    else:
        p.I(f"v_cmp_ne_u32 vcc, s{sTAG}, v{vdat}")
    p.I(f"""s_cmp_ge_u32 s{sSPIN}, {SPIN_MAX}
    s_cbranch_scc1 {lab}_ok
    s_cbranch_vccz {lab}_ok
    s_sleep {sleep}
    s_branch {lab}""")
    p.L(lab + "_ok")
    p.I("s_mov_b64 exec, -1")
def spoll(p, lab, soff, n, sleep=1):
    if "nopoll" in OPT: return
    tp = 100
    p.I(f"s_add_u32 s62, s{P_WS}, s{soff}\ns_addc_u32 s63, s{P_WS+1}, 0")
    p.I(f"s_mov_b32 s{sSPIN}, 0\ns_mov_b32 s{tp}, s{sTAG}\ns_mov_b32 s{tp+1}, s{sTAG}")
    p.L(lab)
    for i in range(n): p.I(f"s_load_dword s{32+i}, s[62:63], {i*128} glc")
    p.I(f"s_add_u32 s{sSPIN}, s{sSPIN}, 1")
    p.I("s_waitcnt lgkmcnt(0)")
    for i in range(n // 2): p.I(f"s_xor_b64 {sr(32+2*i,2)}, {sr(32+2*i,2)}, {sr(tp,2)}")
    for i in range(1, n // 2): p.I(f"s_or_b64 s[32:33], s[32:33], {sr(32+2*i,2)}")
    p.I(f"""s_cbranch_scc0 {lab}_ok
    s_cmp_ge_u32 s{sSPIN}, {SPIN_MAX}
    s_cbranch_scc1 {lab}_ok
    s_sleep {sleep}
    s_branch {lab}""")
    p.L(lab + "_ok")
class VQ:
    def __init__(self, p): self.p = p; self.q = []
    def add(self, tag, n=1): self.q += [tag] * n
    def wait(self, tag):
        if tag not in self.q: return
        idx = max(i for i, x in enumerate(self.q) if x == tag)
        self.p.I(f"s_waitcnt vmcnt({min(63, len(self.q) - 1 - idx)})")
        del self.q[:idx + 1]
    def clear(self): self.q = []
def lds_ref(regs, off):
    return f"v{regs[off >> 16]} offset:{off & 0xffff}"
def get_tag(p):
    p.I(f"s_mov_b32 s{sT0}, {FLG}\ns_load_dword s{sTAG}, {sr(P_WS,2)}, s{sT0}")
def fin_tag(p):
    p.I(f"s_waitcnt lgkmcnt(0)\ns_add_u32 s{sTAG}, s{sTAG}, 1")

FND = 10
fslot = lambda n: ((n + 8) % FND) * 16384
FY, FOP = [("Y", k, 4096) for k in range(11)], [("O", k, 1024) for k in range(4)]
OFIRST = "yfirst" not in OPT
FSEQ = FOP + FY if OFIRST else FY + FOP
FCNT = {"Y": 11, "O": 4, "U": 16}
sROT = {"Y": 97, "O": 99, "U": 98}
FV = {"Y": 240, "O": 244}
FSRD = {"Y": SC, "O": SD}
def f_loader_setup(p):
    srd(p, SC, P_W2, 1376 * 4096); srd(p, SD, P_WO, 512 * 1024)
    p.I(f"""v_lshrrev_b32 v248, 3, v1
    s_lshl_b32 s{sT0}, s{sW4}, 5
    v_add_u32 v248, s{sT0}, v248
    v_bfe_u32 v249, v1, 4, 1
    v_lshlrev_b32 v249, 2, v249
    v_and_b32 v250, 7, v1
    v_xor_b32 v249, v249, v250
    v_lshlrev_b32 v249, 4, v249""")
    for name, stride, scol in (("Y", 4096, sST), ("O", 1024, sDT)):
        d = FV[name]
        p.I(f"""s_lshl_b32 s{sT0}, s{scol}, 7
        v_mul_u32_u24 v{d}, {stride}, v248
        v_add3_u32 v{d}, v{d}, v249, s{sT0}""")
        for u in range(1, 4): p.I(f"v_add_u32 v{d+u}, {u*(8*stride-1024)}, v{d}")
def f_dma(n):
    if "nofp" in OPT: return []
    name, k, st = FSEQ[n]
    L = [f"s_lshl_b32 s{sT0}, s{sW4}, 12", f"s_add_u32 m0, s{sT0}, {fslot(n)}"]
    if k == 0: L.append(f"s_mul_i32 s{sN}, s{sROT[name]}, {128 * st}")
    else: L += [f"s_add_u32 s{sN}, s{sN}, {128 * st}", f"s_cmp_eq_u32 s{sN}, {128 * st * FCNT[name]}", f"s_cselect_b32 s{sN}, 0, s{sN}"]
    L += [f"buffer_load_dwordx4 v{FV[name]+u}, {sr(FSRD[name],4)}, s{sN} offen offset:{u*1024} lds" for u in range(4)]
    return L
def split_dma(L):
    out = []; cur = []
    for x in L:
        cur.append(x)
        if x.startswith("buffer_load"): out.append(cur); cur = []
    if cur: out[-1] += cur
    return out
def paced(p, q, tag, dma, first, total, nslots, minlead, hook=None):
    items = [(n, g) for n in range(first, total) for g in split_dma(dma(n))]
    last_it = max(1, total - minlead)
    k = 0
    for t in range(total):
        q.wait(f"{tag}{t}")
        p.I("s_barrier")
        tgt = min(len(items), -(-len(items) * (t + 1) // last_it))
        while k < len(items) and items[k][0] <= t + nslots - 1 and (k < tgt or items[k][0] <= t + minlead):
            emit(p, items[k][1]); q.add(f"{tag}{items[k][0]}"); k += 1
        if hook: hook(t, k == len(items))
    assert k == len(items)
FPA = opt('fpa', 2)
FPRE = 4

def gen(p):
    p.I(f".globl {NAME}\n.p2align 8\n.type {NAME},@function")
    p.L(NAME)
    if STAMP: p.I("s_memtime s[58:59]" if "cyc" in OPT else "s_memrealtime s[58:59]")
    p.I(f"""s_cmp_ge_u32 s2, 256
    s_cbranch_scc1 L_end
    s_load_dwordx16 s[64:79], s[0:1], 0
    s_load_dwordx4 s[80:83], s[0:1], 64
    s_load_dwordx2 s[84:85], s[0:1], 80""")
    p.I(f"""v_lshrrev_b32 v2, 6, v0
    v_and_b32 v1, 63, v0
    v_readfirstlane_b32 s{sWV}, v2
    s_and_b32 s{sT0}, s2, 7
    s_lshr_b32 s{sT1}, s2, 3
    s_lshr_b32 s{sR}, s{sT0}, 1
    s_and_b32 s{sC}, s{sT0}, 1
    s_lshr_b32 s{sK}, s{sT1}, 1
    s_lshr_b32 s{sT2}, s{sT1}, 2
    s_lshl_b32 s{sST}, s{sR}, 3
    s_add_u32 s{sST}, s{sST}, s{sT2}
    s_and_b32 s{sT3}, s{sT1}, 3
    s_lshl_b32 s{sDT}, s{sC}, 2
    s_add_u32 s{sDT}, s{sDT}, s{sT3}
    s_and_b32 s{sW4}, s{sWV}, 3""")
    if "norot" in OPT: p.I("s_mov_b32 s97, 0\ns_mov_b32 s99, 0")
    else: p.I(f"""s_lshl_b32 s97, s{sT3}, 1
    s_add_u32 s97, s97, s{sT2}
    s_mul_i32 s97, s97, 11
    s_lshr_b32 s97, s97, 3
    s_mul_i32 s99, s{sC}, 3
    s_add_u32 s97, s97, s99
    s_cmp_ge_u32 s97, 11
    s_cselect_b32 s99, 11, 0
    s_sub_u32 s97, s97, s99
    s_add_u32 s99, s{sT3}, s{sT2}
    s_and_b32 s99, s99, 3""")
    stamp(p, 0)
    if "fonly" in OPT:
        p.I("s_waitcnt lgkmcnt(0)")
        stamp(p, -1)
        srd(p, SW, P_WS, WS_USED)
        p.I(f"s_mov_b32 s{sTAG}, 0\ns_cmp_lt_u32 s{sWV}, 4\ns_cbranch_scc1 FO_c")
        f_loader_setup(p)
        p.I("s_bitcmp1_b32 s2, 3\ns_cbranch_scc1 FO_b")
        for n in range(FPA): emit(p, f_dma(n))
        p.I("s_waitcnt vmcnt(0)\ns_barrier\ns_branch F_load")
        p.L("FO_b")
        for n in range(FPRE): emit(p, f_dma(n))
        p.I("s_waitcnt vmcnt(0)\ns_barrier\ns_branch F_load")
        p.L("FO_c")
        p.I("s_branch F_cons")
    p.I(f"""s_bitcmp1_b32 s2, 3
    s_cbranch_scc1 B_entry""")
    if "noA" in OPT: p.I("s_endpgm")
    gen_A(p)
    gen_B(p)
    gen_F(p)
    p.L("L_end")
    p.I("s_endpgm")

QSLOT = 40960; QSCR = 3 * QSLOT
KA_, VA_, QA_ = 0, 49152, 98304
def gen_A(p):
    p.I(f"""s_lshr_b32 s{sT0}, s{sK}, 2
    s_lshl_b32 s{sRT}, s{sR}, 2
    s_add_u32 s{sRT}, s{sRT}, s{sT0}
    s_and_b32 s{sT0}, s{sK}, 3
    s_lshl_b32 s{sHQ}, s{sC}, 2
    s_add_u32 s{sHQ}, s{sHQ}, s{sT0}
    s_cmp_ge_u32 s{sWV}, 4
    s_cbranch_scc1 A_load""")
    if "scpf" in OPT:
        p.I(f"""s_getpc_b64 s[60:61]
        s_lshl_b32 s62, s{sK}, 2
        s_add_u32 s62, s62, s{sW4}
        s_lshl_b32 s62, s62, 7
        s_add_u32 s60, s60, s62
        s_addc_u32 s61, s61, 0""")
        for i in range(5): p.I(f"s_load_dword s{32+i}, s[60:61], {i * 8192}")
    p.I("s_branch A_cons")
    p.L("A_load")
    p.I(f"""v_lshrrev_b32 v10, 3, v1
    s_lshl_b32 s{sT0}, s{sW4}, 4
    v_add_u32 v10, s{sT0}, v10
    v_lshrrev_b32 v11, 4, v1
    v_and_b32 v12, 7, v1
    v_xor_b32 v13, v11, v12
    v_lshlrev_b32 v14, 10, v10
    s_lshl_b32 s{sT0}, s{sRT}, 17
    v_add_u32 v14, s{sT0}, v14
    v_lshl_add_u32 v2, v13, 4, v14
    v_xor_b32 v3, 64, v2
    v_add_u32 v3, {8*1024 - 1024}, v3
    v_and_b32 v11, 1, v11
    v_lshlrev_b32 v11, 2, v11
    v_xor_b32 v13, v11, v12
    v_mul_u32_u24 v14, 3072, v10
    s_lshl_b32 s{sT0}, s{sHQ}, 7
    v_add_u32 v14, s{sT0}, v14
    v_lshl_add_u32 v4, v13, 4, v14
    v_add_u32 v5, {8*3072 - 1024}, v4
    s_lshl_b32 s{sM0}, s{sW4}, 11
    s_waitcnt lgkmcnt(0)""")
    srd(p, SA, P_X, 0x200000); srd(p, SB, P_WQKV, 0x180000)
    if "rotq" in OPT: p.I(f"s_add_u32 s98, s{sRT}, s{sHQ}\ns_and_b32 s98, s98, 3\ns_lshl_b32 s98, s98, 1")
    else: p.I("s_mov_b32 s98, 0")
    def qdma(t):
        L = [f"s_lshl_b32 s{sT2}, s98, 7", f"s_mul_i32 s{sT3}, s98, 196608", "s_add_u32 s98, s98, 1", "s_and_b32 s98, s98, 7"]
        for b in range(5):
            L.append(f"s_add_u32 m0, s{sM0}, {(t % 3) * QSLOT + b * 8192}")
            L.append(f"s_add_u32 s{sOF}, s{sT2}, {b * 65536}" if b < 2 else f"s_add_u32 s{sOF}, s{sT3}, {(b - 2) * 1024}")
            v, s_ = (2, SA) if b < 2 else (4, SB)
            nt = " nt" if t >= opt("qnt", 99) else ""
            L.append(f"buffer_load_dwordx4 v{v}, {sr(s_,4)}, s{sOF} offen{nt} lds")
            L.append(f"buffer_load_dwordx4 v{v+1}, {sr(s_,4)}, s{sOF} offen offset:1024{nt} lds")
        return L
    emit(p, qdma(0) + qdma(1))
    stamp(p, 1)
    get_tag(p)
    srd(p, SW, P_WS, WS_USED)
    f_loader_setup(p)
    p.I(f"v_mov_b32 v252, {FLG + 128}\nv_mov_b32 v6, {QSCR + 4096}\nv_mov_b32 v7, 0\nds_write_b32 v6, v7")
    fin_tag(p)
    APF = [int(c) for c in str(opt("apf", 0))] if opt("apf", 0) else []
    HPF = [int(c) for c in str(opt("hpf", 0))] if opt("hpf", 0) else []
    if APF:
        p.I(f"""s_mov_b32 s32, s{P_W1}
        s_mov_b32 s33, s{P_W1+1}
        s_mov_b32 s34, {2048*2752}
        s_mov_b32 s35, 0x00020000
        s_lshl_b32 s{sT0}, s{sK}, 2
        s_add_u32 s{sT0}, s{sT0}, s{sW4}
        s_lshl_b32 s{sT0}, s{sT0}, 4
        s_add_u32 s{sT0}, s{sT0}, 1024
        v_lshrrev_b32 v16, 3, v1
        v_add_u32 v16, s{sT0}, v16
        v_mul_u32_u24 v16, 2752, v16
        v_and_b32 v17, 7, v1
        v_min_u32 v17, 6, v17
        v_lshl_add_u32 v16, v17, 7, v16
        s_mul_i32 s36, s{sR}, 768
        s_add_u32 s37, s36, {8*2752}""")
    if HPF:
        p.I(f"""s_lshl_b32 s{sT0}, s{sK}, 2
        s_add_u32 s{sT0}, s{sT0}, s{sW4}
        s_and_b32 s38, s{sT0}, 7
        s_lshl_b32 s38, s38, 17
        s_lshr_b32 s{sT0}, s{sT0}, 3
        s_lshl_b32 s{sT0}, s{sT0}, 13
        s_add_u32 s38, s38, s{sT0}
        s_lshl_b32 s{sT0}, s{sC}, 20
        s_add_u32 s38, s38, s{sT0}
        s_add_u32 s38, s38, {HF + 65536}
        v_lshlrev_b32 v19, 7, v1""")
    q = VQ(p); q.add("S0", 10); q.add("S1", 10)
    for t in range(8):
        q.wait(f"S{t}")
        p.I("s_barrier")
        if t + 2 < 8: emit(p, qdma(t + 2)); q.add(f"S{t+2}", 10)
        for i, tt in enumerate(APF):
            if tt == t: p.I(f"buffer_load_dword v251, v16, s[32:35], s{36+i} offen"); q.add("PF")
        if t in HPF: p.I(f"buffer_load_dword v251, v19, {sr(SW,4)}, s38 offen sc1"); q.add("PF")
    stamp(p, 2)
    p.I("s_barrier")
    p.I("s_branch A_attn")
    p.L("A_cons")
    if "nocpf" not in OPT:
        p.I("s_getpc_b64 s[86:87]")
        p.L("A_pc")
        p.I(f"""s_sub_u32 s86, s86, A_pc-{NAME}
        s_subb_u32 s87, s87, 0
        v_lshlrev_b32 v22, 7, v0
        v_add_u32 v21, 0x8000, v22
        v_min_u32 v21, CODE_END-{NAME}-4, v21
        global_load_dword v22, v22, s[86:87]
        global_load_dword v21, v21, s[86:87]""")
    for r in range(240, 248): p.I(f"v_mov_b32 v{r}, 0")
    XA, WA = [[2, 3, 4, 5], [6, 7, 8, 9]], [[10, 11], [12, 13]]
    p.I(f"""s_and_b32 s{sA}, s{sW4}, 1
    s_lshr_b32 s{sB}, s{sW4}, 1
    v_lshrrev_b32 v23, 5, v1
    v_and_b32 v24, 31, v1
    v_bfe_u32 v26, v1, 1, 3
    v_xor_b32 v26, v26, v23
    s_lshl_b32 s{sT0}, s{sA}, 13
    v_lshlrev_b32 v27, 7, v24
    v_add_u32 v27, s{sT0}, v27""")
    for pp in range(4):
        p.I(f"""s_xor_b32 s{sT0}, s{sA}, {pp}
        s_lshl_b32 s{sT0}, s{sT0}, 1
        v_xor_b32 v28, s{sT0}, v26
        v_lshl_add_u32 v{XA[0][pp]}, v28, 4, v27
        v_add_u32 v{XA[1][pp]}, 0x10000, v{XA[0][pp]}""")
    p.I(f"""v_bfe_u32 v26, v1, 2, 2
    v_lshl_add_u32 v27, v23, 3, v26
    v_lshlrev_b32 v27, 7, v27
    v_bfe_u32 v28, v1, 4, 1
    v_lshlrev_b32 v28, 1, v28
    v_bfe_u32 v29, v1, 1, 1
    v_add_u32 v28, v28, v29
    s_lshl_b32 s{sT0}, s{sB}, 2
    v_add_u32 v28, s{sT0}, v28
    v_bfe_u32 v29, v1, 3, 1
    v_lshlrev_b32 v29, 2, v29
    v_xor_b32 v28, v28, v29
    v_lshl_add_u32 v27, v28, 4, v27
    v_and_b32 v29, 1, v1
    v_lshl_add_u32 v27, v29, 3, v27
    s_lshl_b32 s{sT0}, s{sA}, 11
    v_add_u32 v10, s{sT0}, v27
    v_xor_b32 v11, 2048, v10
    v_add_u32 v12, 0x10000, v10
    v_add_u32 v13, 0x10000, v11
    v_and_b32 v26, 15, v1
    v_bfe_u32 v27, v1, 4, 1
    v_cmp_eq_u32 vcc, v26, v27
    v_mov_b32 v28, 0x3f803f80
    v_cndmask_b32 v28, 0, v28, vcc
    v_mov_b32 v29, v28
    v_mov_b32 v30, v28
    v_mov_b32 v31, v28
    s_mul_i32 s{sT0}, s{sW4}, 384
    s_add_u32 s{sT0}, s{sT0}, {QSCR}
    v_lshl_add_u32 v14, v1, 2, s{sT0}
    s_mul_i32 s{sT0}, s{sB}, 768
    s_add_u32 s{sT0}, s{sT0}, {QSCR}
    v_lshl_add_u32 v15, v23, 4, s{sT0}
    v_lshl_add_u32 v16, v24, 2, s{sT0}
    s_lshl_b32 s{sT0}, s{sW4}, 9
    s_add_u32 s{sT0}, s{sT0}, {QSCR + 1536}
    v_lshl_add_u32 v17, v1, 2, s{sT0}
    v_lshl_add_u32 v18, v23, 4, s{sT0}
    v_lshl_add_u32 v25, v24, 2, s{sT0}
    s_lshl_b32 s{sT0}, s{sRT}, 7
    s_lshl_b32 s{sT1}, s{sA}, 6
    s_add_u32 s{sT0}, s{sT0}, s{sT1}
    s_lshl_b32 s{sT0}, s{sT0}, 4
    s_add_u32 s{sT0}, s{sT0}, {ST}
    v_lshl_add_u32 v19, v1, 4, s{sT0}
    s_waitcnt lgkmcnt(0)""")
    get_tag(p)
    srd(p, SW, P_WS, WS_USED)
    fin_tag(p)
    ACC = {("q", 0): 32, ("q", 1): 48, ("k", 0): 64, ("k", 1): 80, ("v", 0): 96, ("v", 1): 112}
    CS, FB = 128, 140
    def reads(g):
        t, pp = g >> 2, g & 3
        o = (t % 3) * QSLOT; b = FB + 20 * (g % 3)
        L = [f"ds_read_b128 {vr(b+4*rb,4)}, " + lds_ref([XA[0][pp], XA[1][pp]], o + rb * 4096) for rb in range(2)]
        for seg in range(3):
            for tt in range(2):
                L.append(f"ds_read_b64_tr_b16 {vr(b+8+4*seg+2*tt,2)}, " + lds_ref([WA[0][pp & 1], WA[1][pp & 1]], o + 16384 + seg * 8192 + (pp >> 1) * 4096 + tt * 512))
        return L
    def mfmas(g):
        b = FB + 20 * (g % 3); z = g == 0
        big = []
        for seg, nm in enumerate("qkv"):
            for rb in range(2):
                a = vr(ACC[(nm, rb)], 16); X = vr(b + 4 * rb, 4); W = vr(b + 8 + 4 * seg, 4)
                ops = (X, W) if nm == "v" else (W, X)
                big.append(f"{MFMA} {a}, {ops[0]}, {ops[1]}, {'0' if z else a}")
        small = []
        if g % 2 == 0:
            for seg in range(3):
                c = vr(CS + 4 * seg, 4)
                small.append(f"{MFMA16} {c}, v[28:31], {vr(b+8+4*seg,4)}, {'0' if z else c}")
        return big, small
    GR = 200
    stamp(p, 1)
    p.I("s_barrier")
    emit(p, reads(0) + reads(1))
    stamp(p, 2)
    for g in range(32):
        big, small = mfmas(g)
        M = (small + big) if g == 30 else (big + small)
        nxt = g + 2
        if g == opt('grg', 24): p.I(f"buffer_load_dwordx4 {vr(GR,4)}, v19, {sr(SW,4)}, 0 offen sc1")
        if nxt < 32:
            p.I("s_waitcnt lgkmcnt(8)")
            if nxt % 4 == 0:
                emit(p, M[:2])
                p.I("s_waitcnt lgkmcnt(0)")
                p.I("s_barrier")
                emit(p, interleave(M[2:], reads(nxt), upto=4))
            else:
                emit(p, interleave(M, reads(nxt), upto=5))
        elif g == 30:
            p.I("s_waitcnt lgkmcnt(0)")
            emit(p, M[:6])
            p.I("s_mov_b64 exec, 0xffff")
            for seg in range(3):
                p.I(f"ds_write_b32 v14, v{CS+4*seg} offset:{seg*128}")
                p.I(f"ds_write_b32 v14, v{CS+4*seg+1} offset:{seg*128+64}")
            p.I("s_mov_b64 exec, -1")
            emit(p, M[6:])
        else:
            emit(p, M[:2])
            p.I("s_waitcnt vmcnt(0)")
            if "nopoll" not in OPT:
                p.I(f"""v_cmp_ne_u32 vcc, s{sTAG}, v{GR+1}
                v_cmp_ne_u32 s[32:33], s{sTAG}, v{GR+3}
                s_mov_b32 s{sSPIN}, 0
                s_or_b64 vcc, vcc, s[32:33]
                s_cbranch_vccz A_st_ok""")
                p.L("A_st_spin")
                p.I(f"""buffer_load_dwordx4 {vr(GR,4)}, v19, {sr(SW,4)}, 0 offen sc1
                s_add_u32 s{sSPIN}, s{sSPIN}, 1
                s_waitcnt vmcnt(0)
                v_cmp_ne_u32 vcc, s{sTAG}, v{GR+1}
                v_cmp_ne_u32 s[32:33], s{sTAG}, v{GR+3}
                s_or_b64 vcc, vcc, s[32:33]
                s_cmp_ge_u32 s{sSPIN}, {SPIN_MAX}
                s_cbranch_scc1 A_st_ok
                s_cbranch_vccnz A_st_spin""")
                p.L("A_st_ok")
            p.I(f"""ds_write_b32 v17, v{GR}
            ds_write_b32 v17, v{GR+2} offset:256
            s_waitcnt lgkmcnt(0)
            s_barrier""")
            emit(p, M[2:])
    stamp(p, 3)
    CQ, CK, C2, NM, RS = 204, 220, 140, 156, 172
    for k in range(4): p.I(f"ds_read_b128 {vr(CK+4*k,4)}, v15 offset:{128+k*32}")
    for k in range(4): p.I(f"ds_read_b128 {vr(C2+4*k,4)}, v15 offset:{384+128+k*32}")
    p.I("""ds_read_b32 v2, v25
    ds_read_b32 v4, v25 offset:256
    ds_read_b32 v6, v25 offset:128
    ds_read_b32 v8, v25 offset:384
    ds_read_b32 v10, v16 offset:256
    ds_read_b32 v11, v16 offset:640""")
    p.I(f"""s_lshl_b32 s{sT0}, s{sHQ}, 1
    s_add_u32 s{sT0}, s{sT0}, s{sB}
    s_lshl_b32 s{sT1}, s{sRT}, 2
    s_lshl_b32 s{sT2}, s{sA}, 1
    s_add_u32 s{sT1}, s{sT1}, s{sT2}
    s_lshl_b32 s{sT2}, s{sT0}, 17
    s_lshl_b32 s{sT3}, s{sT1}, 10
    s_add_u32 s{sT3}, s{sT3}, s{sT2}
    s_add_u32 s{sT3}, s{sT3}, {KF}
    v_lshl_add_u32 v20, v1, 4, s{sT3}
    s_lshl_b32 s{sT3}, s{sT1}, 11
    s_add_u32 s{sT3}, s{sT3}, s{sT2}
    s_add_u32 s{sT3}, s{sT3}, {VF}
    v_lshl_add_u32 v21, v1, 4, s{sT3}
    s_lshl_b32 s{sT0}, s{sT0}, 6
    s_add_u32 s{sT0}, s{sT0}, s{sT1}
    s_lshl_b32 s{sT0}, s{sT0}, 6
    s_add_u32 s{sT0}, s{sT0}, {FK}
    v_mov_b32 v22, s{sT0}
    s_mul_i32 s{sT0}, s{sB}, 24576
    s_lshl_b32 s{sT1}, s{sA}, 11
    s_add_u32 s{sT2}, s{sT0}, s{sT1}
    s_add_u32 s{sT2}, s{sT2}, {KA_ + 8192}
    v_lshl_add_u32 v26, v1, 4, s{sT2}
    s_lshl_b32 s{sT2}, s{sA}, 12
    s_add_u32 s{sT2}, s{sT2}, s{sT0}
    s_add_u32 s{sT2}, s{sT2}, {VA_ + 16384}
    v_lshl_add_u32 v27, v1, 4, s{sT2}
    s_lshl_b32 s{sT2}, s{sB}, 13
    s_add_u32 s{sT2}, s{sT2}, s{sT1}
    s_add_u32 s{sT2}, s{sT2}, {QA_}
    v_lshl_add_u32 v28, v1, 4, s{sT2}
    s_mov_b32 s{sOF}, 65536
    v_mov_b32 v29, s{sTAG}
    s_waitcnt lgkmcnt(0)""")
    for k in range(4): p.I(f"ds_read_b128 {vr(NM+4*k,4)}, v18 offset:{k*32}")
    for k in range(4): p.I(f"ds_read_b128 {vr(RS+4*k,4)}, v18 offset:{256+k*32}")
    for i in range(8): p.I(f"v_pk_add_f32 {vr(CK+2*i,2)}, {vr(CK+2*i,2)}, {vr(C2+2*i,2)}")
    p.I("v_add_f32 v10, v10, v11")
    def qk(acc, cs, nm, rs):
        for i in range(8): p.I(f"v_pk_fma_f32 {vr(acc+2*i,2)}, {vr(cs+2*i,2)}, {vr(nm,2)}, {vr(acc+2*i,2)} op_sel_hi:[1,0,1]")
        for i in range(8): p.I(f"v_pk_mul_f32 {vr(acc+2*i,2)}, {vr(acc+2*i,2)}, {vr(rs,2)} op_sel_hi:[1,0]")
        for i in range(8): p.I(f"v_cvt_pk_bf16_f32 v{acc+i}, v{acc+2*i}, v{acc+2*i+1}")
    def vv(acc):
        for i in range(8): p.I(f"v_pk_fma_f32 {vr(acc+2*i,2)}, {vr(NM+2*i,2)}, v[10:11], {vr(acc+2*i,2)} op_sel_hi:[1,0,1]")
        for i in range(8): p.I(f"v_pk_mul_f32 {vr(acc+2*i,2)}, {vr(acc+2*i,2)}, {vr(RS+2*i,2)}")
        for i in range(8): p.I(f"v_cvt_pk_bf16_f32 v{acc+i}, v{acc+2*i}, v{acc+2*i+1}")
    for rb in range(2):
        a = ACC[("k", rb)]
        qk(a, CK, 2 + 4 * rb, 4 + 4 * rb)
        p.I(f"buffer_store_dwordx4 {vr(a,4)}, v20, {sr(SW,4)}, 0 offen offset:{rb*1024} sc1")
        p.I(f"buffer_store_dwordx4 {vr(a+4,4)}, v20, {sr(SW,4)}, s{sOF} offen offset:{rb*1024} sc1")
    for rb in range(2):
        a = ACC[("v", rb)]
        p.I("s_waitcnt lgkmcnt(0)")
        vv(a)
        if rb == 0:
            for k in range(4): p.I(f"ds_read_b128 {vr(NM+4*k,4)}, v18 offset:{128+k*32}")
            for k in range(4): p.I(f"ds_read_b128 {vr(RS+4*k,4)}, v18 offset:{384+k*32}")
        else:
            for k in range(4): p.I(f"ds_read_b128 {vr(CQ+4*k,4)}, v15 offset:{k*32}")
            for k in range(4): p.I(f"ds_read_b128 {vr(C2+4*k,4)}, v15 offset:{384+k*32}")
        p.I(f"buffer_store_dwordx4 {vr(a,4)}, v21, {sr(SW,4)}, 0 offen offset:{rb*2048} sc1")
        p.I(f"buffer_store_dwordx4 {vr(a+4,4)}, v21, {sr(SW,4)}, 0 offen offset:{rb*2048+1024} sc1")
        if rb == 0:
            for r2 in range(2):
                k_ = ACC[("k", r2)]
                p.I(f"ds_write_b128 v26, {vr(k_,4)} offset:{r2*1024}")
                p.I(f"ds_write_b128 v26, {vr(k_+4,4)} offset:{12288+r2*1024}")
    for r2 in range(2):
        a = ACC[("v", r2)]
        p.I(f"ds_write_b128 v27, {vr(a,4)} offset:{r2*2048}")
        p.I(f"ds_write_b128 v27, {vr(a+4,4)} offset:{r2*2048+1024}")
    p.I(f"""v_mul_f32 v4, {f32(0.25*LOG2E)}, v4
    v_mul_f32 v8, {f32(0.25*LOG2E)}, v8
    s_waitcnt lgkmcnt(4)""")
    for i in range(8): p.I(f"v_pk_add_f32 {vr(CQ+2*i,2)}, {vr(CQ+2*i,2)}, {vr(C2+2*i,2)}")
    for rb in range(2):
        a = ACC[("q", rb)]
        qk(a, CQ, 2 + 4 * rb, 4 + 4 * rb)
        p.I(f"ds_write_b128 v28, {vr(a,4)} offset:{rb*1024}")
        p.I(f"ds_write_b128 v28, {vr(a+4,4)} offset:{4096+rb*1024}")
    p.I("v_mov_b32 v252, v22\nv_mov_b32 v253, v29")
    if "kef" in OPT:
        p.I(f"s_waitcnt vmcnt(0)\ns_mov_b64 exec, 1\nbuffer_store_dword v253, v252, {sr(SW,4)}, 0 offen sc1\ns_mov_b64 exec, -1")
    stamp(p, 4)
    p.L("A_attn")
    if "noattn" in OPT:
        stamp_out(p, 14); p.I("s_endpgm")
    sHP, sTB, sNB, sNB1, sHB, sQB = sA, sB, sOF, sM0, 8, 9
    p.I(f"""v_lshlrev_b32 v3, 4, v1
    s_lshr_b32 s{sHP}, s{sW4}, 1
    s_and_b32 s{sQB}, s{sWV}, 1
    s_cmp_lt_u32 s{sWV}, 4
    s_cselect_b32 s{sT0}, 2, 0
    s_add_u32 s{sQB}, s{sQB}, s{sT0}
    s_lshl_b32 s{sTB}, s{sRT}, 2
    s_add_u32 s{sTB}, s{sTB}, s{sQB}
    s_min_u32 s{sNB}, s{sTB}, 8
    s_mov_b32 s{sNB1}, {'s%d' % sNB if 'truemax' in OPT else 0}
    v_and_b32 v4, 31, v1
    v_lshrrev_b32 v5, 5, v1
    v_lshlrev_b32 v5, 2, v5
    v_sub_u32 v4, v4, v5""")
    msk = lambda r: f"s[{32+2*r}:{33+2*r}]"
    for r in range(16): p.I(f"v_cmp_le_i32 {msk(r)}, {(r & 3) + 8 * (r >> 2)}, v4")
    p.I(f"""v_mov_b32 v6, {f32(-1e30)}
    s_mul_i32 s{sT0}, s{sHP}, 24576
    s_lshl_b32 s{sT1}, s{sQB}, 10
    s_add_u32 s{sT2}, s{sT0}, s{sT1}
    v_add_u32 v4, s{sT2}, v3
    s_add_u32 s{sT2}, s{sT2}, s{sT1}
    s_add_u32 s{sT2}, s{sT2}, {VA_}
    v_add_u32 v5, s{sT2}, v3
    s_lshl_b32 s{sT2}, s{sHP}, 13
    s_add_u32 s{sT2}, s{sT2}, s{sT1}
    s_add_u32 s{sT2}, s{sT2}, {QA_}
    v_add_u32 v7, s{sT2}, v3
    s_mov_b32 s4, 0x0000ffff
    s_mov_b32 s5, 0x0000ffff
    s_mov_b32 s6, 0xffff0000
    s_mov_b32 s7, 0xffff0000""")
    for r in range(176, 208): p.I(f"v_mov_b32 v{r}, 0x3f803f80")
    if "wp2" in OPT:
        srd(p, SC, P_W2, 1376 * 4096); srd(p, SD, P_WO, 512 * 1024)
        p.I(f"""s_lshl_b32 s{sT0}, s{sK}, 3
        s_add_u32 s{sT0}, s{sT0}, s{sWV}
        v_lshrrev_b32 v248, 3, v1
        v_lshlrev_b32 v248, 12, v248
        v_and_b32 v250, 7, v1
        v_lshl_add_u32 v248, v250, 7, v248
        s_lshl_b32 s{sT1}, s{sT0}, 15
        s_lshl_b32 s{sT2}, s{sR}, 10
        s_add_u32 s{sT1}, s{sT1}, s{sT2}
        v_add_u32 v248, s{sT1}, v248
        v_add_u32 v249, {128 << 15}, v248
        v_lshrrev_b32 v250, 2, v1
        v_lshlrev_b32 v250, 10, v250
        v_and_b32 v224, 3, v1
        v_lshl_add_u32 v250, v224, 7, v250
        s_sub_u32 s{sT1}, s{sT0}, 44
        s_lshl_b32 s{sT1}, s{sT1}, 14
        s_lshl_b32 s{sT2}, s{sC}, 9
        s_add_u32 s{sT1}, s{sT1}, s{sT2}
        s_and_b32 s{sT1}, s{sT1}, 0x7fffffff
        v_add_u32 v250, s{sT1}, v250""")
    p.I("s_waitcnt lgkmcnt(0)")
    p.I("s_barrier")
    stamp(p, 5)
    p.I("ds_read_b128 v[8:11], v7\nds_read_b128 v[12:15], v7 offset:4096")
    sHL = 10
    p.I(f"""s_mov_b32 s{sHB}, 99
    s_mov_b32 s{sHL}, 0
    v_mov_b32 v212, {QSCR + 4096}
    v_mov_b32 v213, 1
    s_lshl1_add_u32 s{sT1}, s{sHQ}, s{sHP}
    s_lshl_b32 s{sT2}, s{sRT}, 2
    s_lshl_b32 s{sT3}, s{sT1}, 6
    s_add_u32 s{sT3}, s{sT3}, s{sT2}
    s_lshl_b32 s{sT3}, s{sT3}, 6
    s_add_u32 s{sT3}, s{sT3}, {FK - 512}
    v_lshl_add_u32 v2, v1, 7, s{sT3}
    s_cmp_eq_u32 s{sRT}, 0
    s_cbranch_scc1 A_h_done
    s_mov_b32 s{sHB}, s{sQB}
    s_cmp_lt_u32 s{sWV}, 4
    s_cbranch_scc1 A_p1
    s_mov_b32 s{sHL}, 1""")
    if "ksm" in OPT:
        p.I(f"""s_cmp_eq_u32 s{sRT}, 1
        s_cselect_b32 exec_lo, 12, 15
        s_mov_b32 exec_hi, 0
        buffer_load_dword v214, v2, {sr(SW,4)}, 0 offen sc1
        s_mov_b64 exec, -1""")
    if "lp0" in OPT: p.I("s_setprio 1")
    p.I("s_branch A_p1")
    p.L("A_h_done")
    p.I(f"s_cmp_lt_u32 s{sWV}, 4\ns_cbranch_scc1 A_p1")
    for n in range(FPA): emit(p, f_dma(n))
    NA, NB, OA, OB = 16, 32, 48, 64
    SBUF = [[80, 96], [112, 128]]; KR = [[144, 148], [152, 156]]; PR = [160, 168]; VR = [176, 192]
    kread = lambda jb, s: [f"ds_read_b128 {vr(KR[s][0],4)}, v4 offset:{jb*1024}", f"ds_read_b128 {vr(KR[s][1],4)}, v4 offset:{12288+jb*1024}"]
    smm = lambda s, cA, cB: [f"{MFMA} {vr(SBUF[s][0],16)}, {vr(KR[s][0],4)}, v[8:11], {cA}", f"{MFMA} {vr(SBUF[s][1],16)}, {vr(KR[s][1],4)}, v[12:15], {cB}"]
    def maxes(s):
        L = []
        for i in range(8):
            L.append(f"v_max3_f32 v208, v{SBUF[s][0]+2*i}, v{SBUF[s][0]+2*i+1}, v208")
            L.append(f"v_max3_f32 v209, v{SBUF[s][1]+2*i}, v{SBUF[s][1]+2*i+1}, v209")
        return L
    p.L("A_p1")
    emit(p, kread(8, 0) + kread(7, 1))
    for r in range(16): p.I(f"v_cndmask_b32 v{NA+r}, v6, 0, {msk(r)}")
    p.I("v_mov_b32 v208, v6\nv_mov_b32 v209, v6")
    p.I("s_waitcnt lgkmcnt(0)")
    emit(p, smm(0, vr(NA,16), vr(NA,16)))
    for r in range(OA, OB + 16): p.I(f"v_mov_b32 v{r}, 0")
    for n in range(8):
        s = n & 1
        p.I(f"s_cmp_lt_u32 s{sNB1}, {n+1}\ns_cbranch_scc1 A_p1_last{s}")
        if n + 1 == 8:
            for r in range(16): p.I(f"v_cndmask_b32 v{NB+r}, 0, v6, {msk(r)}")
        p.I("s_waitcnt lgkmcnt(0)")
        c = vr(NB,16) if n + 1 == 8 else "0"
        emit(p, smm(s ^ 1, c, c))
        if n + 2 <= 8: emit(p, kread(8 - (n + 2), s))
        emit(p, maxes(s))
    p.I("s_nop 7\ns_nop 3")
    p.I("s_branch A_p1_last0")
    p.L("A_p1_last1")
    p.I("s_nop 7\ns_nop 3")
    emit(p, maxes(1))
    p.I("s_branch A_p1_done")
    p.L("A_p1_last0")
    emit(p, maxes(0))
    p.L("A_p1_done")
    p.I(f"""s_cmp_eq_u32 s{sHL}, 0
    s_cbranch_scc1 A_nohl
    s_cmp_eq_u32 s{sRT}, 1
    s_cselect_b32 exec_lo, 12, 15
    s_mov_b32 exec_hi, 0""")
    if "ksm" in OPT and "nopoll" not in OPT:
        p.I(f"s_waitcnt vmcnt(0)\nv_cmp_ne_u32 vcc, s{sTAG}, v214\ns_cbranch_vccz A_pollk_ok")
    poll(p, "A_pollk", 2, 214, 1, opt("ksl", 2))
    stamp(p, 3)
    p.I(f"""s_lshl1_add_u32 s{sT1}, s{sHQ}, s{sHP}
    s_lshl_b32 s{sT1}, s{sT1}, 17
    s_lshl_b32 s{sT0}, s{sQB}, 16
    s_add_u32 s{sT0}, s{sT0}, s{sT1}
    s_lshl_b32 s{sT2}, s{sRT}, 12
    s_add_u32 s{sT0}, s{sT0}, s{sT2}
    s_add_u32 s{sT0}, s{sT0}, {KF - 8192}
    s_mul_i32 s{sT3}, s{sW4}, 12288""")
    def halo8():
        for hf in range(2):
            p.I(f"s_add_u32 m0, s{sT3}, {hf*4096}")
            if hf: p.I(f"s_add_u32 s{sT0}, s{sT0}, 4096")
            for u in range(4): p.I(f"buffer_load_dwordx4 v3, {sr(SW,4)}, s{sT0} offen offset:{u*1024} sc1 lds")
    halo8()
    p.I(f"""s_lshl_b32 s{sT3}, s{sQB}, 13
    s_add_u32 s{sT0}, s{sT1}, s{sT3}
    s_lshl_b32 s{sT2}, s{sRT}, 13
    s_add_u32 s{sT0}, s{sT0}, s{sT2}
    s_add_u32 s{sT0}, s{sT0}, {VF - 16384}
    s_mul_i32 s{sT2}, s{sHP}, 24576
    s_add_u32 s{sT3}, s{sT3}, s{sT2}
    s_add_u32 s{sT3}, s{sT3}, {VA_}""")
    halo8()
    if "aprio" in OPT: p.I("s_setprio 1")
    p.L("A_nohl")
    p.I("s_waitcnt lgkmcnt(0)")
    stamp(p, 7)
    vread = lambda jb, s: ["s_mov_b64 exec, s[4:5]",
                f"ds_read_b128 {vr(VR[s],4)}, v5 offset:{jb*2048}", f"ds_read_b128 {vr(VR[s]+4,4)}, v5 offset:{jb*2048+1024}",
                "s_mov_b64 exec, s[6:7]",
                f"ds_read_b128 {vr(VR[s]+8,4)}, v5 offset:{jb*2048}", f"ds_read_b128 {vr(VR[s]+12,4)}, v5 offset:{jb*2048+1024}",
                "s_mov_b64 exec, -1"]
    emit(p, kread(8, 0) + kread(7, 1) + vread(8, 0))
    p.I("""v_mov_b32 v210, v208
    v_mov_b32 v211, v209
    v_permlane32_swap_b32 v208, v210
    v_permlane32_swap_b32 v209, v211
    v_max_f32 v208, v208, v210
    v_max_f32 v209, v209, v211
    v_sub_f32 v208, 0, v208
    v_sub_f32 v209, 0, v209""")
    for r in range(16):
        p.I(f"v_cndmask_b32 v{SBUF[0][0]+r}, v6, v208, {msk(r)}")
        p.I(f"v_cndmask_b32 v{SBUF[0][1]+r}, v6, v209, {msk(r)}")
    p.I("s_waitcnt lgkmcnt(0)")
    emit(p, smm(0, vr(SBUF[0][0],16), vr(SBUF[0][1],16)))
    for r in range(16):
        p.I(f"v_mov_b32 v{NA+r}, v208")
        p.I(f"v_mov_b32 v{NB+r}, v209")
    def softp(s, hd):
        S = SBUF[s][hd]; P = PR[hd]; V = VR[s] + 8 * hd; O = (OA, OB)[hd]
        L = [f"v_exp_f32 v{S+i}, v{S+i}" for i in range(8)]
        L += [f"v_cvt_pk_bf16_f32 v{P+i}, v{S+2*i}, v{S+2*i+1}" for i in range(4)]
        L += [f"v_exp_f32 v{S+i}, v{S+i}" for i in range(8, 10)]
        L += [f"{MFMA} {vr(O,16)}, {vr(V,4)}, {vr(P,4)}, {vr(O,16)}"]
        L += [f"v_exp_f32 v{S+i}, v{S+i}" for i in range(10, 16)]
        L += [f"v_cvt_pk_bf16_f32 v{P+i}, v{S+2*i}, v{S+2*i+1}" for i in range(4, 8)]
        return L, [f"{MFMA} {vr(O,16)}, {vr(V+4,4)}, {vr(P+4,4)}, {vr(O,16)}"]
    def soft(s):
        a, a2 = softp(s, 0); b, b2 = softp(s, 1)
        return a + b[:2] + a2 + b[2:] + b2
    for n in range(8):
        s = n & 1
        if n in (1, 2, 3, 4): p.L(f"A_p2_it{n}")
        p.I(f"s_cmp_lt_u32 s{sNB}, {n+1}\ns_cbranch_scc1 A_p2_last{s}")
        if n in (0, 1, 2, 3): p.I(f"s_cmp_eq_u32 s{sHB}, {n}\ns_cbranch_scc1 A_p2_hw{n}")
        if n + 1 == 8:
            for r in range(16):
                p.I(f"v_cndmask_b32 v{NA+r}, v208, v6, {msk(r)}")
                p.I(f"v_cndmask_b32 v{NB+r}, v209, v6, {msk(r)}")
        p.I("s_waitcnt lgkmcnt(0)")
        emit(p, smm(s ^ 1, vr(NA,16), vr(NB,16)))
        if n + 2 <= 8: emit(p, kread(8 - (n + 2), s))
        emit(p, vread(8 - (n + 1), s ^ 1))
        if n == opt("pdrop", 99): p.I("s_setprio 0")
        if "wp2" in OPT:
            w0 = opt("wpn", 4)
            if n == w0: p.I(f"buffer_load_dword v251, v248, {sr(SC,4)}, 0 offen")
            if n == w0 + 1: p.I(f"buffer_load_dword v251, v249, {sr(SC,4)}, 0 offen\nbuffer_load_dword v251, v250, {sr(SD,4)}, 0 offen")
        emit(p, soft(s))
    p.L("A_p2_last0")
    p.I("s_waitcnt lgkmcnt(0)\ns_nop 7\ns_nop 3")
    emit(p, soft(0))
    p.I("s_branch A_p2_done")
    for n in (0, 1, 2, 3):
        s = n & 1
        p.L(f"A_p2_hw{n}")
        p.I("s_waitcnt lgkmcnt(0)")
        sig = "s_waitcnt vmcnt(0)\ns_mov_b64 exec, 1\nds_add_u32 v212, v213\ns_mov_b64 exec, -1"
        if n == 1: p.I(sig)
        emit(p, soft(s))
        if n == 0: p.I(sig)
        if n < 2:
            for m in range(FPA): emit(p, f_dma(m))
        p.I(f"s_mov_b32 s{sSPIN}, 0")
        p.L(f"A_hs{n}")
        p.I(f"""ds_read_b32 v214, v212
        s_add_u32 s{sSPIN}, s{sSPIN}, 1
        s_waitcnt lgkmcnt(0)
        v_readfirstlane_b32 s{sT0}, v214
        s_cmp_ge_u32 s{sSPIN}, {SPIN_MAX * 8}
        s_cbranch_scc1 A_hs{n}_ok
        s_cmp_ge_u32 s{sT0}, 4
        s_cbranch_scc1 A_hs{n}_ok
        s_sleep 1
        s_branch A_hs{n}""")
        p.L(f"A_hs{n}_ok")
        stamp(p, 6)
        emit(p, kread(8 - (n + 1), s ^ 1) + kread(8 - (n + 2), s) + vread(8 - (n + 1), s ^ 1))
        p.I("s_waitcnt lgkmcnt(6)")
        emit(p, smm(s ^ 1, vr(NA,16), vr(NB,16)))
        p.I(f"s_branch A_p2_it{n+1}")
    p.L("A_p2_last1")
    p.I("s_waitcnt lgkmcnt(0)\ns_nop 7\ns_nop 3")
    emit(p, soft(1))
    p.L("A_p2_done")
    p.I(f"""s_lshl_b32 s{sT0}, s{sHQ}, 1
    s_add_u32 s{sT0}, s{sT0}, s{sHP}
    s_lshl_b32 s{sT1}, s{sTB}, 15
    s_lshl_b32 s{sT2}, s{sT0}, 11
    s_add_u32 s{sT1}, s{sT1}, s{sT2}
    s_add_u32 s{sT1}, s{sT1}, {OF}
    v_add_u32 v2, s{sT1}, v3
    s_lshl_b32 s{sT1}, s{sTB}, 4
    s_add_u32 s{sT1}, s{sT1}, s{sT0}
    s_lshl_b32 s{sT1}, s{sT1}, 7
    s_add_u32 s{sT1}, s{sT1}, {FO}
    v_mov_b32 v210, {f32(2.0**64)}
    v_max_f32 v211, v{OA+8}, v{OB}
    v_add_f32 v209, v{OA+8}, v{OB}
    v_cmp_u_f32 vcc, v209, v209
    v_cmp_ngt_f32 s[10:11], v210, v211
    s_or_b64 vcc, vcc, s[10:11]
    s_cbranch_vccz A_fin
    s_cmp_eq_u32 s{sNB1}, s{sNB}
    s_cbranch_scc1 A_fin
    s_mov_b32 s{sNB1}, s{sNB}
    s_mov_b32 s{sHB}, 99
    s_mov_b32 s{sHL}, 0
    s_branch A_p1""")
    p.L("A_fin")
    p.I(f"""v_mov_b32 v4, s{sT1}
    v_mov_b32 v5, s{sTAG}
    v_rcp_f32 v208, v{OA+8}
    v_rcp_f32 v210, v{OB}""")
    for i in range(4): p.I(f"v_pk_mul_f32 {vr(OA+2*i,2)}, {vr(OA+2*i,2)}, v[208:209] op_sel_hi:[1,0]")
    for i in range(4): p.I(f"v_pk_mul_f32 {vr(OB+8+2*i,2)}, {vr(OB+8+2*i,2)}, v[210:211] op_sel_hi:[1,0]")
    for i in range(4): p.I(f"v_cvt_pk_bf16_f32 v{160+i}, v{OA+2*i}, v{OA+2*i+1}")
    for i in range(4): p.I(f"v_cvt_pk_bf16_f32 v{164+i}, v{OB+8+2*i}, v{OB+8+2*i+1}")
    p.I(f"""buffer_store_dwordx4 v[160:163], v2, {sr(SW,4)}, 0 offen sc1
    buffer_store_dwordx4 v[164:167], v2, {sr(SW,4)}, 0 offen offset:1024 sc1""")
    stamp(p, 8)
    p.I(f"""s_waitcnt vmcnt(0)
    s_mov_b64 exec, 1
    buffer_store_dword v5, v4, {sr(SW,4)}, 0 offen sc1
    s_mov_b64 exec, -1
    s_cmp_lt_u32 s{sWV}, 4
    s_cbranch_scc0 F_load""")
    if "wpf" in OPT:
        srd(p, SB, P_W2, 1376 * 4096)
        p.I(f"""s_lshl_b32 s{sT0}, s{sK}, 2
        s_add_u32 s{sT0}, s{sT0}, s{sWV}
        v_lshrrev_b32 v250, 3, v1
        v_lshlrev_b32 v250, 12, v250
        v_and_b32 v249, 7, v1
        v_lshl_add_u32 v250, v249, 7, v250
        s_lshl_b32 s{sT1}, s{sT0}, 15
        s_lshl_b32 s{sT2}, s{sR}, 10
        s_add_u32 s{sT1}, s{sT1}, s{sT2}
        buffer_load_dword v251, v250, {sr(SB,4)}, s{sT1} offen
        s_add_u32 s{sT1}, s{sT1}, {64 << 15}
        buffer_load_dword v251, v250, {sr(SB,4)}, s{sT1} offen
        s_add_u32 s{sT1}, s{sT1}, {64 << 15}
        buffer_load_dword v251, v250, {sr(SB,4)}, s{sT1} offen""")
    p.I("s_branch F_cons2")

UBLK = opt('ublk', 8)
USLOT = 24576; UND = 6; LNP = 1088; LNS = 5 * USLOT
def gen_B(p):
    p.L("B_entry")
    if "noB" in OPT: p.I("s_endpgm")
    p.I(f"""s_lshl_b32 s{sT0}, s{sR}, 4
    s_add_u32 s{sT0}, s{sT0}, s{sK}
    s_lshr_b32 s{sFT}, s{sT0}, 2
    s_and_b32 s{sT0}, s{sT0}, 3
    s_lshl_b32 s{sDU}, s{sC}, 2
    s_add_u32 s{sDU}, s{sDU}, s{sT0}""")
    if "norot" in OPT or "norotu" in OPT: p.I("s_mov_b32 s98, 0")
    else: p.I(f"s_add_u32 s98, s{sFT}, s{sDU}\ns_and_b32 s98, s98, 3\ns_mul_i32 s98, s98, {UBLK // 4}")
    p.I(f"""s_cmp_lt_u32 s{sWV}, 4
    s_cbranch_scc1 B_cons""")
    for j in range(3):
        p.I(f"""v_add_u32 v10, {64*j}, v1
        v_mul_u32_u24 v11, 5462, v10
        v_lshrrev_b32 v11, 16, v11
        v_mul_u32_u24 v12, 12, v11
        v_sub_u32 v12, v10, v12
        s_lshl_b32 s{sT0}, s{sW4}, 5
        v_add_u32 v11, s{sT0}, v11
        v_mul_u32_u24 v11, 2752, v11
        v_lshl_add_u32 v11, v12, 4, v11
        s_mul_i32 s{sT0}, s{sFT}, 192
        s_sub_u32 s{sT0}, s{sT0}, {1024*j}
        v_add_u32 v{2+j}, s{sT0}, v11
        s_cmp_eq_u32 s{sFT}, 14
        s_cselect_b32 s{sT0}, 4, 12
        v_cmp_le_u32 vcc, s{sT0}, v12
        v_mov_b32 v13, 0x7fff0000
        v_cndmask_b32 v{2+j}, v{2+j}, v13, vcc
        v_add_u32 v{5+j}, {16*2752}, v{2+j}""")
    p.I(f"s_mul_i32 s{sM0}, s{sW4}, 6144\ns_waitcnt lgkmcnt(0)")
    srd(p, SA, P_W1, 2048 * 2752)
    srd(p, SW, P_WS, WS_USED)
    p.I(f"s_mov_b32 s{sTAG}, 0")
    def udma(n):
        L = [f"s_add_u32 m0, s{sM0}, {(n % UND) * USLOT}"]
        L += [f"s_add_u32 s{sOF}, s98, {n % UBLK}", f"s_and_b32 s{sOF}, s{sOF}, {UBLK - 1}", f"s_add_u32 s{sOF}, s{sOF}, {n - n % UBLK}", f"s_mul_i32 s{sOF}, s{sOF}, {128*2752}"]
        nt = " nt" if n >= opt("unt", 99) else ""
        L += [f"buffer_load_dwordx4 v{2+j}, {sr(SA,4)}, s{sOF} offen offset:{j*1024}{nt} lds" for j in range(3)]
        L.append(f"s_add_u32 m0, s{sM0}, {(n % UND) * USLOT + 3072}")
        L += [f"buffer_load_dwordx4 v{5+j}, {sr(SA,4)}, s{sOF} offen offset:{j*1024}{nt} lds" for j in range(3)]
        return L
    if "bpa" in OPT:
        srd(p, 32, P_X, 0x200000); srd(p, 36, P_WQKV, 0x180000)
        p.I(f"""s_lshl2_add_u32 s{sT0}, s{sK}, s{sW4}
        s_lshl_b32 s{sT1}, s{sR}, 6
        s_add_u32 s{sT1}, s{sT1}, s{sT0}
        s_lshl_b32 s{sT1}, s{sT1}, 13
        v_lshlrev_b32 v14, 8, v1
        v_add_u32 v14, 128, v14
        v_mul_u32_u24 v15, 5462, v1
        v_lshrrev_b32 v15, 16, v15
        v_mul_u32_u24 v16, 12, v15
        v_sub_u32 v16, v1, v16
        v_mul_u32_u24 v15, 3072, v15
        v_lshrrev_b32 v17, 2, v16
        v_lshl_add_u32 v15, v17, 10, v15
        v_and_b32 v17, 3, v16
        v_lshl_add_u32 v15, v17, 7, v15
        s_lshr_b32 s{sT2}, s{sT0}, 4
        s_lshl_b32 s{sT2}, s{sT2}, 7
        s_and_b32 s{sT3}, s{sT0}, 15
        s_lshl2_add_u32 s{sT2}, s{sT3}, s{sT2}
        s_add_u32 s{sT2}, s{sT2}, 64
        s_mul_i32 s{sT2}, s{sT2}, 3072
        s_lshl_b32 s{sT3}, s{sC}, 9
        s_add_u32 s{sT2}, s{sT2}, s{sT3}
        s_mov_b32 exec_hi, 0
        buffer_load_dword v251, v14, s[32:35], s{sT1} offen
        s_mov_b32 exec_hi, 0xffff
        buffer_load_dword v251, v15, s[36:39], s{sT2} offen
        s_mov_b64 exec, -1""")
    p.I(f"s_cmp_eq_u32 s{sFT}, 15\ns_cbranch_scc1 B_l_spare")
    q = VQ(p)
    UB1 = opt("ub1", 2); UB2 = opt("ub2", 6)
    p.I("s_barrier")
    for n in range(UB1): emit(p, udma(n)); q.add(f"U{n}", 6)
    stamp(p, 1)
    f_loader_setup(p)
    p.I("s_barrier")
    for n in range(UB1, UB2): emit(p, udma(n)); q.add(f"U{n}", 6)
    stamp(p, 2)
    iu = UB2; jf = 0
    def f_free(n, t):
        a, b = fslot(n), fslot(n) + 16384
        for d in range(t, 16):
            a2 = (d % UND) * USLOT
            if a < a2 + USLOT and a2 < b: return False
        return True
    jfl = [0]
    def fhook(t, done):
        while "fearly" in OPT and done and jfl[0] < FPRE and f_free(jfl[0], t):
            emit(p, f_dma(jfl[0])); q.add(f"F{jfl[0]}", 0 if "nofp" in OPT else 4); jfl[0] += 1
    paced(p, q, "U", udma, UB2, 16, UND, opt("uml", 2), fhook)
    jf = jfl[0]
    stamp(p, 3)
    assert jf == 0
    p.I("s_barrier\ns_barrier")
    for n in range(jf, FPRE): emit(p, f_dma(n))
    p.I("s_branch F_load")
    p.L("B_l_spare")
    stamp(p, -1)
    f_loader_setup(p)
    p.I("s_barrier\ns_barrier")
    if "nopf" not in OPT:
        p.I(f"""v_lshlrev_b32 v24, 7, v1
        s_lshl_b32 s{sT2}, s{sDU}, 2
        s_add_u32 s{sT2}, s{sT2}, s{sW4}
        s_lshl_b32 s{sOF}, s{sT2}, 14
        buffer_load_dword v30, v24, {sr(SD,4)}, s{sOF} offen
        s_add_u32 s{sOF}, s{sOF}, 8192
        buffer_load_dword v30, v24, {sr(SD,4)}, s{sOF} offen""")
    p.I("s_barrier")
    for n in range(FPRE): emit(p, f_dma(n))
    p.I("s_branch F_load")
    p.L("B_cons")
    if "cprio" in OPT: p.I("s_setprio 3")
    RAW, X, T = 32, 48, 80
    p.I(f"""s_lshl_b32 s{sT0}, s{sR}, 9
    s_lshl_b32 s{sT1}, s{sC}, 8
    s_add_u32 s{sT0}, s{sT0}, s{sT1}
    s_lshl_b32 s{sT1}, s{sK}, 4
    s_add_u32 s{sA}, s{sT0}, s{sT1}
    s_lshl_b32 s{sT1}, s{sW4}, 2
    v_lshrrev_b32 v10, 4, v1
    v_add_u32 v10, s{sT1}, v10
    v_and_b32 v11, 15, v1
    v_add_u32 v12, s{sA}, v10
    v_lshlrev_b32 v13, 10, v12
    v_lshl_add_u32 v13, v11, 4, v13
    s_waitcnt lgkmcnt(0)""")
    srd(p, SA, P_X, 0x200000)
    for k in range(4): p.I(f"buffer_load_dwordx4 {vr(RAW+4*k,4)}, v13, {sr(SA,4)}, 0 offen offset:{k*256}")
    p.I(f"v_mov_b32 v20, {LDS - 16}\nv_mov_b32 v21, 0\nds_write_b32 v20, v21\ns_waitcnt lgkmcnt(0)")
    p.I("s_barrier")
    get_tag(p)
    srd(p, SW, P_WS, WS_USED)
    p.I(f"""v_lshlrev_b32 v14, 4, v12
    v_add_u32 v14, {ST}, v14
    v_mul_u32_u24 v15, {LNP}, v10
    v_lshl_add_u32 v15, v11, 4, v15
    v_add_u32 v15, {LNS}, v15
    v_bfe_u32 v16, v1, 2, 2
    v_lshrrev_b32 v17, 5, v1
    v_lshl_add_u32 v16, v17, 3, v16
    v_mul_u32_u24 v16, {LNP}, v16
    v_bfe_u32 v17, v1, 4, 1
    v_lshl_add_u32 v16, v17, 5, v16
    v_and_b32 v17, 3, v1
    v_lshl_add_u32 v16, v17, 3, v16
    s_lshl_b32 s{sT0}, s{sW4}, 8
    s_add_u32 s{sT0}, s{sT0}, {LNS}
    v_add_u32 v16, s{sT0}, v16
    s_lshl_b32 s{sT0}, s{sW4}, 19
    s_lshl_b32 s{sT1}, s{sA}, 6
    s_add_u32 s{sT0}, s{sT0}, s{sT1}
    s_add_u32 s{sT0}, s{sT0}, {HF}
    v_lshl_add_u32 v17, v1, 4, s{sT0}
    s_lshl_b32 s{sT0}, s{sW4}, 14
    s_lshr_b32 s{sT1}, s{sA}, 5
    s_lshl_b32 s{sT1}, s{sT1}, 7
    s_add_u32 s{sT0}, s{sT0}, s{sT1}
    s_and_b32 s{sT1}, s{sA}, 16
    s_lshl_b32 s{sT1}, s{sT1}, 9
    s_add_u32 s{sT0}, s{sT0}, s{sT1}
    s_add_u32 s{sT0}, s{sT0}, {FH}
    v_mov_b32 v18, s{sT0}""")
    fin_tag(p)
    def red16(v): return [dpp_add(v, m) for m in ("quad_perm:[1,0,3,2]", "quad_perm:[2,3,0,1]", "row_half_mirror", "row_mirror")]
    def ln(first, closed=False):
        for i in range(16):
            p.I(f"v_lshlrev_b32 v{X+2*i}, 16, v{RAW+i}\nv_and_b32 v{X+2*i+1}, 0xffff0000, v{RAW+i}")
        for i in range(4): p.I(f"v_pk_add_f32 {vr(T+2*i,2)}, {vr(X+4*i,2)}, {vr(X+4*i+2,2)}")
        for i in range(8, 16): p.I(f"v_pk_add_f32 {vr(T+2*(i&3),2)}, {vr(T+2*(i&3),2)}, {vr(X+2*i,2)}")
        p.I(f"v_pk_add_f32 {vr(T,2)}, {vr(T,2)}, {vr(T+2,2)}\nv_pk_add_f32 {vr(T+4,2)}, {vr(T+4,2)}, {vr(T+6,2)}")
        p.I(f"v_pk_add_f32 {vr(T,2)}, {vr(T,2)}, {vr(T+4,2)}\nv_add_f32 v{T}, v{T}, v{T+1}")
        emit(p, red16(T))
        p.I(f"v_mul_f32 v{T+8}, {f32(-1.0/512)}, v{T}")
        for i in range(16): p.I(f"v_pk_add_f32 {vr(X+2*i,2)}, {vr(X+2*i,2)}, {vr(T+8,2)} op_sel_hi:[1,0]")
        for i in range(4): p.I(f"v_pk_mul_f32 {vr(T+2*i,2)}, {vr(X+2*i,2)}, {vr(X+2*i,2)}")
        for i in range(4, 16): p.I(f"v_pk_fma_f32 {vr(T+2*(i&3),2)}, {vr(X+2*i,2)}, {vr(X+2*i,2)}, {vr(T+2*(i&3),2)}")
        p.I(f"v_pk_add_f32 {vr(T,2)}, {vr(T,2)}, {vr(T+2,2)}\nv_pk_add_f32 {vr(T+4,2)}, {vr(T+4,2)}, {vr(T+6,2)}")
        p.I(f"v_pk_add_f32 {vr(T,2)}, {vr(T,2)}, {vr(T+4,2)}\nv_add_f32 v{T}, v{T}, v{T+1}")
        emit(p, red16(T))
        p.I(f"v_mov_b32 v{T+1}, {f32(1e-5)}\nv_fmac_f32 v{T+1}, {f32(1.0/512)}, v{T}\nv_rsq_f32 v{T+2}, v{T+1}")
        if first:
            p.I(f"""v_mov_b32 v{T+10}, v{T+2}
            v_mov_b32 v{T+9}, s{sTAG}
            v_mov_b32 v{T+11}, s{sTAG}
            s_mov_b32 exec_lo, 0x00010001
            s_mov_b32 exec_hi, 0x00010001
            buffer_store_dwordx4 {vr(T+8,4)}, v14, {sr(SW,4)}, 0 offen sc1
            s_mov_b64 exec, -1""")
        if closed:
            p.I(f"""v_mul_f32 v{T+3}, v{T+2}, v{T+2}
            v_mul_f32 v{T+3}, v{T+3}, v{T}
            v_mov_b32 v{T+4}, {f32(1e-5)}
            v_fmac_f32 v{T+4}, {f32(1.0/512)}, v{T+3}
            v_rsq_f32 v{T+4}, v{T+4}
            v_mul_f32 v{T+2}, v{T+2}, v{T+4}""")
        for i in range(16): p.I(f"v_pk_mul_f32 {vr(X+2*i,2)}, {vr(X+2*i,2)}, {vr(T+2,2)} op_sel_hi:[1,0]")
        for i in range(16): p.I(f"v_cvt_pk_bf16_f32 v{RAW+i}, v{X+2*i}, v{X+2*i+1}")
    stamp(p, 1)
    p.I("s_waitcnt vmcnt(0)")
    stamp(p, 2)
    if "cf2" in OPT: ln(True, True)
    else: ln(True); ln(False)
    for k in range(4): p.I(f"ds_write_b128 v15, {vr(RAW+4*k,4)} offset:{k*256}")
    p.I(f"""v_mov_b32 v21, 1
    s_waitcnt lgkmcnt(0)
    s_mov_b64 exec, 1
    ds_add_u32 v20, v21
    s_mov_b64 exec, -1
    s_mov_b32 s{sSPIN}, 0""")
    p.L("B_lnsync")
    p.I(f"""ds_read_b32 v21, v20
    s_add_u32 s{sSPIN}, s{sSPIN}, 1
    s_waitcnt lgkmcnt(0)
    v_readfirstlane_b32 s{sT0}, v21
    s_cmp_ge_u32 s{sSPIN}, {SPIN_MAX}
    s_cbranch_scc1 B_lnsync_ok
    s_cmp_lt_u32 s{sT0}, 4
    s_cbranch_scc1 B_lnsync""")
    p.L("B_lnsync_ok")
    for i in range(4):
        for tt in range(2): p.I(f"ds_read_b64_tr_b16 {vr(X+4*i+2*tt,2)}, v16 offset:{tt*4*LNP + i*64}")
    p.I(f"v_mov_b32 v19, s{sTAG}")
    for i in range(4):
        p.I(f"s_mov_b32 s{sT0}, {i << 17}\ns_waitcnt lgkmcnt({6 - 2*i})")
        p.I(f"buffer_store_dwordx4 {vr(X+4*i,4)}, v17, {sr(SW,4)}, s{sT0} offen sc1")
    if "b2late" not in OPT: p.I("s_barrier")
    stamp(p, 3)
    p.I(f"""s_waitcnt vmcnt(0)
    s_mov_b64 exec, 1
    buffer_store_dword v19, v18, {sr(SW,4)}, 0 offen sc1
    s_mov_b64 exec, -1""")
    if "b2late" in OPT: p.I("s_barrier")
    stamp(p, 4)
    p.I(f"s_cmp_eq_u32 s{sFT}, 15\ns_cbranch_scc1 F_cons")
    AK, AM, AS, TB, LB = 16, 32, 48, 64, 100
    NL = opt("nlu", 12)
    TA = [[2, 3, 4], [5, 6, 7], [8, 9, 10]]
    BI = 180
    p.I(f"""s_and_b32 s{sA}, s{sW4}, 1
    s_lshr_b32 s{sB}, s{sW4}, 1
    v_lshrrev_b32 v15, 5, v1
    s_mul_i32 s{sT0}, s{sFT}, 192
    s_lshl_b32 s{sT1}, s{sA}, 7
    s_add_u32 s{sT1}, s{sT1}, s{sT0}
    v_lshl_add_u32 v12, v15, 3, s{sT1}
    s_lshl_b32 s{sT1}, s{sA}, 5
    s_add_u32 s{sT1}, s{sT1}, s{sT0}
    s_add_u32 s{sT1}, s{sT1}, 64
    v_lshl_add_u32 v13, v15, 3, s{sT1}""")
    srd(p, SB, P_B1, 2752)
    for g in range(4): p.I(f"buffer_load_dwordx2 {vr(BI+2*g,2)}, v12, {sr(SB,4)}, 0 offen offset:{16*g}")
    for g in range(2): p.I(f"buffer_load_dwordx2 {vr(BI+8+2*g,2)}, v13, {sr(SB,4)}, 0 offen offset:{16*g}")
    p.I(f"""s_lshr_b32 s{sT0}, s{sDU}, 1
    s_lshl_b32 s{sT0}, s{sT0}, 14
    s_add_u32 s{sT0}, s{sT0}, {FH}
    s_lshl_b32 s{sT1}, s{sA}, 13
    s_add_u32 s{sT0}, s{sT0}, s{sT1}
    v_lshl_add_u32 v12, v1, 7, s{sT0}
    s_lshl_b32 s{sT1}, s98, 9
    s_add_u32 s{sT3}, s{sT0}, s{sT1}
    s_lshl_b32 s{sT0}, s{sDU}, 1
    s_add_u32 s{sT0}, s{sT0}, s{sB}
    s_lshl_b32 s{sT0}, s{sT0}, 17
    s_lshl_b32 s{sT1}, s{sA}, 10
    s_add_u32 s{sT0}, s{sT0}, s{sT1}
    s_add_u32 s{sT0}, s{sT0}, {HF}
    v_lshl_add_u32 v11, v1, 4, s{sT0}
    v_bfe_u32 v13, v1, 2, 2
    v_lshl_add_u32 v13, v15, 3, v13
    v_mul_u32_u24 v13, 192, v13
    v_bfe_u32 v14, v1, 4, 1
    v_lshl_add_u32 v13, v14, 5, v13
    v_and_b32 v14, 3, v1
    v_lshl_add_u32 v13, v14, 3, v13
    s_mul_i32 s{sT0}, s{sA}, {16*192}
    s_add_u32 s{sT1}, s{sT0}, 64
    v_add_u32 v5, s{sT1}, v13
    s_lshl_b32 s{sT1}, s{sA}, 7
    s_add_u32 s{sT2}, s{sT0}, s{sT1}
    v_add_u32 v2, s{sT2}, v13
    s_sub_u32 s{sT2}, s{sT0}, s{sT1}
    s_add_u32 s{sT2}, s{sT2}, 128
    v_add_u32 v8, s{sT2}, v13""")
    for b in range(3):
        p.I(f"v_add_u32 v{TA[b][1]}, 0x10000, v{TA[b][0]}\nv_add_u32 v{TA[b][2]}, 0x20000, v{TA[b][0]}")
    q = VQ(p)
    q.add("BI", 6)
    if opt("hd", 0): p.I(f"s_sleep {opt('hd', 0)}")
    if "vpoll" in OPT: poll(p, "B_pollh", 12, 14, 1, opt("hsl", 2))
    else: spoll(p, "B_pollh", sT3, 16)
    stamp(p, 5)
    def lload(g):
        if g == 8 and "vpoll" not in OPT:
            p.I(f"buffer_load_dword v14, v12, {sr(SW,4)}, 0 offen sc1"); q.add("PH")
        if g == 16 and "vpoll" not in OPT:
            q.wait("PH")
            if "nopoll" not in OPT:
                p.I(f"v_cmp_ne_u32 vcc, s{sTAG}, v14\ns_cbranch_vccz B_pollh2_ok")
            poll(p, "B_pollh2", 12, 14)
        if g % 4 == 0:
            n = g // 4
            p.I(f"s_add_u32 s{sOF}, s98, {n % UBLK}\ns_and_b32 s{sOF}, s{sOF}, {UBLK - 1}\ns_add_u32 s{sOF}, s{sOF}, {n - n % UBLK}\ns_lshl_b32 s{sOF}, s{sOF}, 13")
        elif g % 2 == 0:
            p.I(f"s_add_u32 s{sOF}, s{sOF}, 4096")
        if "noL" in OPT and g >= NL: return
        p.I(f"buffer_load_dwordx4 {vr(LB+4*(g % NL),4)}, v11, {sr(SW,4)}, s{sOF} offen offset:{(g & 1) * 2048} sc1")
        q.add(f"L{g}")
    def treads(g):
        n, i = g >> 2, g & 3
        o = (n % UND) * USLOT + i * 32 * 192
        return [f"ds_read_b64_tr_b16 {vr(TB+12*(g%3)+4*b+2*tt,2)}, " + lds_ref(TA[b], o + tt * 4 * 192) for b in range(3) for tt in range(2)]
    for g in range(NL): lload(g)
    q.wait("BI")
    for i in range(8):
        p.I(f"v_lshlrev_b32 v{AK+2*i}, 16, v{BI+i}\nv_and_b32 v{AK+2*i+1}, 0xffff0000, v{BI+i}")
    p.I("s_barrier")
    emit(p, treads(0) + treads(1))
    G = 64
    for g in range(G):
        Lr = vr(LB + 4 * (g % NL), 4)
        M = [f"{MFMA} {vr(a,16)}, {vr(TB+12*(g%3)+4*b,4)}, {Lr}, {'0' if (g == 0 and b > 0) else vr(a,16)}" for b, a in enumerate((AK, AM, AS))]
        nxt = g + 2
        p.I(f"s_waitcnt lgkmcnt({6 if g + 1 < G else 0})")
        q.wait(f"L{g}")
        if "ust" in OPT and g % 16 == 0: stamp(p, 9 + g // 16)
        p.I(M[0])
        if nxt < G:
            if nxt % 4 == 0: p.I("s_waitcnt lgkmcnt(0)\ns_barrier")
            R = treads(nxt)
            if "noR" in OPT: R = []
            if "r222" in OPT: emit(p, R[:2] + [M[1]] + R[2:4] + [M[2]] + R[4:])
            else: emit(p, R[:3] + [M[1]] + R[3:] + [M[2]])
        else: emit(p, M[1:])
        if "lbunch" in OPT:
            if g % 4 in (0, 1):
                for gg in (g + NL + (g % 4), g + NL + (g % 4) + 1):
                    if gg - 2 < G and gg - 2 >= NL: lload(gg - 2)
        elif g + NL < G: lload(g + NL)
    stamp(p, 6)
    RSC = 4 * USLOT
    c1 = -2.0 * math.sqrt(2.0 / math.pi) * LOG2E
    c2 = c1 * 0.044715
    p.I(f"""s_mul_i32 s{sT0}, s{sW4}, 6144
    s_add_u32 s{sT0}, s{sT0}, {RSC}
    v_lshl_add_u32 v2, v1, 4, s{sT0}
    s_xor_b32 s{sT0}, s{sW4}, 1
    s_mul_i32 s{sT0}, s{sT0}, 6144
    s_add_u32 s{sT0}, s{sT0}, {RSC}
    v_lshl_add_u32 v3, v1, 4, s{sT0}
    s_cmp_eq_u32 s{sA}, 1
    s_cselect_b64 s[32:33], -1, 0""")
    MK, MS = 64, 72
    for i in range(8):
        p.I(f"v_cndmask_b32 v{MS+i}, v{AM+8+i}, v{AM+i}, s[32:33]")
        p.I(f"v_cndmask_b32 v{MK+i}, v{AM+i}, v{AM+8+i}, s[32:33]")
    for k in range(2): p.I(f"ds_write_b128 v3, {vr(MS+4*k,4)} offset:{4096+k*1024}")
    for k in range(4): p.I(f"ds_write_b128 v3, {vr(AS+4*k,4)} offset:{k*1024}")
    for i in range(4):
        p.I(f"v_lshlrev_b32 v{AM+2*i}, 16, v{BI+8+i}\nv_and_b32 v{AM+2*i+1}, 0xffff0000, v{BI+8+i}")
    for i in range(4): p.I(f"v_pk_add_f32 {vr(AM+2*i,2)}, {vr(AM+2*i,2)}, {vr(MK+2*i,2)}")
    p.I(f"""s_mov_b32 s34, {f32(c2)}
    s_mov_b32 s35, {f32(c2)}
    v_mov_b32 v12, {f32(c1)}
    v_mov_b32 v13, {f32(c1)}
    s_lshl_b32 s{sT0}, s{sDU}, 1
    s_add_u32 s{sT0}, s{sT0}, s{sB}
    s_mul_i32 s{sT1}, s{sT0}, {GFS}
    s_mul_i32 s{sT2}, s{sFT}, 6
    s_add_u32 s{sT1}, s{sT1}, s{sT2}
    s_lshl_b32 s{sT1}, s{sT1}, 10
    s_add_u32 s{sT1}, s{sT1}, {GF}
    v_lshl_add_u32 v14, v1, 4, s{sT1}
    s_lshl_b32 s36, s{sA}, 12
    s_lshl_b32 s37, s{sA}, 10
    s_add_u32 s37, s37, 2048
    s_lshl_b32 s{sT0}, s{sT0}, 5
    s_lshl_b32 s{sT1}, s{sFT}, 1
    s_add_u32 s{sT0}, s{sT0}, s{sT1}
    s_add_u32 s{sT0}, s{sT0}, s{sA}
    s_lshl_b32 s{sT0}, s{sT0}, 7
    s_add_u32 s{sT0}, s{sT0}, {FG}
    v_mov_b32 v15, s{sT0}
    v_mov_b32 v11, s{sTAG}
    s_cmp_eq_u32 s{sFT}, 14
    s_cselect_b32 s38, 0, -1
    s_waitcnt lgkmcnt(0)
    s_barrier""")
    E = 64
    for k in range(6): p.I(f"ds_read_b128 {vr(E+4*k,4)}, v2 offset:{k*1024}")
    p.I("s_waitcnt lgkmcnt(0)")
    U = AK
    for i in range(12): p.I(f"v_pk_add_f32 {vr(U+2*i,2)}, {vr(U+2*i,2)}, {vr(E+2*i,2)}")
    for i in range(12): p.I(f"v_pk_mul_f32 {vr(E+2*i,2)}, {vr(U+2*i,2)}, {vr(U+2*i,2)}")
    for i in range(12): p.I(f"v_pk_fma_f32 {vr(E+2*i,2)}, {vr(E+2*i,2)}, s[34:35], v[12:13]")
    for i in range(12): p.I(f"v_pk_mul_f32 {vr(E+2*i,2)}, {vr(E+2*i,2)}, {vr(U+2*i,2)}")
    for i in range(24): p.I(f"v_exp_f32 v{E+i}, v{E+i}")
    for i in range(12): p.I(f"v_pk_add_f32 {vr(E+2*i,2)}, {vr(E+2*i,2)}, 1.0 op_sel_hi:[1,0]")
    for i in range(24): p.I(f"v_rcp_f32 v{E+i}, v{E+i}")
    for i in range(12): p.I(f"v_pk_mul_f32 {vr(E+2*i,2)}, {vr(E+2*i,2)}, {vr(U+2*i,2)}")
    for i in range(12): p.I(f"v_cvt_pk_bf16_f32 v{48+i}, v{E+2*i}, v{E+2*i+1}")
    for i in range(4): p.I(f"v_and_b32 v{56+i}, s38, v{56+i}")
    p.I(f"""buffer_store_dwordx4 v[48:51], v14, {sr(SW,4)}, s36 offen sc1
    buffer_store_dwordx4 v[52:55], v14, {sr(SW,4)}, s36 offen offset:1024 sc1
    buffer_store_dwordx4 v[56:59], v14, {sr(SW,4)}, s37 offen sc1""")
    stamp(p, 7)
    p.I(f"""s_waitcnt vmcnt(0)
    s_mov_b64 exec, 1
    buffer_store_dword v11, v15, {sr(SW,4)}, 0 offen sc1
    s_mov_b64 exec, -1""")
    stamp(p, 8)

def gen_F(p):
    p.L("F_cons")
    p.I("s_barrier")
    p.L("F_cons2")
    if "noF" in OPT:
        stamp_out(p, 14); p.I("s_endpgm")
    A0, A1, A2, TB, LB = 16, 32, 48, 64, 88
    NL = opt("nlf", 12)
    TA = [[2, 3, 4], [5, 6, 7]]
    p.I(f"""s_and_b32 s{sA}, s{sW4}, 1
    s_lshr_b32 s{sB}, s{sW4}, 1
    v_lshrrev_b32 v9, 5, v1
    s_lshl_b32 s{sT0}, s{sST}, 6
    s_lshl_b32 s{sT1}, s{sB}, 5
    s_add_u32 s{sT0}, s{sT0}, s{sT1}
    v_and_b32 v10, 31, v1
    v_add_u32 v10, s{sT0}, v10
    v_lshlrev_b32 v11, 1, v10
    v_lshlrev_b32 v14, 10, v10
    s_lshl_b32 s{sT0}, s{sDT}, 7
    s_lshl_b32 s{sT1}, s{sA}, 6
    s_add_u32 s{sT0}, s{sT0}, s{sT1}
    v_add_u32 v14, s{sT0}, v14
    v_lshl_add_u32 v15, v9, 4, v14
    v_lshl_add_u32 v14, v9, 3, v14""")
    srd(p, SA, P_X, 0x200000); srd(p, SB, P_B2, 4096)
    for g in range(4): p.I(f"buffer_load_dwordx2 {vr(TB+2*g,2)}, v14, {sr(SA,4)}, 0 offen offset:{16*g}")
    p.I(f"buffer_load_ushort v{TB+8}, v11, {sr(SB,4)}, 0 offen")
    p.I(f"""v_bfe_u32 v10, v1, 4, 1
    v_lshlrev_b32 v10, 1, v10
    v_bfe_u32 v11, v1, 1, 1
    v_add_u32 v10, v10, v11
    v_bfe_u32 v11, v1, 3, 1
    v_lshl_add_u32 v10, v11, 2, v10
    v_lshlrev_b32 v10, 4, v10
    v_and_b32 v11, 1, v1
    v_lshl_add_u32 v10, v11, 3, v10
    v_bfe_u32 v11, v1, 2, 2
    v_lshl_add_u32 v10, v11, 7, v10
    v_lshl_add_u32 v8, v9, 9, v10
    s_lshl_b32 s{sT0}, s{sDT}, 1
    s_add_u32 s{sT0}, s{sT0}, s{sA}
    s_lshl_b32 s{sT1}, s{sT0}, 12
    s_add_u32 s{sT1}, s{sT1}, {FG}
    v_lshl_add_u32 v12, v1, 7, s{sT1}
    s_mov_b32 s{sT3}, s{sT1}
    s_mul_i32 s{sT0}, s{sT0}, {GFS*1024}
    s_lshl_b32 s{sT1}, s{sB}, 10
    s_add_u32 s{sT0}, s{sT0}, s{sT1}
    s_add_u32 s{sT0}, s{sT0}, {GF}
    v_lshl_add_u32 v10, v1, 4, s{sT0}
    s_lshl_b32 s{sT0}, s{sST}, 1
    s_add_u32 s{sT0}, s{sT0}, s{sB}
    s_lshl_b32 s{sT1}, s{sT0}, 11
    s_add_u32 s{sT1}, s{sT1}, {FO}
    v_lshl_add_u32 v13, v1, 7, s{sT1}
    s_lshl_b32 s{sT0}, s{sT0}, 15
    s_lshl_b32 s{sT1}, s{sA}, 10
    s_add_u32 s{sT0}, s{sT0}, s{sT1}
    s_add_u32 s{sT0}, s{sT0}, {OF}
    v_lshl_add_u32 v11, v1, 4, s{sT0}""")
    def set_taddr(skh):
        return [f"s_mul_i32 s{sT0}, s{skh}, {2048 + 64}", f"v_xor_b32 v2, s{sT0}, v8", "v_xor_b32 v5, 64, v2",
                "v_add_u32 v3, 0x10000, v2", "v_add_u32 v4, 0x20000, v2", "v_add_u32 v6, 0x10000, v5", "v_add_u32 v7, 0x20000, v5"]
    P0, P1 = ("O", "Y") if OFIRST else ("Y", "O")
    KH = {"Y": sB, "O": sA}; NFL = {"Y": 30, "O": 16}; VFL = {"Y": 12, "O": 13}; VL = {"Y": 10, "O": 11}; ACC1 = {"Y": A1, "O": A2}
    G0, G = 4 * FCNT[P0], 60
    emit(p, set_taddr(KH[P0]))
    p.I(f"""s_lshl_b32 s{sT0}, s{sW4}, 12
    s_add_u32 s{sT0}, s{sT0}, 49152
    v_lshl_add_u32 v9, v1, 4, s{sT0}
    v_xor_b32 v246, 8192, v9
    v_xor_b32 v247, 4096, v9""")
    XW = {"Y": (246, 0), "O": (247, 16384)}
    stamp(p, 9)
    q = VQ(p)
    q.add("XB", 5)
    if "g2" in OPT:
        p.I(f"""s_bitcmp1_b32 s2, 3
        s_cselect_b32 s{sT0}, s{sFT}, s{sRT}
        s_cselect_b32 s{sT1}, 15, 0
        s_sub_u32 s{sT0}, s{sT0}, s{sT1}
        s_cmp_ge_u32 s{sT0}, 2
        s_cbranch_scc1 F_pe_ok
        s_mov_b64 exec, 1""")
        poll(p, "F_pe", VFL[P0], 14, 1, 16)
    if opt("gd", 0): p.I(f"s_bitcmp0_b32 s2, 3\ns_cbranch_scc1 F_nogd\ns_sleep {opt('gd', 0)}\nF_nogd:")
    set_exec(p, NFL[P0])
    poll(p, "F_poll0", VFL[P0], 14, 1, opt("gsl", 2))
    stamp(p, 10)
    part_of = lambda g: (P0, g) if g < G0 else (P1, g - G0)
    def lload(g):
        part, gg = part_of(g)
        if g == G0:
            stamp(p, 11)
            q.wait("PO")
            set_exec(p, NFL[P1])
            if "nopoll" not in OPT:
                p.I(f"v_cmp_ne_u32 vcc, s{sTAG}, v14\ns_cbranch_vccz F_poll1_ok")
            poll(p, "F_poll1", VFL[P1], 14, 1, opt("gsl", 2))
            stamp(p, 12)
        if g == G0 - opt("poe", 6):
            set_exec(p, NFL[P1])
            p.I(f"buffer_load_dword v14, v{VFL[P1]}, {sr(SW,4)}, 0 offen sc1\ns_mov_b64 exec, -1")
            q.add("PO")
        if gg == 0: p.I(f"s_lshl_b32 s{sOF}, s{sROT[part]}, 13")
        elif gg % 2 == 0:
            p.I(f"s_add_u32 s{sOF}, s{sOF}, 4096")
            if gg % 4 == 0: p.I(f"s_cmp_eq_u32 s{sOF}, {FCNT[part] * 8192}\ns_cselect_b32 s{sOF}, 0, s{sOF}")
        p.I(f"buffer_load_dwordx4 {vr(LB+4*(g % NR),4)}, v{VL[part]}, {sr(SW,4)}, s{sOF} offen offset:{(gg & 1) * 2048} sc1")
        q.add(f"L{g}")
    def treads(g):
        n, i = g >> 2, g & 3
        o = fslot(n) + i * 4096
        L = set_taddr(KH[P1]) if g == G0 else []
        return L + [f"ds_read_b64_tr_b16 {vr(TB+8*(g%3)+4*b+2*tt,2)}, " + lds_ref(TA[b], o + tt * 1024) for b in range(2) for tt in range(2)]
    NR = 32
    FB1 = opt("fb1", 8)
    def upto(g):
        u = g + 1 + NL
        if OFIRST:
            if g < 0: u = G0
            elif g + 1 + NL <= G0: u = G0
            else: u = max(u, min(G0 + FB1 + (g + NL - G0), g + 1 + opt("nl2", 16)))
        return min(G, u, g + 1 + NR)
    il = 0
    while il < upto(-1): lload(il); il += 1
    q.wait("XB")
    p.I(f"v_lshlrev_b32 v{TB+8}, 16, v{TB+8}")
    for i in range(8):
        p.I(f"v_lshlrev_b32 v{A0+2*i}, 16, v{TB+i}\nv_and_b32 v{A0+2*i+1}, 0xffff0000, v{TB+i}")
    for i in range(16): p.I(f"v_add_f32 v{A0+i}, v{A0+i}, v{TB+8}")
    p.I("s_barrier")
    emit(p, treads(0) + treads(1))
    EX = 224
    for g in range(G):
        part, gg = part_of(g)
        Lr = vr(LB + 4 * (g % NR), 4)
        M = []
        for blk in range(2):
            acc = A0 if blk == 0 else ACC1[part]
            T = vr(TB + 8 * (g % 3) + 4 * blk, 4)
            a, b = (Lr, T) if part == "Y" else (T, Lr)
            c = "0" if (blk == 1 and gg == 0) else vr(acc, 16)
            M.append(f"{MFMA} {vr(acc,16)}, {a}, {b}, {c}")
        nxt = g + 2
        p.I(f"s_waitcnt lgkmcnt({4 if g + 1 < G else 0})")
        q.wait(f"L{g}")
        p.I(M[0])
        if nxt < G:
            if nxt == 52:
                for k in range(4): p.I(f"ds_write_b128 v{XW[P0][0]}, {vr(ACC1[P0]+4*k,4)} offset:{XW[P0][1] + k*1024}")
            if nxt % 4 == 0: p.I("s_waitcnt lgkmcnt(0)\ns_barrier")
            if nxt == 52:
                for k in range(4): p.I(f"ds_read_b128 {vr(EX+4*k,4)}, v9 offset:{XW[P0][1] + k*1024}")
            emit(p, treads(nxt))
        p.I(M[1])
        while il < upto(g): lload(il); il += 1
    stamp(p, 13)
    srd(p, SA, P_OUT, 0x200000)
    for k in range(4): p.I(f"ds_write_b128 v{XW[P1][0]}, {vr(ACC1[P1]+4*k,4)} offset:{XW[P1][1] + k*1024}")
    for i in range(8): p.I(f"v_pk_add_f32 {vr(A0+2*i,2)}, {vr(A0+2*i,2)}, {vr(EX+2*i,2)}")
    p.I("s_waitcnt lgkmcnt(0)\ns_barrier")
    for k in range(4): p.I(f"ds_read_b128 {vr(EX+4*k,4)}, v9 offset:{XW[P1][1] + k*1024}")
    p.I("s_waitcnt lgkmcnt(0)")
    for i in range(8): p.I(f"v_pk_add_f32 {vr(A0+2*i,2)}, {vr(A0+2*i,2)}, {vr(EX+2*i,2)}")
    for i in range(8): p.I(f"v_cvt_pk_bf16_f32 v{32+i}, v{A0+2*i}, v{A0+2*i+1}")
    p.I(f"""v_permlane32_swap_b32 v32, v34
    v_permlane32_swap_b32 v33, v35
    v_permlane32_swap_b32 v36, v38
    v_permlane32_swap_b32 v37, v39
    buffer_store_dwordx4 v[32:35], v15, {sr(SA,4)}, 0 offen{OSF}
    buffer_store_dwordx4 v[36:39], v15, {sr(SA,4)}, 0 offen offset:32{OSF}""")
    stamp_out(p, 14)
    p.I("s_endpgm")
    p.L("F_load")
    if "noF" in OPT:
        stamp_out(p, 14); p.I("s_endpgm")
    stamp(p, 9)
    p.I(f"""s_lshl_b32 s{sT0}, s2, 3
    s_add_u32 s{sT0}, s{sT0}, s{sWV}
    s_cmp_lg_u32 s{sT0}, 4
    s_cbranch_scc1 F_l_go
    v_lshlrev_b32 v2, 7, v1
    v_add_u32 v2, {FH}, v2
    v_add_u32 v3, 8192, v2
    v_lshrrev_b32 v4, 4, v1
    v_lshlrev_b32 v4, 13, v4
    v_and_b32 v5, 15, v1
    v_lshl_add_u32 v4, v5, 8, v4
    v_add_u32 v4, {FK}, v4
    v_add_u32 v5, 32768, v4""")
    for i in range(4): poll(p, f"F_ep{i}", 2 + i, 6)
    p.I(f"""v_mov_b32 v2, {FLG}
    v_mov_b32 v3, s{sTAG}
    s_mov_b64 exec, 1
    buffer_store_dword v3, v2, {sr(SW,4)}, 0 offen
    s_mov_b64 exec, -1""")
    p.L("F_l_go")
    if "aprio" in OPT: p.I("s_setprio 0")
    nf = len(FSEQ)
    p.I("s_bitcmp0_b32 s2, 3\ns_cbranch_scc1 F_l_A")
    for role, pre, burst in (("B", FPRE, opt("fbb", FND - 1)), ("A", FPA, FPA)):
        if role == "A": p.L("F_l_A")
        q = VQ(p)
        for n in range(pre): q.add(f"F{n}", 4)
        for n in range(pre, burst): emit(p, f_dma(n)); q.add(f"F{n}", 4)
        paced(p, q, "F", f_dma, burst, nf, FND, opt("fml", 2))
        if role == "B": p.I("s_branch F_l_end")
    p.L("F_l_end")
    stamp_out(p, 14)

def main():
    hdr = open("hdr.txt").read().split("; Override launch")[0]
    out = hdr + f"; @launch grid=(256,1,1) block=(512,1,1) lds={LDS}\n"
    out += '.amdgcn_target "amdgcn-amd-amdhsa--gfx950"\n.text\n'
    p = Prog(); gen(p); out += p.finalize()
    out += "CODE_END:\n.fill 1400, 4, 0xbf800000\n"
    out += f""".section .rodata,"a"
.p2align 6
.amdhsa_kernel {NAME}
  .amdhsa_next_free_vgpr 256
  .amdhsa_next_free_sgpr 102
  .amdhsa_accum_offset 256
  .amdhsa_group_segment_fixed_size 0
  .amdhsa_kernarg_size 88
  .amdhsa_user_sgpr_count 2
  .amdhsa_user_sgpr_kernarg_segment_ptr 1
  .amdhsa_system_sgpr_workgroup_id_x 1
.end_amdhsa_kernel
"""
    if "nokv" in OPT:
        out = "\n".join(l for l in out.split("\n") if not (l.strip().startswith("buffer_store_dwordx4") and (", v20," in l or ", v21," in l)))
    open(sys.argv[1], "w").write(out)
main()
```

```python
import sys, math, struct, re
from asmlib import Prog

NAME = "parallel_sum__sliding_block__mixer_token_mlp__prompt_kernel"
HF, KF, VF, GF, OF = 0x0, 0x200000, 0x400000, 0x600000, 0x800000
FLG = 0xA00000
ST = FLG + 0x1000
FH = ST + 0x8000
FK = FH + 0x10000
FG = FK + 0x10000
FO = FG + 0x10000
WS_USED = FO + 0x20000
GFS = 90
LDS = 163840
def f32(x): return "0x%08x" % struct.unpack("<I", struct.pack("<f", x))[0]
LOG2E = 1.4426950408889634
MFMA = "v_mfma_f32_32x32x16_bf16"
MFMA16 = "v_mfma_f32_16x16x32_bf16"
def vr(a, n): return f"v[{a}:{a+n-1}]"
def sr(a, n): return f"s[{a}:{a+n-1}]"
OPT = sys.argv[2:]
STAMP = "--stamp" in OPT
def opt(name, default):
    for o in OPT:
        if o.startswith(name + "="): return int(o.split("=")[1])
    return default
SPIN_MAX = 100000
OSF = {0: '', 1: ' sc1', 2: ' nt', 3: ' sc0 sc1', 4: ' sc1 nt'}[opt('osf', 0)]
P_X, P_WQKV, P_WO, P_W1, P_B1, P_W2, P_B2, P_OUT, P_DBG, P_WS = 64, 66, 68, 72, 74, 76, 78, 80, 82, 84
SA, SB, SW, SC, SD = 4, 8, 12, 16, 20
sWV, sW4, sR, sC, sK, sST, sDT, sTAG = 3, 24, 25, 26, 27, 29, 30, 31
sT0, sT1, sT2, sT3 = 28, 86, 87, 88
sM0, sOF, sA, sB, sSPIN, sFT, sDU, sHQ, sRT, sN = 89, 90, 91, 92, 93, 94, 95, 94, 95, 96
VST = 255

def emit(p, L):
    for x in L: p.I(x)
def stamp(p, idx):
    if not STAMP: return
    if idx == 0: return
    if idx == 1 or idx == -1:
        p.I("s_waitcnt lgkmcnt(0)")
        p.I(f"v_writelane_b32 v{VST}, s58, 0")
        if idx == -1: return
    p.I("s_memtime s[100:101]" if "cyc" in OPT else "s_memrealtime s[100:101]")
    p.I("s_waitcnt lgkmcnt(0)")
    p.I(f"v_writelane_b32 v{VST}, s100, {idx}")
def stamp_out(p, n):
    if not STAMP: return
    p.I("s_waitcnt vmcnt(0)")
    stamp(p, n)
    p.I(f"""s_lshl_b32 s98, s2, 3
    s_add_u32 s98, s98, s{sWV}
    s_lshl_b32 s98, s98, 6
    s_add_u32 s98, s98, 0x1000000
    v_lshl_add_u32 v2, v1, 2, s98
    s_mov_b64 exec, 0xffff
    global_store_dword v2, v{VST}, {sr(P_WS,2)}""")
def dpp_add(v, m): return f"v_add_f32_dpp v{v}, v{v}, v{v} {m} row_mask:0xf bank_mask:0xf"
def interleave(main, fill, upto=None):
    out = []; n = upto or len(main); k = 0
    for i, m in enumerate(main):
        out.append(m)
        tgt = min(len(fill), (len(fill) * (i + 1) + n - 1) // n)
        while k < tgt: out.append(fill[k]); k += 1
    return out
def srd(p, s, ptr, size):
    p.I(f"s_mov_b32 s{s}, s{ptr}\ns_mov_b32 s{s+1}, s{ptr+1}\ns_mov_b32 s{s+2}, {size}\ns_mov_b32 s{s+3}, 0x00020000")
def set_exec(p, nl):
    m = (1 << nl) - 1
    p.I(f"s_mov_b32 exec_lo, {hex(m & 0xffffffff)}\ns_mov_b32 exec_hi, {hex(m >> 32)}")
def poll(p, lab, vaddr, vdat, ndw=1, sleep=2):
    if "nopoll" in OPT:
        p.I("s_waitcnt vmcnt(0)\ns_mov_b64 exec, -1"); return
    ld = {1: "dword", 2: "dwordx2"}[ndw]
    p.I(f"s_mov_b32 s{sSPIN}, 0")
    p.L(lab)
    p.I(f"buffer_load_{ld} {'v%d' % vdat if ndw == 1 else vr(vdat, ndw)}, v{vaddr}, {sr(SW,4)}, 0 offen sc1")
    p.I(f"s_add_u32 s{sSPIN}, s{sSPIN}, 1")
    p.I("s_waitcnt vmcnt(0)")
    if ndw == 2:
        p.I(f"v_xor_b32 v{vdat}, s{sTAG}, v{vdat}\nv_xor_b32 v{vdat+1}, s{sTAG}, v{vdat+1}\nv_or_b32 v{vdat}, v{vdat}, v{vdat+1}\nv_cmp_ne_u32 vcc, 0, v{vdat}")
    else:
        p.I(f"v_cmp_ne_u32 vcc, s{sTAG}, v{vdat}")
    p.I(f"""s_cmp_ge_u32 s{sSPIN}, {SPIN_MAX}
    s_cbranch_scc1 {lab}_ok
    s_cbranch_vccz {lab}_ok
    s_sleep {sleep}
    s_branch {lab}""")
    p.L(lab + "_ok")
    p.I("s_mov_b64 exec, -1")
def spoll(p, lab, soff, n, sleep=1):
    if "nopoll" in OPT: return
    tp = 100
    p.I(f"s_add_u32 s62, s{P_WS}, s{soff}\ns_addc_u32 s63, s{P_WS+1}, 0")
    p.I(f"s_mov_b32 s{sSPIN}, 0\ns_mov_b32 s{tp}, s{sTAG}\ns_mov_b32 s{tp+1}, s{sTAG}")
    p.L(lab)
    for i in range(n): p.I(f"s_load_dword s{32+i}, s[62:63], {i*128} glc")
    p.I(f"s_add_u32 s{sSPIN}, s{sSPIN}, 1")
    p.I("s_waitcnt lgkmcnt(0)")
    for i in range(n // 2): p.I(f"s_xor_b64 {sr(32+2*i,2)}, {sr(32+2*i,2)}, {sr(tp,2)}")
    for i in range(1, n // 2): p.I(f"s_or_b64 s[32:33], s[32:33], {sr(32+2*i,2)}")
    p.I(f"""s_cbranch_scc0 {lab}_ok
    s_cmp_ge_u32 s{sSPIN}, {SPIN_MAX}
    s_cbranch_scc1 {lab}_ok
    s_sleep {sleep}
    s_branch {lab}""")
    p.L(lab + "_ok")
class VQ:
    def __init__(self, p): self.p = p; self.q = []
    def add(self, tag, n=1): self.q += [tag] * n
    def wait(self, tag):
        if tag not in self.q: return
        idx = max(i for i, x in enumerate(self.q) if x == tag)
        self.p.I(f"s_waitcnt vmcnt({min(63, len(self.q) - 1 - idx)})")
        del self.q[:idx + 1]
    def clear(self): self.q = []
def lds_ref(regs, off):
    return f"v{regs[off >> 16]} offset:{off & 0xffff}"
def get_tag(p):
    p.I(f"s_mov_b32 s{sT0}, {FLG}\ns_load_dword s{sTAG}, {sr(P_WS,2)}, s{sT0}")
def fin_tag(p):
    p.I(f"s_waitcnt lgkmcnt(0)\ns_add_u32 s{sTAG}, s{sTAG}, 1")

FND = 10
fslot = lambda n: ((n + 8) % FND) * 16384
FY, FOP = [("Y", k, 4096) for k in range(11)], [("O", k, 1024) for k in range(4)]
OFIRST = "yfirst" not in OPT
FSEQ = FOP + FY if OFIRST else FY + FOP
FCNT = {"Y": 11, "O": 4, "U": 16}
sROT = {"Y": 97, "O": 99, "U": 98}
FV = {"Y": 240, "O": 244}
FSRD = {"Y": SC, "O": SD}
def f_loader_setup(p):
    srd(p, SC, P_W2, 1376 * 4096); srd(p, SD, P_WO, 512 * 1024)
    p.I(f"""v_lshrrev_b32 v248, 3, v1
    s_lshl_b32 s{sT0}, s{sW4}, 5
    v_add_u32 v248, s{sT0}, v248
    v_bfe_u32 v249, v1, 4, 1
    v_lshlrev_b32 v249, 2, v249
    v_and_b32 v250, 7, v1
    v_xor_b32 v249, v249, v250
    v_lshlrev_b32 v249, 4, v249""")
    for name, stride, scol in (("Y", 4096, sST), ("O", 1024, sDT)):
        d = FV[name]
        p.I(f"""s_lshl_b32 s{sT0}, s{scol}, 7
        v_mul_u32_u24 v{d}, {stride}, v248
        v_add3_u32 v{d}, v{d}, v249, s{sT0}""")
        for u in range(1, 4): p.I(f"v_add_u32 v{d+u}, {u*(8*stride-1024)}, v{d}")
def f_dma(n):
    if "nofp" in OPT: return []
    name, k, st = FSEQ[n]
    L = [f"s_lshl_b32 s{sT0}, s{sW4}, 12", f"s_add_u32 m0, s{sT0}, {fslot(n)}"]
    if k == 0: L.append(f"s_mul_i32 s{sN}, s{sROT[name]}, {128 * st}")
    else: L += [f"s_add_u32 s{sN}, s{sN}, {128 * st}", f"s_cmp_eq_u32 s{sN}, {128 * st * FCNT[name]}", f"s_cselect_b32 s{sN}, 0, s{sN}"]
    L += [f"buffer_load_dwordx4 v{FV[name]+u}, {sr(FSRD[name],4)}, s{sN} offen offset:{u*1024} lds" for u in range(4)]
    return L
def split_dma(L):
    out = []; cur = []
    for x in L:
        cur.append(x)
        if x.startswith("buffer_load"): out.append(cur); cur = []
    if cur: out[-1] += cur
    return out
def paced(p, q, tag, dma, first, total, nslots, minlead, hook=None):
    items = [(n, g) for n in range(first, total) for g in split_dma(dma(n))]
    last_it = max(1, total - minlead)
    k = 0
    for t in range(total):
        q.wait(f"{tag}{t}")
        p.I("s_barrier")
        tgt = min(len(items), -(-len(items) * (t + 1) // last_it))
        while k < len(items) and items[k][0] <= t + nslots - 1 and (k < tgt or items[k][0] <= t + minlead):
            emit(p, items[k][1]); q.add(f"{tag}{items[k][0]}"); k += 1
        if hook: hook(t, k == len(items))
    assert k == len(items)
FPA = opt('fpa', 2)
FPRE = 4

def gen(p):
    p.I(f".globl {NAME}\n.p2align 8\n.type {NAME},@function")
    p.L(NAME)
    if STAMP: p.I("s_memtime s[58:59]" if "cyc" in OPT else "s_memrealtime s[58:59]")
    p.I(f"""s_cmp_ge_u32 s2, 256
    s_cbranch_scc1 L_end
    s_load_dwordx16 s[64:79], s[0:1], 0
    s_load_dwordx4 s[80:83], s[0:1], 64
    s_load_dwordx2 s[84:85], s[0:1], 80""")
    if "nocpf" not in OPT and "cpf1" not in OPT:
        p.I("s_getpc_b64 s[86:87]")
        p.L("L_pc")
        if "cpall" in OPT:
            p.I(f"""v_lshlrev_b32 v251, 7, v0
            s_bitcmp1_b32 s2, 3
            s_cselect_b32 s88, 0, 320""")
        else:
            p.I(f"""s_lshr_b32 s88, s2, 3
            v_lshl_add_u32 v251, v0, 5, s88
            v_lshlrev_b32 v251, 7, v251
            s_mov_b32 s88, 16""")
        p.I(f"""v_min_u32 v251, CODE_END-L_pc-4, v251
        v_cmp_gt_u32 vcc, s88, v0
        s_and_saveexec_b64 s[88:89], vcc
        s_cbranch_execz L_nocp
        global_load_dword v251, v251, s[86:87]""")
        p.L("L_nocp")
        p.I("s_mov_b64 exec, -1")
    p.I(f"""v_lshrrev_b32 v2, 6, v0
    v_and_b32 v1, 63, v0
    v_readfirstlane_b32 s{sWV}, v2
    s_and_b32 s{sT0}, s2, 7
    s_lshr_b32 s{sT1}, s2, 3
    s_lshr_b32 s{sR}, s{sT0}, 1
    s_and_b32 s{sC}, s{sT0}, 1
    s_lshr_b32 s{sK}, s{sT1}, 1
    s_lshr_b32 s{sT2}, s{sT1}, 2
    s_lshl_b32 s{sST}, s{sR}, 3
    s_add_u32 s{sST}, s{sST}, s{sT2}
    s_and_b32 s{sT3}, s{sT1}, 3
    s_lshl_b32 s{sDT}, s{sC}, 2
    s_add_u32 s{sDT}, s{sDT}, s{sT3}
    s_and_b32 s{sW4}, s{sWV}, 3""")
    if "norot" in OPT: p.I("s_mov_b32 s97, 0\ns_mov_b32 s99, 0")
    else: p.I(f"""s_lshl_b32 s97, s{sT3}, 1
    s_add_u32 s97, s97, s{sT2}
    s_mul_i32 s97, s97, 11
    s_lshr_b32 s97, s97, 3
    s_mul_i32 s99, s{sC}, 3
    s_add_u32 s97, s97, s99
    s_cmp_ge_u32 s97, 11
    s_cselect_b32 s99, 11, 0
    s_sub_u32 s97, s97, s99
    s_add_u32 s99, s{sT3}, s{sT2}
    s_and_b32 s99, s99, 3""")
    stamp(p, 0)
    if "fonly" in OPT:
        p.I("s_waitcnt lgkmcnt(0)")
        stamp(p, -1)
        srd(p, SW, P_WS, WS_USED)
        p.I(f"s_mov_b32 s{sTAG}, 0\ns_cmp_lt_u32 s{sWV}, 4\ns_cbranch_scc1 FO_c")
        f_loader_setup(p)
        p.I("s_bitcmp1_b32 s2, 3\ns_cbranch_scc1 FO_b")
        for n in range(FPA): emit(p, f_dma(n))
        p.I("s_waitcnt vmcnt(0)\ns_barrier\ns_branch F_load")
        p.L("FO_b")
        for n in range(FPRE): emit(p, f_dma(n))
        p.I("s_waitcnt vmcnt(0)\ns_barrier\ns_branch F_load")
        p.L("FO_c")
        p.I("s_branch F_cons")
    p.I(f"""s_bitcmp1_b32 s2, 3
    s_cbranch_scc1 B_entry""")
    if "noA" in OPT: p.I("s_endpgm")
    gen_A(p)
    gen_B(p)
    gen_F(p)
    p.L("L_end")
    p.I("s_endpgm")

QSLOT = 40960; QSCR = 3 * QSLOT
KA_, VA_, QA_ = 0, 49152, 98304
def gen_A(p):
    p.I(f"""s_lshr_b32 s{sT0}, s{sK}, 2
    s_lshl_b32 s{sRT}, s{sR}, 2
    s_add_u32 s{sRT}, s{sRT}, s{sT0}
    s_and_b32 s{sT0}, s{sK}, 3
    s_lshl_b32 s{sHQ}, s{sC}, 2
    s_add_u32 s{sHQ}, s{sHQ}, s{sT0}
    s_cmp_ge_u32 s{sWV}, 4
    s_cbranch_scc1 A_load""")
    if "scpf" in OPT:
        p.I(f"""s_getpc_b64 s[60:61]
        s_lshl_b32 s62, s{sK}, 2
        s_add_u32 s62, s62, s{sW4}
        s_lshl_b32 s62, s62, 7
        s_add_u32 s60, s60, s62
        s_addc_u32 s61, s61, 0""")
        for i in range(5): p.I(f"s_load_dword s{32+i}, s[60:61], {i * 8192}")
    p.I("s_branch A_cons")
    p.L("A_load")
    p.I(f"""v_lshrrev_b32 v10, 3, v1
    s_lshl_b32 s{sT0}, s{sW4}, 4
    v_add_u32 v10, s{sT0}, v10
    v_lshrrev_b32 v11, 4, v1
    v_and_b32 v12, 7, v1
    v_xor_b32 v13, v11, v12
    v_lshlrev_b32 v14, 10, v10
    s_lshl_b32 s{sT0}, s{sRT}, 17
    v_add_u32 v14, s{sT0}, v14
    v_lshl_add_u32 v2, v13, 4, v14
    v_xor_b32 v3, 64, v2
    v_add_u32 v3, {8*1024 - 1024}, v3
    v_and_b32 v11, 1, v11
    v_lshlrev_b32 v11, 2, v11
    v_xor_b32 v13, v11, v12
    v_mul_u32_u24 v14, 3072, v10
    s_lshl_b32 s{sT0}, s{sHQ}, 7
    v_add_u32 v14, s{sT0}, v14
    v_lshl_add_u32 v4, v13, 4, v14
    v_add_u32 v5, {8*3072 - 1024}, v4
    s_lshl_b32 s{sM0}, s{sW4}, 11
    s_waitcnt lgkmcnt(0)""")
    srd(p, SA, P_X, 0x200000); srd(p, SB, P_WQKV, 0x180000)
    if "rotq" in OPT: p.I(f"s_add_u32 s98, s{sRT}, s{sHQ}\ns_and_b32 s98, s98, 3\ns_lshl_b32 s98, s98, 1")
    else: p.I("s_mov_b32 s98, 0")
    def qdma(t):
        L = [f"s_lshl_b32 s{sT2}, s98, 7", f"s_mul_i32 s{sT3}, s98, 196608", "s_add_u32 s98, s98, 1", "s_and_b32 s98, s98, 7"]
        for b in range(5):
            L.append(f"s_add_u32 m0, s{sM0}, {(t % 3) * QSLOT + b * 8192}")
            L.append(f"s_add_u32 s{sOF}, s{sT2}, {b * 65536}" if b < 2 else f"s_add_u32 s{sOF}, s{sT3}, {(b - 2) * 1024}")
            v, s_ = (2, SA) if b < 2 else (4, SB)
            nt = " nt" if t >= opt("qnt", 99) else ""
            L.append(f"buffer_load_dwordx4 v{v}, {sr(s_,4)}, s{sOF} offen{nt} lds")
            L.append(f"buffer_load_dwordx4 v{v+1}, {sr(s_,4)}, s{sOF} offen offset:1024{nt} lds")
        return L
    emit(p, qdma(0) + qdma(1))
    stamp(p, 1)
    get_tag(p)
    srd(p, SW, P_WS, WS_USED)
    f_loader_setup(p)
    p.I(f"v_mov_b32 v252, {FLG + 128}\nv_mov_b32 v6, {QSCR + 4096}\nv_mov_b32 v7, 0\nds_write_b32 v6, v7")
    fin_tag(p)
    APF = [int(c) for c in str(opt("apf", 0))] if opt("apf", 0) else []
    HPF = [int(c) for c in str(opt("hpf", 0))] if opt("hpf", 0) else []
    if APF:
        p.I(f"""s_mov_b32 s32, s{P_W1}
        s_mov_b32 s33, s{P_W1+1}
        s_mov_b32 s34, {2048*2752}
        s_mov_b32 s35, 0x00020000
        s_lshl_b32 s{sT0}, s{sK}, 2
        s_add_u32 s{sT0}, s{sT0}, s{sW4}
        s_lshl_b32 s{sT0}, s{sT0}, 4
        s_add_u32 s{sT0}, s{sT0}, 1024
        v_lshrrev_b32 v16, 3, v1
        v_add_u32 v16, s{sT0}, v16
        v_mul_u32_u24 v16, 2752, v16
        v_and_b32 v17, 7, v1
        v_min_u32 v17, 6, v17
        v_lshl_add_u32 v16, v17, 7, v16
        s_mul_i32 s36, s{sR}, 768
        s_add_u32 s37, s36, {8*2752}""")
    if HPF:
        p.I(f"""s_lshl_b32 s{sT0}, s{sK}, 2
        s_add_u32 s{sT0}, s{sT0}, s{sW4}
        s_and_b32 s38, s{sT0}, 7
        s_lshl_b32 s38, s38, 17
        s_lshr_b32 s{sT0}, s{sT0}, 3
        s_lshl_b32 s{sT0}, s{sT0}, 13
        s_add_u32 s38, s38, s{sT0}
        s_lshl_b32 s{sT0}, s{sC}, 20
        s_add_u32 s38, s38, s{sT0}
        s_add_u32 s38, s38, {HF + 65536}
        v_lshlrev_b32 v19, 7, v1""")
    q = VQ(p); q.add("S0", 10); q.add("S1", 10)
    for t in range(8):
        q.wait(f"S{t}")
        p.I("s_barrier")
        if t + 2 < 8: emit(p, qdma(t + 2)); q.add(f"S{t+2}", 10)
        for i, tt in enumerate(APF):
            if tt == t: p.I(f"buffer_load_dword v251, v16, s[32:35], s{36+i} offen"); q.add("PF")
        if t in HPF: p.I(f"buffer_load_dword v251, v19, {sr(SW,4)}, s38 offen sc1"); q.add("PF")
    stamp(p, 2)
    p.I("s_barrier")
    p.I("s_branch A_attn")
    p.L("A_cons")
    if "cpf1" in OPT:
        p.I("s_getpc_b64 s[86:87]")
        p.L("A_pc")
        p.I(f"""s_sub_u32 s86, s86, A_pc-{NAME}
        s_subb_u32 s87, s87, 0
        v_lshlrev_b32 v22, 7, v0
        v_add_u32 v21, 0x8000, v22
        v_min_u32 v21, CODE_END-{NAME}-4, v21
        global_load_dword v22, v22, s[86:87]
        global_load_dword v21, v21, s[86:87]""")
    for r in range(240, 248): p.I(f"v_mov_b32 v{r}, 0")
    XA, WA = [[2, 3, 4, 5], [6, 7, 8, 9]], [[10, 11], [12, 13]]
    p.I(f"""s_and_b32 s{sA}, s{sW4}, 1
    s_lshr_b32 s{sB}, s{sW4}, 1
    v_lshrrev_b32 v23, 5, v1
    v_and_b32 v24, 31, v1
    v_bfe_u32 v26, v1, 1, 3
    v_xor_b32 v26, v26, v23
    s_lshl_b32 s{sT0}, s{sA}, 13
    v_lshlrev_b32 v27, 7, v24
    v_add_u32 v27, s{sT0}, v27""")
    for pp in range(4):
        p.I(f"""s_xor_b32 s{sT0}, s{sA}, {pp}
        s_lshl_b32 s{sT0}, s{sT0}, 1
        v_xor_b32 v28, s{sT0}, v26
        v_lshl_add_u32 v{XA[0][pp]}, v28, 4, v27
        v_add_u32 v{XA[1][pp]}, 0x10000, v{XA[0][pp]}""")
    p.I(f"""v_bfe_u32 v26, v1, 2, 2
    v_lshl_add_u32 v27, v23, 3, v26
    v_lshlrev_b32 v27, 7, v27
    v_bfe_u32 v28, v1, 4, 1
    v_lshlrev_b32 v28, 1, v28
    v_bfe_u32 v29, v1, 1, 1
    v_add_u32 v28, v28, v29
    s_lshl_b32 s{sT0}, s{sB}, 2
    v_add_u32 v28, s{sT0}, v28
    v_bfe_u32 v29, v1, 3, 1
    v_lshlrev_b32 v29, 2, v29
    v_xor_b32 v28, v28, v29
    v_lshl_add_u32 v27, v28, 4, v27
    v_and_b32 v29, 1, v1
    v_lshl_add_u32 v27, v29, 3, v27
    s_lshl_b32 s{sT0}, s{sA}, 11
    v_add_u32 v10, s{sT0}, v27
    v_xor_b32 v11, 2048, v10
    v_add_u32 v12, 0x10000, v10
    v_add_u32 v13, 0x10000, v11
    v_and_b32 v26, 15, v1
    v_bfe_u32 v27, v1, 4, 1
    v_cmp_eq_u32 vcc, v26, v27
    v_mov_b32 v28, 0x3f803f80
    v_cndmask_b32 v28, 0, v28, vcc
    v_mov_b32 v29, v28
    v_mov_b32 v30, v28
    v_mov_b32 v31, v28
    s_mul_i32 s{sT0}, s{sW4}, 384
    s_add_u32 s{sT0}, s{sT0}, {QSCR}
    v_lshl_add_u32 v14, v1, 2, s{sT0}
    s_mul_i32 s{sT0}, s{sB}, 768
    s_add_u32 s{sT0}, s{sT0}, {QSCR}
    v_lshl_add_u32 v15, v23, 4, s{sT0}
    v_lshl_add_u32 v16, v24, 2, s{sT0}
    s_lshl_b32 s{sT0}, s{sW4}, 9
    s_add_u32 s{sT0}, s{sT0}, {QSCR + 1536}
    v_lshl_add_u32 v17, v1, 2, s{sT0}
    v_lshl_add_u32 v18, v23, 4, s{sT0}
    v_lshl_add_u32 v25, v24, 2, s{sT0}
    s_lshl_b32 s{sT0}, s{sRT}, 7
    s_lshl_b32 s{sT1}, s{sA}, 6
    s_add_u32 s{sT0}, s{sT0}, s{sT1}
    s_lshl_b32 s{sT0}, s{sT0}, 4
    s_add_u32 s{sT0}, s{sT0}, {ST}
    v_lshl_add_u32 v19, v1, 4, s{sT0}
    s_waitcnt lgkmcnt(0)""")
    get_tag(p)
    srd(p, SW, P_WS, WS_USED)
    fin_tag(p)
    ACC = {("q", 0): 32, ("q", 1): 48, ("k", 0): 64, ("k", 1): 80, ("v", 0): 96, ("v", 1): 112}
    CS, FB = 128, 140
    def reads(g):
        t, pp = g >> 2, g & 3
        o = (t % 3) * QSLOT; b = FB + 20 * (g % 3)
        L = [f"ds_read_b128 {vr(b+4*rb,4)}, " + lds_ref([XA[0][pp], XA[1][pp]], o + rb * 4096) for rb in range(2)]
        for seg in range(3):
            for tt in range(2):
                L.append(f"ds_read_b64_tr_b16 {vr(b+8+4*seg+2*tt,2)}, " + lds_ref([WA[0][pp & 1], WA[1][pp & 1]], o + 16384 + seg * 8192 + (pp >> 1) * 4096 + tt * 512))
        return L
    def mfmas(g):
        b = FB + 20 * (g % 3); z = g == 0
        big = []
        for seg, nm in enumerate("qkv"):
            for rb in range(2):
                a = vr(ACC[(nm, rb)], 16); X = vr(b + 4 * rb, 4); W = vr(b + 8 + 4 * seg, 4)
                ops = (X, W) if nm == "v" else (W, X)
                big.append(f"{MFMA} {a}, {ops[0]}, {ops[1]}, {'0' if z else a}")
        small = []
        if g % 2 == 0:
            for seg in range(3):
                c = vr(CS + 4 * seg, 4)
                small.append(f"{MFMA16} {c}, v[28:31], {vr(b+8+4*seg,4)}, {'0' if z else c}")
        return big, small
    GR = 200
    stamp(p, 1)
    p.I("s_barrier")
    emit(p, reads(0) + reads(1))
    stamp(p, 2)
    for g in range(32):
        big, small = mfmas(g)
        M = (small + big) if g == 30 else (big + small)
        nxt = g + 2
        if g == opt('grg', 24): p.I(f"buffer_load_dwordx4 {vr(GR,4)}, v19, {sr(SW,4)}, 0 offen sc1")
        if nxt < 32:
            p.I("s_waitcnt lgkmcnt(8)")
            if nxt % 4 == 0:
                emit(p, M[:2])
                p.I("s_waitcnt lgkmcnt(0)")
                p.I("s_barrier")
                emit(p, interleave(M[2:], reads(nxt), upto=4))
            else:
                emit(p, interleave(M, reads(nxt), upto=5))
        elif g == 30:
            p.I("s_waitcnt lgkmcnt(0)")
            emit(p, M[:6])
            p.I("s_mov_b64 exec, 0xffff")
            for seg in range(3):
                p.I(f"ds_write_b32 v14, v{CS+4*seg} offset:{seg*128}")
                p.I(f"ds_write_b32 v14, v{CS+4*seg+1} offset:{seg*128+64}")
            p.I("s_mov_b64 exec, -1")
            emit(p, M[6:])
        else:
            emit(p, M[:2])
            p.I("s_waitcnt vmcnt(0)")
            if "nopoll" not in OPT:
                p.I(f"""v_cmp_ne_u32 vcc, s{sTAG}, v{GR+1}
                v_cmp_ne_u32 s[32:33], s{sTAG}, v{GR+3}
                s_mov_b32 s{sSPIN}, 0
                s_or_b64 vcc, vcc, s[32:33]
                s_cbranch_vccz A_st_ok""")
                p.L("A_st_spin")
                p.I(f"""buffer_load_dwordx4 {vr(GR,4)}, v19, {sr(SW,4)}, 0 offen sc1
                s_add_u32 s{sSPIN}, s{sSPIN}, 1
                s_waitcnt vmcnt(0)
                v_cmp_ne_u32 vcc, s{sTAG}, v{GR+1}
                v_cmp_ne_u32 s[32:33], s{sTAG}, v{GR+3}
                s_or_b64 vcc, vcc, s[32:33]
                s_cmp_ge_u32 s{sSPIN}, {SPIN_MAX}
                s_cbranch_scc1 A_st_ok
                s_cbranch_vccnz A_st_spin""")
                p.L("A_st_ok")
            p.I(f"""ds_write_b32 v17, v{GR}
            ds_write_b32 v17, v{GR+2} offset:256
            s_waitcnt lgkmcnt(0)
            s_barrier""")
            emit(p, M[2:])
    stamp(p, 3)
    CQ, CK, C2, NM, RS = 204, 220, 140, 156, 172
    for k in range(4): p.I(f"ds_read_b128 {vr(CK+4*k,4)}, v15 offset:{128+k*32}")
    for k in range(4): p.I(f"ds_read_b128 {vr(C2+4*k,4)}, v15 offset:{384+128+k*32}")
    p.I("""ds_read_b32 v2, v25
    ds_read_b32 v4, v25 offset:256
    ds_read_b32 v6, v25 offset:128
    ds_read_b32 v8, v25 offset:384
    ds_read_b32 v10, v16 offset:256
    ds_read_b32 v11, v16 offset:640""")
    p.I(f"""s_lshl_b32 s{sT0}, s{sHQ}, 1
    s_add_u32 s{sT0}, s{sT0}, s{sB}
    s_lshl_b32 s{sT1}, s{sRT}, 2
    s_lshl_b32 s{sT2}, s{sA}, 1
    s_add_u32 s{sT1}, s{sT1}, s{sT2}
    s_lshl_b32 s{sT2}, s{sT0}, 17
    s_lshl_b32 s{sT3}, s{sT1}, 10
    s_add_u32 s{sT3}, s{sT3}, s{sT2}
    s_add_u32 s{sT3}, s{sT3}, {KF}
    v_lshl_add_u32 v20, v1, 4, s{sT3}
    s_lshl_b32 s{sT3}, s{sT1}, 11
    s_add_u32 s{sT3}, s{sT3}, s{sT2}
    s_add_u32 s{sT3}, s{sT3}, {VF}
    v_lshl_add_u32 v21, v1, 4, s{sT3}
    s_lshl_b32 s{sT0}, s{sT0}, 6
    s_add_u32 s{sT0}, s{sT0}, s{sT1}
    s_lshl_b32 s{sT0}, s{sT0}, 6
    s_add_u32 s{sT0}, s{sT0}, {FK}
    v_mov_b32 v22, s{sT0}
    s_mul_i32 s{sT0}, s{sB}, 24576
    s_lshl_b32 s{sT1}, s{sA}, 11
    s_add_u32 s{sT2}, s{sT0}, s{sT1}
    s_add_u32 s{sT2}, s{sT2}, {KA_ + 8192}
    v_lshl_add_u32 v26, v1, 4, s{sT2}
    s_lshl_b32 s{sT2}, s{sA}, 12
    s_add_u32 s{sT2}, s{sT2}, s{sT0}
    s_add_u32 s{sT2}, s{sT2}, {VA_ + 16384}
    v_lshl_add_u32 v27, v1, 4, s{sT2}
    s_lshl_b32 s{sT2}, s{sB}, 13
    s_add_u32 s{sT2}, s{sT2}, s{sT1}
    s_add_u32 s{sT2}, s{sT2}, {QA_}
    v_lshl_add_u32 v28, v1, 4, s{sT2}
    s_mov_b32 s{sOF}, 65536
    v_mov_b32 v29, s{sTAG}
    s_waitcnt lgkmcnt(0)""")
    for k in range(4): p.I(f"ds_read_b128 {vr(NM+4*k,4)}, v18 offset:{k*32}")
    for k in range(4): p.I(f"ds_read_b128 {vr(RS+4*k,4)}, v18 offset:{256+k*32}")
    for i in range(8): p.I(f"v_pk_add_f32 {vr(CK+2*i,2)}, {vr(CK+2*i,2)}, {vr(C2+2*i,2)}")
    p.I("v_add_f32 v10, v10, v11")
    def qk(acc, cs, nm, rs):
        for i in range(8): p.I(f"v_pk_fma_f32 {vr(acc+2*i,2)}, {vr(cs+2*i,2)}, {vr(nm,2)}, {vr(acc+2*i,2)} op_sel_hi:[1,0,1]")
        for i in range(8): p.I(f"v_pk_mul_f32 {vr(acc+2*i,2)}, {vr(acc+2*i,2)}, {vr(rs,2)} op_sel_hi:[1,0]")
        for i in range(8): p.I(f"v_cvt_pk_bf16_f32 v{acc+i}, v{acc+2*i}, v{acc+2*i+1}")
    def vv(acc):
        for i in range(8): p.I(f"v_pk_fma_f32 {vr(acc+2*i,2)}, {vr(NM+2*i,2)}, v[10:11], {vr(acc+2*i,2)} op_sel_hi:[1,0,1]")
        for i in range(8): p.I(f"v_pk_mul_f32 {vr(acc+2*i,2)}, {vr(acc+2*i,2)}, {vr(RS+2*i,2)}")
        for i in range(8): p.I(f"v_cvt_pk_bf16_f32 v{acc+i}, v{acc+2*i}, v{acc+2*i+1}")
    for rb in range(2):
        a = ACC[("k", rb)]
        qk(a, CK, 2 + 4 * rb, 4 + 4 * rb)
        p.I(f"buffer_store_dwordx4 {vr(a,4)}, v20, {sr(SW,4)}, 0 offen offset:{rb*1024} sc1")
        p.I(f"buffer_store_dwordx4 {vr(a+4,4)}, v20, {sr(SW,4)}, s{sOF} offen offset:{rb*1024} sc1")
    for rb in range(2):
        a = ACC[("v", rb)]
        p.I("s_waitcnt lgkmcnt(0)")
        vv(a)
        if rb == 0:
            for k in range(4): p.I(f"ds_read_b128 {vr(NM+4*k,4)}, v18 offset:{128+k*32}")
            for k in range(4): p.I(f"ds_read_b128 {vr(RS+4*k,4)}, v18 offset:{384+k*32}")
        else:
            for k in range(4): p.I(f"ds_read_b128 {vr(CQ+4*k,4)}, v15 offset:{k*32}")
            for k in range(4): p.I(f"ds_read_b128 {vr(C2+4*k,4)}, v15 offset:{384+k*32}")
        p.I(f"buffer_store_dwordx4 {vr(a,4)}, v21, {sr(SW,4)}, 0 offen offset:{rb*2048} sc1")
        p.I(f"buffer_store_dwordx4 {vr(a+4,4)}, v21, {sr(SW,4)}, 0 offen offset:{rb*2048+1024} sc1")
        if rb == 0:
            for r2 in range(2):
                k_ = ACC[("k", r2)]
                p.I(f"ds_write_b128 v26, {vr(k_,4)} offset:{r2*1024}")
                p.I(f"ds_write_b128 v26, {vr(k_+4,4)} offset:{12288+r2*1024}")
    for r2 in range(2):
        a = ACC[("v", r2)]
        p.I(f"ds_write_b128 v27, {vr(a,4)} offset:{r2*2048}")
        p.I(f"ds_write_b128 v27, {vr(a+4,4)} offset:{r2*2048+1024}")
    p.I(f"""v_mul_f32 v4, {f32(0.25*LOG2E)}, v4
    v_mul_f32 v8, {f32(0.25*LOG2E)}, v8
    s_waitcnt lgkmcnt(4)""")
    for i in range(8): p.I(f"v_pk_add_f32 {vr(CQ+2*i,2)}, {vr(CQ+2*i,2)}, {vr(C2+2*i,2)}")
    for rb in range(2):
        a = ACC[("q", rb)]
        qk(a, CQ, 2 + 4 * rb, 4 + 4 * rb)
        p.I(f"ds_write_b128 v28, {vr(a,4)} offset:{rb*1024}")
        p.I(f"ds_write_b128 v28, {vr(a+4,4)} offset:{4096+rb*1024}")
    p.I("v_mov_b32 v252, v22\nv_mov_b32 v253, v29")
    if "kef" in OPT:
        p.I(f"s_waitcnt vmcnt(0)\ns_mov_b64 exec, 1\nbuffer_store_dword v253, v252, {sr(SW,4)}, 0 offen sc1\ns_mov_b64 exec, -1")
    stamp(p, 4)
    p.L("A_attn")
    if "noattn" in OPT:
        stamp_out(p, 14); p.I("s_endpgm")
    sHP, sTB, sNB, sNB1, sHB, sQB = sA, sB, sOF, sM0, 8, 9
    p.I(f"""v_lshlrev_b32 v3, 4, v1
    s_lshr_b32 s{sHP}, s{sW4}, 1
    s_and_b32 s{sQB}, s{sWV}, 1
    s_cmp_lt_u32 s{sWV}, 4
    s_cselect_b32 s{sT0}, 2, 0
    s_add_u32 s{sQB}, s{sQB}, s{sT0}
    s_lshl_b32 s{sTB}, s{sRT}, 2
    s_add_u32 s{sTB}, s{sTB}, s{sQB}
    s_min_u32 s{sNB}, s{sTB}, 8
    s_mov_b32 s{sNB1}, {'s%d' % sNB if 'truemax' in OPT else 0}
    v_and_b32 v4, 31, v1
    v_lshrrev_b32 v5, 5, v1
    v_lshlrev_b32 v5, 2, v5
    v_sub_u32 v4, v4, v5""")
    msk = lambda r: f"s[{32+2*r}:{33+2*r}]"
    for r in range(16): p.I(f"v_cmp_le_i32 {msk(r)}, {(r & 3) + 8 * (r >> 2)}, v4")
    p.I(f"""v_mov_b32 v6, {f32(-1e30)}
    s_mul_i32 s{sT0}, s{sHP}, 24576
    s_lshl_b32 s{sT1}, s{sQB}, 10
    s_add_u32 s{sT2}, s{sT0}, s{sT1}
    v_add_u32 v4, s{sT2}, v3
    s_add_u32 s{sT2}, s{sT2}, s{sT1}
    s_add_u32 s{sT2}, s{sT2}, {VA_}
    v_add_u32 v5, s{sT2}, v3
    s_lshl_b32 s{sT2}, s{sHP}, 13
    s_add_u32 s{sT2}, s{sT2}, s{sT1}
    s_add_u32 s{sT2}, s{sT2}, {QA_}
    v_add_u32 v7, s{sT2}, v3
    s_mov_b32 s4, 0x0000ffff
    s_mov_b32 s5, 0x0000ffff
    s_mov_b32 s6, 0xffff0000
    s_mov_b32 s7, 0xffff0000""")
    for r in range(176, 208): p.I(f"v_mov_b32 v{r}, 0x3f803f80")
    if "wp2" in OPT:
        srd(p, SC, P_W2, 1376 * 4096); srd(p, SD, P_WO, 512 * 1024)
        p.I(f"""s_lshl_b32 s{sT0}, s{sK}, 3
        s_add_u32 s{sT0}, s{sT0}, s{sWV}
        v_lshrrev_b32 v248, 3, v1
        v_lshlrev_b32 v248, 12, v248
        v_and_b32 v250, 7, v1
        v_lshl_add_u32 v248, v250, 7, v248
        s_lshl_b32 s{sT1}, s{sT0}, 15
        s_lshl_b32 s{sT2}, s{sR}, 10
        s_add_u32 s{sT1}, s{sT1}, s{sT2}
        v_add_u32 v248, s{sT1}, v248
        v_add_u32 v249, {128 << 15}, v248
        v_lshrrev_b32 v250, 2, v1
        v_lshlrev_b32 v250, 10, v250
        v_and_b32 v224, 3, v1
        v_lshl_add_u32 v250, v224, 7, v250
        s_sub_u32 s{sT1}, s{sT0}, 44
        s_lshl_b32 s{sT1}, s{sT1}, 14
        s_lshl_b32 s{sT2}, s{sC}, 9
        s_add_u32 s{sT1}, s{sT1}, s{sT2}
        s_and_b32 s{sT1}, s{sT1}, 0x7fffffff
        v_add_u32 v250, s{sT1}, v250""")
    p.I("s_waitcnt lgkmcnt(0)")
    p.I("s_barrier")
    stamp(p, 5)
    p.I("ds_read_b128 v[8:11], v7\nds_read_b128 v[12:15], v7 offset:4096")
    sHL = 10
    p.I(f"""s_mov_b32 s{sHB}, 99
    s_mov_b32 s{sHL}, 0
    v_mov_b32 v212, {QSCR + 4096}
    v_mov_b32 v213, 1
    s_lshl1_add_u32 s{sT1}, s{sHQ}, s{sHP}
    s_lshl_b32 s{sT2}, s{sRT}, 2
    s_lshl_b32 s{sT3}, s{sT1}, 6
    s_add_u32 s{sT3}, s{sT3}, s{sT2}
    s_lshl_b32 s{sT3}, s{sT3}, 6
    s_add_u32 s{sT3}, s{sT3}, {FK - 512}
    v_lshl_add_u32 v2, v1, 7, s{sT3}
    s_cmp_eq_u32 s{sRT}, 0
    s_cbranch_scc1 A_h_done
    s_mov_b32 s{sHB}, s{sQB}
    s_cmp_lt_u32 s{sWV}, 4
    s_cbranch_scc1 A_p1
    s_mov_b32 s{sHL}, 1""")
    if "ksm" in OPT:
        p.I(f"""s_cmp_eq_u32 s{sRT}, 1
        s_cselect_b32 exec_lo, 12, 15
        s_mov_b32 exec_hi, 0
        buffer_load_dword v214, v2, {sr(SW,4)}, 0 offen sc1
        s_mov_b64 exec, -1""")
    if "lp0" in OPT: p.I("s_setprio 1")
    p.I("s_branch A_p1")
    p.L("A_h_done")
    p.I(f"s_cmp_lt_u32 s{sWV}, 4\ns_cbranch_scc1 A_p1")
    for n in range(FPA): emit(p, f_dma(n))
    NA, NB, OA, OB = 16, 32, 48, 64
    SBUF = [[80, 96], [112, 128]]; KR = [[144, 148], [152, 156]]; PR = [160, 168]; VR = [176, 192]
    kread = lambda jb, s: [f"ds_read_b128 {vr(KR[s][0],4)}, v4 offset:{jb*1024}", f"ds_read_b128 {vr(KR[s][1],4)}, v4 offset:{12288+jb*1024}"]
    smm = lambda s, cA, cB: [f"{MFMA} {vr(SBUF[s][0],16)}, {vr(KR[s][0],4)}, v[8:11], {cA}", f"{MFMA} {vr(SBUF[s][1],16)}, {vr(KR[s][1],4)}, v[12:15], {cB}"]
    def maxes(s):
        L = []
        for i in range(8):
            L.append(f"v_max3_f32 v208, v{SBUF[s][0]+2*i}, v{SBUF[s][0]+2*i+1}, v208")
            L.append(f"v_max3_f32 v209, v{SBUF[s][1]+2*i}, v{SBUF[s][1]+2*i+1}, v209")
        return L
    p.L("A_p1")
    emit(p, kread(8, 0) + kread(7, 1))
    for r in range(16): p.I(f"v_cndmask_b32 v{NA+r}, v6, 0, {msk(r)}")
    p.I("v_mov_b32 v208, v6\nv_mov_b32 v209, v6")
    p.I("s_waitcnt lgkmcnt(0)")
    emit(p, smm(0, vr(NA,16), vr(NA,16)))
    for r in range(OA, OB + 16): p.I(f"v_mov_b32 v{r}, 0")
    for n in range(8):
        s = n & 1
        p.I(f"s_cmp_lt_u32 s{sNB1}, {n+1}\ns_cbranch_scc1 A_p1_last{s}")
        if n + 1 == 8:
            for r in range(16): p.I(f"v_cndmask_b32 v{NB+r}, 0, v6, {msk(r)}")
        p.I("s_waitcnt lgkmcnt(0)")
        c = vr(NB,16) if n + 1 == 8 else "0"
        emit(p, smm(s ^ 1, c, c))
        if n + 2 <= 8: emit(p, kread(8 - (n + 2), s))
        emit(p, maxes(s))
    p.I("s_nop 7\ns_nop 3")
    p.I("s_branch A_p1_last0")
    p.L("A_p1_last1")
    p.I("s_nop 7\ns_nop 3")
    emit(p, maxes(1))
    p.I("s_branch A_p1_done")
    p.L("A_p1_last0")
    emit(p, maxes(0))
    p.L("A_p1_done")
    p.I(f"""s_cmp_eq_u32 s{sHL}, 0
    s_cbranch_scc1 A_nohl
    s_cmp_eq_u32 s{sRT}, 1
    s_cselect_b32 exec_lo, 12, 15
    s_mov_b32 exec_hi, 0""")
    if "ksm" in OPT and "nopoll" not in OPT:
        p.I(f"s_waitcnt vmcnt(0)\nv_cmp_ne_u32 vcc, s{sTAG}, v214\ns_cbranch_vccz A_pollk_ok")
    poll(p, "A_pollk", 2, 214, 1, opt("ksl", 2))
    stamp(p, 3)
    p.I(f"""s_lshl1_add_u32 s{sT1}, s{sHQ}, s{sHP}
    s_lshl_b32 s{sT1}, s{sT1}, 17
    s_lshl_b32 s{sT0}, s{sQB}, 16
    s_add_u32 s{sT0}, s{sT0}, s{sT1}
    s_lshl_b32 s{sT2}, s{sRT}, 12
    s_add_u32 s{sT0}, s{sT0}, s{sT2}
    s_add_u32 s{sT0}, s{sT0}, {KF - 8192}
    s_mul_i32 s{sT3}, s{sW4}, 12288""")
    def halo8():
        for hf in range(2):
            p.I(f"s_add_u32 m0, s{sT3}, {hf*4096}")
            if hf: p.I(f"s_add_u32 s{sT0}, s{sT0}, 4096")
            for u in range(4): p.I(f"buffer_load_dwordx4 v3, {sr(SW,4)}, s{sT0} offen offset:{u*1024} sc1 lds")
    halo8()
    p.I(f"""s_lshl_b32 s{sT3}, s{sQB}, 13
    s_add_u32 s{sT0}, s{sT1}, s{sT3}
    s_lshl_b32 s{sT2}, s{sRT}, 13
    s_add_u32 s{sT0}, s{sT0}, s{sT2}
    s_add_u32 s{sT0}, s{sT0}, {VF - 16384}
    s_mul_i32 s{sT2}, s{sHP}, 24576
    s_add_u32 s{sT3}, s{sT3}, s{sT2}
    s_add_u32 s{sT3}, s{sT3}, {VA_}""")
    halo8()
    if "aprio" in OPT: p.I("s_setprio 1")
    p.L("A_nohl")
    p.I("s_waitcnt lgkmcnt(0)")
    stamp(p, 7)
    vread = lambda jb, s: ["s_mov_b64 exec, s[4:5]",
                f"ds_read_b128 {vr(VR[s],4)}, v5 offset:{jb*2048}", f"ds_read_b128 {vr(VR[s]+4,4)}, v5 offset:{jb*2048+1024}",
                "s_mov_b64 exec, s[6:7]",
                f"ds_read_b128 {vr(VR[s]+8,4)}, v5 offset:{jb*2048}", f"ds_read_b128 {vr(VR[s]+12,4)}, v5 offset:{jb*2048+1024}",
                "s_mov_b64 exec, -1"]
    emit(p, kread(8, 0) + kread(7, 1) + vread(8, 0))
    p.I("""v_mov_b32 v210, v208
    v_mov_b32 v211, v209
    v_permlane32_swap_b32 v208, v210
    v_permlane32_swap_b32 v209, v211
    v_max_f32 v208, v208, v210
    v_max_f32 v209, v209, v211
    v_sub_f32 v208, 0, v208
    v_sub_f32 v209, 0, v209""")
    for r in range(16):
        p.I(f"v_cndmask_b32 v{SBUF[0][0]+r}, v6, v208, {msk(r)}")
        p.I(f"v_cndmask_b32 v{SBUF[0][1]+r}, v6, v209, {msk(r)}")
    p.I("s_waitcnt lgkmcnt(0)")
    emit(p, smm(0, vr(SBUF[0][0],16), vr(SBUF[0][1],16)))
    for r in range(16):
        p.I(f"v_mov_b32 v{NA+r}, v208")
        p.I(f"v_mov_b32 v{NB+r}, v209")
    def softp(s, hd):
        S = SBUF[s][hd]; P = PR[hd]; V = VR[s] + 8 * hd; O = (OA, OB)[hd]
        L = [f"v_exp_f32 v{S+i}, v{S+i}" for i in range(8)]
        L += [f"v_cvt_pk_bf16_f32 v{P+i}, v{S+2*i}, v{S+2*i+1}" for i in range(4)]
        L += [f"v_exp_f32 v{S+i}, v{S+i}" for i in range(8, 10)]
        L += [f"{MFMA} {vr(O,16)}, {vr(V,4)}, {vr(P,4)}, {vr(O,16)}"]
        L += [f"v_exp_f32 v{S+i}, v{S+i}" for i in range(10, 16)]
        L += [f"v_cvt_pk_bf16_f32 v{P+i}, v{S+2*i}, v{S+2*i+1}" for i in range(4, 8)]
        return L, [f"{MFMA} {vr(O,16)}, {vr(V+4,4)}, {vr(P+4,4)}, {vr(O,16)}"]
    def soft(s):
        a, a2 = softp(s, 0); b, b2 = softp(s, 1)
        return a + b[:2] + a2 + b[2:] + b2
    for n in range(8):
        s = n & 1
        if n in (1, 2, 3, 4): p.L(f"A_p2_it{n}")
        p.I(f"s_cmp_lt_u32 s{sNB}, {n+1}\ns_cbranch_scc1 A_p2_last{s}")
        if n in (0, 1, 2, 3): p.I(f"s_cmp_eq_u32 s{sHB}, {n}\ns_cbranch_scc1 A_p2_hw{n}")
        if n + 1 == 8:
            for r in range(16):
                p.I(f"v_cndmask_b32 v{NA+r}, v208, v6, {msk(r)}")
                p.I(f"v_cndmask_b32 v{NB+r}, v209, v6, {msk(r)}")
        p.I("s_waitcnt lgkmcnt(0)")
        emit(p, smm(s ^ 1, vr(NA,16), vr(NB,16)))
        if n + 2 <= 8: emit(p, kread(8 - (n + 2), s))
        emit(p, vread(8 - (n + 1), s ^ 1))
        if n == opt("pdrop", 99): p.I("s_setprio 0")
        if "wp2" in OPT:
            w0 = opt("wpn", 4)
            if n == w0: p.I(f"buffer_load_dword v251, v248, {sr(SC,4)}, 0 offen")
            if n == w0 + 1: p.I(f"buffer_load_dword v251, v249, {sr(SC,4)}, 0 offen\nbuffer_load_dword v251, v250, {sr(SD,4)}, 0 offen")
        emit(p, soft(s))
    p.L("A_p2_last0")
    p.I("s_waitcnt lgkmcnt(0)\ns_nop 7\ns_nop 3")
    emit(p, soft(0))
    p.I("s_branch A_p2_done")
    for n in (0, 1, 2, 3):
        s = n & 1
        p.L(f"A_p2_hw{n}")
        p.I("s_waitcnt lgkmcnt(0)")
        sig = "s_waitcnt vmcnt(0)\ns_mov_b64 exec, 1\nds_add_u32 v212, v213\ns_mov_b64 exec, -1"
        if n == 1: p.I(sig)
        emit(p, soft(s))
        if n == 0: p.I(sig)
        if n < 2:
            for m in range(FPA): emit(p, f_dma(m))
        p.I(f"s_mov_b32 s{sSPIN}, 0")
        p.L(f"A_hs{n}")
        p.I(f"""ds_read_b32 v214, v212
        s_add_u32 s{sSPIN}, s{sSPIN}, 1
        s_waitcnt lgkmcnt(0)
        v_readfirstlane_b32 s{sT0}, v214
        s_cmp_ge_u32 s{sSPIN}, {SPIN_MAX * 8}
        s_cbranch_scc1 A_hs{n}_ok
        s_cmp_ge_u32 s{sT0}, 4
        s_cbranch_scc1 A_hs{n}_ok
        s_sleep 1
        s_branch A_hs{n}""")
        p.L(f"A_hs{n}_ok")
        stamp(p, 6)
        emit(p, kread(8 - (n + 1), s ^ 1) + kread(8 - (n + 2), s) + vread(8 - (n + 1), s ^ 1))
        p.I("s_waitcnt lgkmcnt(6)")
        emit(p, smm(s ^ 1, vr(NA,16), vr(NB,16)))
        p.I(f"s_branch A_p2_it{n+1}")
    p.L("A_p2_last1")
    p.I("s_waitcnt lgkmcnt(0)\ns_nop 7\ns_nop 3")
    emit(p, soft(1))
    p.L("A_p2_done")
    p.I(f"""s_lshl_b32 s{sT0}, s{sHQ}, 1
    s_add_u32 s{sT0}, s{sT0}, s{sHP}
    s_lshl_b32 s{sT1}, s{sTB}, 15
    s_lshl_b32 s{sT2}, s{sT0}, 11
    s_add_u32 s{sT1}, s{sT1}, s{sT2}
    s_add_u32 s{sT1}, s{sT1}, {OF}
    v_add_u32 v2, s{sT1}, v3
    s_lshl_b32 s{sT1}, s{sTB}, 4
    s_add_u32 s{sT1}, s{sT1}, s{sT0}
    s_lshl_b32 s{sT1}, s{sT1}, 7
    s_add_u32 s{sT1}, s{sT1}, {FO}
    v_mov_b32 v210, {f32(2.0**64)}
    v_max_f32 v211, v{OA+8}, v{OB}
    v_add_f32 v209, v{OA+8}, v{OB}
    v_cmp_u_f32 vcc, v209, v209
    v_cmp_ngt_f32 s[10:11], v210, v211
    s_or_b64 vcc, vcc, s[10:11]
    s_cbranch_vccz A_fin
    s_cmp_eq_u32 s{sNB1}, s{sNB}
    s_cbranch_scc1 A_fin
    s_mov_b32 s{sNB1}, s{sNB}
    s_mov_b32 s{sHB}, 99
    s_mov_b32 s{sHL}, 0
    s_branch A_p1""")
    p.L("A_fin")
    p.I(f"""v_mov_b32 v4, s{sT1}
    v_mov_b32 v5, s{sTAG}
    v_rcp_f32 v208, v{OA+8}
    v_rcp_f32 v210, v{OB}""")
    for i in range(4): p.I(f"v_pk_mul_f32 {vr(OA+2*i,2)}, {vr(OA+2*i,2)}, v[208:209] op_sel_hi:[1,0]")
    for i in range(4): p.I(f"v_pk_mul_f32 {vr(OB+8+2*i,2)}, {vr(OB+8+2*i,2)}, v[210:211] op_sel_hi:[1,0]")
    for i in range(4): p.I(f"v_cvt_pk_bf16_f32 v{160+i}, v{OA+2*i}, v{OA+2*i+1}")
    for i in range(4): p.I(f"v_cvt_pk_bf16_f32 v{164+i}, v{OB+8+2*i}, v{OB+8+2*i+1}")
    p.I(f"""buffer_store_dwordx4 v[160:163], v2, {sr(SW,4)}, 0 offen sc1
    buffer_store_dwordx4 v[164:167], v2, {sr(SW,4)}, 0 offen offset:1024 sc1""")
    stamp(p, 8)
    p.I(f"""s_waitcnt vmcnt(0)
    s_mov_b64 exec, 1
    buffer_store_dword v5, v4, {sr(SW,4)}, 0 offen sc1
    s_mov_b64 exec, -1
    s_cmp_lt_u32 s{sWV}, 4
    s_cbranch_scc0 F_load""")
    if "wpf" in OPT:
        srd(p, SB, P_W2, 1376 * 4096)
        p.I(f"""s_lshl_b32 s{sT0}, s{sK}, 2
        s_add_u32 s{sT0}, s{sT0}, s{sWV}
        v_lshrrev_b32 v250, 3, v1
        v_lshlrev_b32 v250, 12, v250
        v_and_b32 v249, 7, v1
        v_lshl_add_u32 v250, v249, 7, v250
        s_lshl_b32 s{sT1}, s{sT0}, 15
        s_lshl_b32 s{sT2}, s{sR}, 10
        s_add_u32 s{sT1}, s{sT1}, s{sT2}
        buffer_load_dword v251, v250, {sr(SB,4)}, s{sT1} offen
        s_add_u32 s{sT1}, s{sT1}, {64 << 15}
        buffer_load_dword v251, v250, {sr(SB,4)}, s{sT1} offen
        s_add_u32 s{sT1}, s{sT1}, {64 << 15}
        buffer_load_dword v251, v250, {sr(SB,4)}, s{sT1} offen""")
    p.I("s_branch F_cons2")

UBLK = opt('ublk', 8)
USLOT = 24576; UND = 6; LNP = 1088; LNS = 5 * USLOT
def gen_B(p):
    p.L("B_entry")
    if "noB" in OPT: p.I("s_endpgm")
    p.I(f"""s_lshl_b32 s{sT0}, s{sR}, 4
    s_add_u32 s{sT0}, s{sT0}, s{sK}
    s_lshr_b32 s{sFT}, s{sT0}, 2
    s_and_b32 s{sT0}, s{sT0}, 3
    s_lshl_b32 s{sDU}, s{sC}, 2
    s_add_u32 s{sDU}, s{sDU}, s{sT0}""")
    if "norot" in OPT or "norotu" in OPT: p.I("s_mov_b32 s98, 0")
    else: p.I(f"s_add_u32 s98, s{sFT}, s{sDU}\ns_and_b32 s98, s98, 3\ns_mul_i32 s98, s98, {UBLK // 4}")
    p.I(f"""s_cmp_lt_u32 s{sWV}, 4
    s_cbranch_scc1 B_cons""")
    for j in range(3):
        p.I(f"""v_add_u32 v10, {64*j}, v1
        v_mul_u32_u24 v11, 5462, v10
        v_lshrrev_b32 v11, 16, v11
        v_mul_u32_u24 v12, 12, v11
        v_sub_u32 v12, v10, v12
        s_lshl_b32 s{sT0}, s{sW4}, 5
        v_add_u32 v11, s{sT0}, v11
        v_mul_u32_u24 v11, 2752, v11
        v_lshl_add_u32 v11, v12, 4, v11
        s_mul_i32 s{sT0}, s{sFT}, 192
        s_sub_u32 s{sT0}, s{sT0}, {1024*j}
        v_add_u32 v{2+j}, s{sT0}, v11
        s_cmp_eq_u32 s{sFT}, 14
        s_cselect_b32 s{sT0}, 4, 12
        v_cmp_le_u32 vcc, s{sT0}, v12
        v_mov_b32 v13, 0x7fff0000
        v_cndmask_b32 v{2+j}, v{2+j}, v13, vcc
        v_add_u32 v{5+j}, {16*2752}, v{2+j}""")
    p.I(f"s_mul_i32 s{sM0}, s{sW4}, 6144\ns_waitcnt lgkmcnt(0)")
    srd(p, SA, P_W1, 2048 * 2752)
    srd(p, SW, P_WS, WS_USED)
    p.I(f"s_mov_b32 s{sTAG}, 0")
    def udma(n):
        L = [f"s_add_u32 m0, s{sM0}, {(n % UND) * USLOT}"]
        L += [f"s_add_u32 s{sOF}, s98, {n % UBLK}", f"s_and_b32 s{sOF}, s{sOF}, {UBLK - 1}", f"s_add_u32 s{sOF}, s{sOF}, {n - n % UBLK}", f"s_mul_i32 s{sOF}, s{sOF}, {128*2752}"]
        nt = " nt" if n >= opt("unt", 99) else ""
        L += [f"buffer_load_dwordx4 v{2+j}, {sr(SA,4)}, s{sOF} offen offset:{j*1024}{nt} lds" for j in range(3)]
        L.append(f"s_add_u32 m0, s{sM0}, {(n % UND) * USLOT + 3072}")
        L += [f"buffer_load_dwordx4 v{5+j}, {sr(SA,4)}, s{sOF} offen offset:{j*1024}{nt} lds" for j in range(3)]
        return L
    if "bpa" in OPT:
        srd(p, 32, P_X, 0x200000); srd(p, 36, P_WQKV, 0x180000)
        p.I(f"""s_lshl2_add_u32 s{sT0}, s{sK}, s{sW4}
        s_lshl_b32 s{sT1}, s{sR}, 6
        s_add_u32 s{sT1}, s{sT1}, s{sT0}
        s_lshl_b32 s{sT1}, s{sT1}, 13
        v_lshlrev_b32 v14, 8, v1
        v_add_u32 v14, 128, v14
        v_mul_u32_u24 v15, 5462, v1
        v_lshrrev_b32 v15, 16, v15
        v_mul_u32_u24 v16, 12, v15
        v_sub_u32 v16, v1, v16
        v_mul_u32_u24 v15, 3072, v15
        v_lshrrev_b32 v17, 2, v16
        v_lshl_add_u32 v15, v17, 10, v15
        v_and_b32 v17, 3, v16
        v_lshl_add_u32 v15, v17, 7, v15
        s_lshr_b32 s{sT2}, s{sT0}, 4
        s_lshl_b32 s{sT2}, s{sT2}, 7
        s_and_b32 s{sT3}, s{sT0}, 15
        s_lshl2_add_u32 s{sT2}, s{sT3}, s{sT2}
        s_add_u32 s{sT2}, s{sT2}, 64
        s_mul_i32 s{sT2}, s{sT2}, 3072
        s_lshl_b32 s{sT3}, s{sC}, 9
        s_add_u32 s{sT2}, s{sT2}, s{sT3}
        s_mov_b32 exec_hi, 0
        buffer_load_dword v251, v14, s[32:35], s{sT1} offen
        s_mov_b32 exec_hi, 0xffff
        buffer_load_dword v251, v15, s[36:39], s{sT2} offen
        s_mov_b64 exec, -1""")
    p.I(f"s_cmp_eq_u32 s{sFT}, 15\ns_cbranch_scc1 B_l_spare")
    q = VQ(p)
    UB1 = opt("ub1", 2); UB2 = opt("ub2", 6)
    p.I("s_barrier")
    for n in range(UB1): emit(p, udma(n)); q.add(f"U{n}", 6)
    stamp(p, 1)
    f_loader_setup(p)
    p.I("s_barrier")
    for n in range(UB1, UB2): emit(p, udma(n)); q.add(f"U{n}", 6)
    stamp(p, 2)
    iu = UB2; jf = 0
    def f_free(n, t):
        a, b = fslot(n), fslot(n) + 16384
        for d in range(t, 16):
            a2 = (d % UND) * USLOT
            if a < a2 + USLOT and a2 < b: return False
        return True
    jfl = [0]
    def fhook(t, done):
        while "fearly" in OPT and done and jfl[0] < FPRE and f_free(jfl[0], t):
            emit(p, f_dma(jfl[0])); q.add(f"F{jfl[0]}", 0 if "nofp" in OPT else 4); jfl[0] += 1
    paced(p, q, "U", udma, UB2, 16, UND, opt("uml", 2), fhook)
    jf = jfl[0]
    stamp(p, 3)
    assert jf == 0
    p.I("s_barrier\ns_barrier")
    for n in range(jf, FPRE): emit(p, f_dma(n))
    p.I("s_branch F_load")
    p.L("B_l_spare")
    stamp(p, -1)
    f_loader_setup(p)
    p.I("s_barrier\ns_barrier")
    if "nopf" not in OPT:
        p.I(f"""v_lshlrev_b32 v24, 7, v1
        s_lshl_b32 s{sT2}, s{sDU}, 2
        s_add_u32 s{sT2}, s{sT2}, s{sW4}
        s_lshl_b32 s{sOF}, s{sT2}, 14
        buffer_load_dword v30, v24, {sr(SD,4)}, s{sOF} offen
        s_add_u32 s{sOF}, s{sOF}, 8192
        buffer_load_dword v30, v24, {sr(SD,4)}, s{sOF} offen""")
    p.I("s_barrier")
    for n in range(FPRE): emit(p, f_dma(n))
    p.I("s_branch F_load")
    p.L("B_cons")
    if "cprio" in OPT: p.I("s_setprio 3")
    RAW, X, T = 32, 48, 80
    p.I(f"""s_lshl_b32 s{sT0}, s{sR}, 9
    s_lshl_b32 s{sT1}, s{sC}, 8
    s_add_u32 s{sT0}, s{sT0}, s{sT1}
    s_lshl_b32 s{sT1}, s{sK}, 4
    s_add_u32 s{sA}, s{sT0}, s{sT1}
    s_lshl_b32 s{sT1}, s{sW4}, 2
    v_lshrrev_b32 v10, 4, v1
    v_add_u32 v10, s{sT1}, v10
    v_and_b32 v11, 15, v1
    v_add_u32 v12, s{sA}, v10
    v_lshlrev_b32 v13, 10, v12
    v_lshl_add_u32 v13, v11, 4, v13
    s_waitcnt lgkmcnt(0)""")
    srd(p, SA, P_X, 0x200000)
    XIN = 96 if "lnl" in OPT else RAW
    for k in range(4): p.I(f"buffer_load_dwordx4 {vr(XIN+4*k,4)}, v13, {sr(SA,4)}, 0 offen offset:{k*256}")
    p.I(f"v_mov_b32 v20, {LDS - 16}\nv_mov_b32 v21, 0\nds_write_b32 v20, v21\ns_waitcnt lgkmcnt(0)")
    p.I("s_barrier")
    get_tag(p)
    srd(p, SW, P_WS, WS_USED)
    p.I(f"""v_lshlrev_b32 v14, 4, v12
    v_add_u32 v14, {ST}, v14
    v_mul_u32_u24 v15, {LNP}, v10
    v_lshl_add_u32 v15, v11, 4, v15
    v_add_u32 v15, {LNS}, v15
    v_bfe_u32 v16, v1, 2, 2
    v_lshrrev_b32 v17, 5, v1
    v_lshl_add_u32 v16, v17, 3, v16
    v_mul_u32_u24 v16, {LNP}, v16
    v_bfe_u32 v17, v1, 4, 1
    v_lshl_add_u32 v16, v17, 5, v16
    v_and_b32 v17, 3, v1
    v_lshl_add_u32 v16, v17, 3, v16
    s_lshl_b32 s{sT0}, s{sW4}, 8
    s_add_u32 s{sT0}, s{sT0}, {LNS}
    v_add_u32 v16, s{sT0}, v16
    s_lshl_b32 s{sT0}, s{sW4}, 19
    s_lshl_b32 s{sT1}, s{sA}, 6
    s_add_u32 s{sT0}, s{sT0}, s{sT1}
    s_add_u32 s{sT0}, s{sT0}, {HF}
    v_lshl_add_u32 v17, v1, 4, s{sT0}
    s_lshl_b32 s{sT0}, s{sW4}, 14
    s_lshr_b32 s{sT1}, s{sA}, 5
    s_lshl_b32 s{sT1}, s{sT1}, 7
    s_add_u32 s{sT0}, s{sT0}, s{sT1}
    s_and_b32 s{sT1}, s{sA}, 16
    s_lshl_b32 s{sT1}, s{sT1}, 9
    s_add_u32 s{sT0}, s{sT0}, s{sT1}
    s_add_u32 s{sT0}, s{sT0}, {FH}
    v_mov_b32 v18, s{sT0}""")
    fin_tag(p)
    def red16(v): return [dpp_add(v, m) for m in ("quad_perm:[1,0,3,2]", "quad_perm:[2,3,0,1]", "row_half_mirror", "row_mirror")]
    def ln(first, closed=False):
        for i in range(16):
            p.I(f"v_lshlrev_b32 v{X+2*i}, 16, v{RAW+i}\nv_and_b32 v{X+2*i+1}, 0xffff0000, v{RAW+i}")
        for i in range(4): p.I(f"v_pk_add_f32 {vr(T+2*i,2)}, {vr(X+4*i,2)}, {vr(X+4*i+2,2)}")
        for i in range(8, 16): p.I(f"v_pk_add_f32 {vr(T+2*(i&3),2)}, {vr(T+2*(i&3),2)}, {vr(X+2*i,2)}")
        p.I(f"v_pk_add_f32 {vr(T,2)}, {vr(T,2)}, {vr(T+2,2)}\nv_pk_add_f32 {vr(T+4,2)}, {vr(T+4,2)}, {vr(T+6,2)}")
        p.I(f"v_pk_add_f32 {vr(T,2)}, {vr(T,2)}, {vr(T+4,2)}\nv_add_f32 v{T}, v{T}, v{T+1}")
        emit(p, red16(T))
        p.I(f"v_mul_f32 v{T+8}, {f32(-1.0/512)}, v{T}")
        for i in range(16): p.I(f"v_pk_add_f32 {vr(X+2*i,2)}, {vr(X+2*i,2)}, {vr(T+8,2)} op_sel_hi:[1,0]")
        for i in range(4): p.I(f"v_pk_mul_f32 {vr(T+2*i,2)}, {vr(X+2*i,2)}, {vr(X+2*i,2)}")
        for i in range(4, 16): p.I(f"v_pk_fma_f32 {vr(T+2*(i&3),2)}, {vr(X+2*i,2)}, {vr(X+2*i,2)}, {vr(T+2*(i&3),2)}")
        p.I(f"v_pk_add_f32 {vr(T,2)}, {vr(T,2)}, {vr(T+2,2)}\nv_pk_add_f32 {vr(T+4,2)}, {vr(T+4,2)}, {vr(T+6,2)}")
        p.I(f"v_pk_add_f32 {vr(T,2)}, {vr(T,2)}, {vr(T+4,2)}\nv_add_f32 v{T}, v{T}, v{T+1}")
        emit(p, red16(T))
        p.I(f"v_mov_b32 v{T+1}, {f32(1e-5)}\nv_fmac_f32 v{T+1}, {f32(1.0/512)}, v{T}\nv_rsq_f32 v{T+2}, v{T+1}")
        if first == "cond": p.I("s_cmp_lg_u32 s40, 1\ns_cbranch_scc1 B_lnng")
        if first:
            p.I(f"""v_mov_b32 v{T+10}, v{T+2}
            v_mov_b32 v{T+9}, s{sTAG}
            v_mov_b32 v{T+11}, s{sTAG}
            s_mov_b32 exec_lo, 0x00010001
            s_mov_b32 exec_hi, 0x00010001
            buffer_store_dwordx4 {vr(T+8,4)}, v14, {sr(SW,4)}, 0 offen sc1
            s_mov_b64 exec, -1""")
        if first == "cond": p.L("B_lnng")
        if closed:
            p.I(f"""v_mul_f32 v{T+3}, v{T+2}, v{T+2}
            v_mul_f32 v{T+3}, v{T+3}, v{T}
            v_mov_b32 v{T+4}, {f32(1e-5)}
            v_fmac_f32 v{T+4}, {f32(1.0/512)}, v{T+3}
            v_rsq_f32 v{T+4}, v{T+4}
            v_mul_f32 v{T+2}, v{T+2}, v{T+4}""")
        for i in range(16): p.I(f"v_pk_mul_f32 {vr(X+2*i,2)}, {vr(X+2*i,2)}, {vr(T+2,2)} op_sel_hi:[1,0]")
        for i in range(16): p.I(f"v_cvt_pk_bf16_f32 v{RAW+i}, v{X+2*i}, v{X+2*i+1}")
    stamp(p, 1)
    if "lnl" in OPT:
        p.I(f"s_mov_b32 s40, {0 if 'lnw' in OPT else 1}")
        p.L("B_lnloop")
        p.I("s_cmp_lg_u32 s40, 1\ns_cbranch_scc1 B_lnb\ns_waitcnt vmcnt(0)")
        for i in range(16): p.I(f"v_mov_b32 v{RAW+i}, v{XIN+i}")
        p.L("B_lnb")
        ln("cond")
        p.I("s_add_u32 s40, s40, 1\ns_cmp_lt_u32 s40, 3\ns_cbranch_scc1 B_lnloop")
    else:
        p.I("s_waitcnt vmcnt(0)")
        stamp(p, 2)
        if "cf2" in OPT: ln(True, True)
        else: ln(True); ln(False)
    for k in range(4): p.I(f"ds_write_b128 v15, {vr(RAW+4*k,4)} offset:{k*256}")
    p.I(f"""v_mov_b32 v21, 1
    s_waitcnt lgkmcnt(0)
    s_mov_b64 exec, 1
    ds_add_u32 v20, v21
    s_mov_b64 exec, -1
    s_mov_b32 s{sSPIN}, 0""")
    p.L("B_lnsync")
    p.I(f"""ds_read_b32 v21, v20
    s_add_u32 s{sSPIN}, s{sSPIN}, 1
    s_waitcnt lgkmcnt(0)
    v_readfirstlane_b32 s{sT0}, v21
    s_cmp_ge_u32 s{sSPIN}, {SPIN_MAX}
    s_cbranch_scc1 B_lnsync_ok
    s_cmp_lt_u32 s{sT0}, 4
    s_cbranch_scc1 B_lnsync""")
    p.L("B_lnsync_ok")
    for i in range(4):
        for tt in range(2): p.I(f"ds_read_b64_tr_b16 {vr(X+4*i+2*tt,2)}, v16 offset:{tt*4*LNP + i*64}")
    p.I(f"v_mov_b32 v19, s{sTAG}")
    for i in range(4):
        p.I(f"s_mov_b32 s{sT0}, {i << 17}\ns_waitcnt lgkmcnt({6 - 2*i})")
        p.I(f"buffer_store_dwordx4 {vr(X+4*i,4)}, v17, {sr(SW,4)}, s{sT0} offen sc1")
    if "b2late" not in OPT: p.I("s_barrier")
    stamp(p, 3)
    p.I(f"""s_waitcnt vmcnt(0)
    s_mov_b64 exec, 1
    buffer_store_dword v19, v18, {sr(SW,4)}, 0 offen sc1
    s_mov_b64 exec, -1""")
    if "b2late" in OPT: p.I("s_barrier")
    stamp(p, 4)
    p.I(f"s_cmp_eq_u32 s{sFT}, 15\ns_cbranch_scc1 F_cons")
    AK, AM, AS, TB, LB = 16, 32, 48, 64, 100
    NL = opt("nlu", 12)
    TA = [[2, 3, 4], [5, 6, 7], [8, 9, 10]]
    BI = 180
    p.I(f"""s_and_b32 s{sA}, s{sW4}, 1
    s_lshr_b32 s{sB}, s{sW4}, 1
    v_lshrrev_b32 v15, 5, v1
    s_mul_i32 s{sT0}, s{sFT}, 192
    s_lshl_b32 s{sT1}, s{sA}, 7
    s_add_u32 s{sT1}, s{sT1}, s{sT0}
    v_lshl_add_u32 v12, v15, 3, s{sT1}
    s_lshl_b32 s{sT1}, s{sA}, 5
    s_add_u32 s{sT1}, s{sT1}, s{sT0}
    s_add_u32 s{sT1}, s{sT1}, 64
    v_lshl_add_u32 v13, v15, 3, s{sT1}""")
    srd(p, SB, P_B1, 2752)
    for g in range(4): p.I(f"buffer_load_dwordx2 {vr(BI+2*g,2)}, v12, {sr(SB,4)}, 0 offen offset:{16*g}")
    for g in range(2): p.I(f"buffer_load_dwordx2 {vr(BI+8+2*g,2)}, v13, {sr(SB,4)}, 0 offen offset:{16*g}")
    p.I(f"""s_lshr_b32 s{sT0}, s{sDU}, 1
    s_lshl_b32 s{sT0}, s{sT0}, 14
    s_add_u32 s{sT0}, s{sT0}, {FH}
    s_lshl_b32 s{sT1}, s{sA}, 13
    s_add_u32 s{sT0}, s{sT0}, s{sT1}
    v_lshl_add_u32 v12, v1, 7, s{sT0}
    s_lshl_b32 s{sT1}, s98, 9
    s_add_u32 s{sT3}, s{sT0}, s{sT1}
    s_lshl_b32 s{sT0}, s{sDU}, 1
    s_add_u32 s{sT0}, s{sT0}, s{sB}
    s_lshl_b32 s{sT0}, s{sT0}, 17
    s_lshl_b32 s{sT1}, s{sA}, 10
    s_add_u32 s{sT0}, s{sT0}, s{sT1}
    s_add_u32 s{sT0}, s{sT0}, {HF}
    v_lshl_add_u32 v11, v1, 4, s{sT0}
    v_bfe_u32 v13, v1, 2, 2
    v_lshl_add_u32 v13, v15, 3, v13
    v_mul_u32_u24 v13, 192, v13
    v_bfe_u32 v14, v1, 4, 1
    v_lshl_add_u32 v13, v14, 5, v13
    v_and_b32 v14, 3, v1
    v_lshl_add_u32 v13, v14, 3, v13
    s_mul_i32 s{sT0}, s{sA}, {16*192}
    s_add_u32 s{sT1}, s{sT0}, 64
    v_add_u32 v5, s{sT1}, v13
    s_lshl_b32 s{sT1}, s{sA}, 7
    s_add_u32 s{sT2}, s{sT0}, s{sT1}
    v_add_u32 v2, s{sT2}, v13
    s_sub_u32 s{sT2}, s{sT0}, s{sT1}
    s_add_u32 s{sT2}, s{sT2}, 128
    v_add_u32 v8, s{sT2}, v13""")
    for b in range(3):
        p.I(f"v_add_u32 v{TA[b][1]}, 0x10000, v{TA[b][0]}\nv_add_u32 v{TA[b][2]}, 0x20000, v{TA[b][0]}")
    q = VQ(p)
    q.add("BI", 6)
    if opt("hd", 0): p.I(f"s_sleep {opt('hd', 0)}")
    if "vpoll" in OPT: poll(p, "B_pollh", 12, 14, 1, opt("hsl", 2))
    else: spoll(p, "B_pollh", sT3, 16)
    stamp(p, 5)
    def lload(g):
        if g == 8 and "vpoll" not in OPT:
            p.I(f"buffer_load_dword v14, v12, {sr(SW,4)}, 0 offen sc1"); q.add("PH")
        if g == 16 and "vpoll" not in OPT:
            q.wait("PH")
            if "nopoll" not in OPT:
                p.I(f"v_cmp_ne_u32 vcc, s{sTAG}, v14\ns_cbranch_vccz B_pollh2_ok")
            poll(p, "B_pollh2", 12, 14)
        if g % 4 == 0:
            n = g // 4
            p.I(f"s_add_u32 s{sOF}, s98, {n % UBLK}\ns_and_b32 s{sOF}, s{sOF}, {UBLK - 1}\ns_add_u32 s{sOF}, s{sOF}, {n - n % UBLK}\ns_lshl_b32 s{sOF}, s{sOF}, 13")
        elif g % 2 == 0:
            p.I(f"s_add_u32 s{sOF}, s{sOF}, 4096")
        if "noL" in OPT and g >= NL: return
        p.I(f"buffer_load_dwordx4 {vr(LB+4*(g % NL),4)}, v11, {sr(SW,4)}, s{sOF} offen offset:{(g & 1) * 2048} sc1")
        q.add(f"L{g}")
    def treads(g):
        n, i = g >> 2, g & 3
        o = (n % UND) * USLOT + i * 32 * 192
        return [f"ds_read_b64_tr_b16 {vr(TB+12*(g%3)+4*b+2*tt,2)}, " + lds_ref(TA[b], o + tt * 4 * 192) for b in range(3) for tt in range(2)]
    for g in range(NL): lload(g)
    q.wait("BI")
    for i in range(8):
        p.I(f"v_lshlrev_b32 v{AK+2*i}, 16, v{BI+i}\nv_and_b32 v{AK+2*i+1}, 0xffff0000, v{BI+i}")
    p.I("s_barrier")
    emit(p, treads(0) + treads(1))
    G = 64
    for g in range(G):
        Lr = vr(LB + 4 * (g % NL), 4)
        M = [f"{MFMA} {vr(a,16)}, {vr(TB+12*(g%3)+4*b,4)}, {Lr}, {'0' if (g == 0 and b > 0) else vr(a,16)}" for b, a in enumerate((AK, AM, AS))]
        nxt = g + 2
        p.I(f"s_waitcnt lgkmcnt({6 if g + 1 < G else 0})")
        q.wait(f"L{g}")
        if "ust" in OPT and g % 16 == 0: stamp(p, 9 + g // 16)
        p.I(M[0])
        if nxt < G:
            if nxt % 4 == 0: p.I("s_waitcnt lgkmcnt(0)\ns_barrier")
            R = treads(nxt)
            if "noR" in OPT: R = []
            if "r222" in OPT: emit(p, R[:2] + [M[1]] + R[2:4] + [M[2]] + R[4:])
            else: emit(p, R[:3] + [M[1]] + R[3:] + [M[2]])
        else: emit(p, M[1:])
        if "lbunch" in OPT:
            if g % 4 in (0, 1):
                for gg in (g + NL + (g % 4), g + NL + (g % 4) + 1):
                    if gg - 2 < G and gg - 2 >= NL: lload(gg - 2)
        elif g + NL < G: lload(g + NL)
    stamp(p, 6)
    RSC = 4 * USLOT
    c1 = -2.0 * math.sqrt(2.0 / math.pi) * LOG2E
    c2 = c1 * 0.044715
    p.I(f"""s_mul_i32 s{sT0}, s{sW4}, 6144
    s_add_u32 s{sT0}, s{sT0}, {RSC}
    v_lshl_add_u32 v2, v1, 4, s{sT0}
    s_xor_b32 s{sT0}, s{sW4}, 1
    s_mul_i32 s{sT0}, s{sT0}, 6144
    s_add_u32 s{sT0}, s{sT0}, {RSC}
    v_lshl_add_u32 v3, v1, 4, s{sT0}
    s_cmp_eq_u32 s{sA}, 1
    s_cselect_b64 s[32:33], -1, 0""")
    MK, MS = 64, 72
    for i in range(8):
        p.I(f"v_cndmask_b32 v{MS+i}, v{AM+8+i}, v{AM+i}, s[32:33]")
        p.I(f"v_cndmask_b32 v{MK+i}, v{AM+i}, v{AM+8+i}, s[32:33]")
    for k in range(2): p.I(f"ds_write_b128 v3, {vr(MS+4*k,4)} offset:{4096+k*1024}")
    for k in range(4): p.I(f"ds_write_b128 v3, {vr(AS+4*k,4)} offset:{k*1024}")
    for i in range(4):
        p.I(f"v_lshlrev_b32 v{AM+2*i}, 16, v{BI+8+i}\nv_and_b32 v{AM+2*i+1}, 0xffff0000, v{BI+8+i}")
    for i in range(4): p.I(f"v_pk_add_f32 {vr(AM+2*i,2)}, {vr(AM+2*i,2)}, {vr(MK+2*i,2)}")
    p.I(f"""s_mov_b32 s34, {f32(c2)}
    s_mov_b32 s35, {f32(c2)}
    v_mov_b32 v12, {f32(c1)}
    v_mov_b32 v13, {f32(c1)}
    s_lshl_b32 s{sT0}, s{sDU}, 1
    s_add_u32 s{sT0}, s{sT0}, s{sB}
    s_mul_i32 s{sT1}, s{sT0}, {GFS}
    s_mul_i32 s{sT2}, s{sFT}, 6
    s_add_u32 s{sT1}, s{sT1}, s{sT2}
    s_lshl_b32 s{sT1}, s{sT1}, 10
    s_add_u32 s{sT1}, s{sT1}, {GF}
    v_lshl_add_u32 v14, v1, 4, s{sT1}
    s_lshl_b32 s36, s{sA}, 12
    s_lshl_b32 s37, s{sA}, 10
    s_add_u32 s37, s37, 2048
    s_lshl_b32 s{sT0}, s{sT0}, 5
    s_lshl_b32 s{sT1}, s{sFT}, 1
    s_add_u32 s{sT0}, s{sT0}, s{sT1}
    s_add_u32 s{sT0}, s{sT0}, s{sA}
    s_lshl_b32 s{sT0}, s{sT0}, 7
    s_add_u32 s{sT0}, s{sT0}, {FG}
    v_mov_b32 v15, s{sT0}
    v_mov_b32 v11, s{sTAG}
    s_cmp_eq_u32 s{sFT}, 14
    s_cselect_b32 s38, 0, -1
    s_waitcnt lgkmcnt(0)
    s_barrier""")
    E = 64
    for k in range(6): p.I(f"ds_read_b128 {vr(E+4*k,4)}, v2 offset:{k*1024}")
    p.I("s_waitcnt lgkmcnt(0)")
    U = AK
    for i in range(12): p.I(f"v_pk_add_f32 {vr(U+2*i,2)}, {vr(U+2*i,2)}, {vr(E+2*i,2)}")
    for i in range(12): p.I(f"v_pk_mul_f32 {vr(E+2*i,2)}, {vr(U+2*i,2)}, {vr(U+2*i,2)}")
    for i in range(12): p.I(f"v_pk_fma_f32 {vr(E+2*i,2)}, {vr(E+2*i,2)}, s[34:35], v[12:13]")
    for i in range(12): p.I(f"v_pk_mul_f32 {vr(E+2*i,2)}, {vr(E+2*i,2)}, {vr(U+2*i,2)}")
    for i in range(24): p.I(f"v_exp_f32 v{E+i}, v{E+i}")
    for i in range(12): p.I(f"v_pk_add_f32 {vr(E+2*i,2)}, {vr(E+2*i,2)}, 1.0 op_sel_hi:[1,0]")
    for i in range(24): p.I(f"v_rcp_f32 v{E+i}, v{E+i}")
    for i in range(12): p.I(f"v_pk_mul_f32 {vr(E+2*i,2)}, {vr(E+2*i,2)}, {vr(U+2*i,2)}")
    for i in range(12): p.I(f"v_cvt_pk_bf16_f32 v{48+i}, v{E+2*i}, v{E+2*i+1}")
    for i in range(4): p.I(f"v_and_b32 v{56+i}, s38, v{56+i}")
    p.I(f"""buffer_store_dwordx4 v[48:51], v14, {sr(SW,4)}, s36 offen sc1
    buffer_store_dwordx4 v[52:55], v14, {sr(SW,4)}, s36 offen offset:1024 sc1
    buffer_store_dwordx4 v[56:59], v14, {sr(SW,4)}, s37 offen sc1""")
    stamp(p, 7)
    p.I(f"""s_waitcnt vmcnt(0)
    s_mov_b64 exec, 1
    buffer_store_dword v11, v15, {sr(SW,4)}, 0 offen sc1
    s_mov_b64 exec, -1""")
    stamp(p, 8)

def gen_F(p):
    p.L("F_cons")
    p.I("s_barrier")
    p.L("F_cons2")
    if "noF" in OPT:
        stamp_out(p, 14); p.I("s_endpgm")
    A0, A1, A2, TB, LB = 16, 32, 48, 64, 88
    NL = opt("nlf", 12)
    TA = [[2, 3, 4], [5, 6, 7]]
    p.I(f"""s_and_b32 s{sA}, s{sW4}, 1
    s_lshr_b32 s{sB}, s{sW4}, 1
    v_lshrrev_b32 v9, 5, v1
    s_lshl_b32 s{sT0}, s{sST}, 6
    s_lshl_b32 s{sT1}, s{sB}, 5
    s_add_u32 s{sT0}, s{sT0}, s{sT1}
    v_and_b32 v10, 31, v1
    v_add_u32 v10, s{sT0}, v10
    v_lshlrev_b32 v11, 1, v10
    v_lshlrev_b32 v14, 10, v10
    s_lshl_b32 s{sT0}, s{sDT}, 7
    s_lshl_b32 s{sT1}, s{sA}, 6
    s_add_u32 s{sT0}, s{sT0}, s{sT1}
    v_add_u32 v14, s{sT0}, v14
    v_lshl_add_u32 v15, v9, 4, v14
    v_lshl_add_u32 v14, v9, 3, v14""")
    srd(p, SA, P_X, 0x200000); srd(p, SB, P_B2, 4096)
    for g in range(4): p.I(f"buffer_load_dwordx2 {vr(TB+2*g,2)}, v14, {sr(SA,4)}, 0 offen offset:{16*g}")
    p.I(f"buffer_load_ushort v{TB+8}, v11, {sr(SB,4)}, 0 offen")
    p.I(f"""v_bfe_u32 v10, v1, 4, 1
    v_lshlrev_b32 v10, 1, v10
    v_bfe_u32 v11, v1, 1, 1
    v_add_u32 v10, v10, v11
    v_bfe_u32 v11, v1, 3, 1
    v_lshl_add_u32 v10, v11, 2, v10
    v_lshlrev_b32 v10, 4, v10
    v_and_b32 v11, 1, v1
    v_lshl_add_u32 v10, v11, 3, v10
    v_bfe_u32 v11, v1, 2, 2
    v_lshl_add_u32 v10, v11, 7, v10
    v_lshl_add_u32 v8, v9, 9, v10
    s_lshl_b32 s{sT0}, s{sDT}, 1
    s_add_u32 s{sT0}, s{sT0}, s{sA}
    s_lshl_b32 s{sT1}, s{sT0}, 12
    s_add_u32 s{sT1}, s{sT1}, {FG}
    v_lshl_add_u32 v12, v1, 7, s{sT1}
    s_mov_b32 s{sT3}, s{sT1}
    s_mul_i32 s{sT0}, s{sT0}, {GFS*1024}
    s_lshl_b32 s{sT1}, s{sB}, 10
    s_add_u32 s{sT0}, s{sT0}, s{sT1}
    s_add_u32 s{sT0}, s{sT0}, {GF}
    v_lshl_add_u32 v10, v1, 4, s{sT0}
    s_lshl_b32 s{sT0}, s{sST}, 1
    s_add_u32 s{sT0}, s{sT0}, s{sB}
    s_lshl_b32 s{sT1}, s{sT0}, 11
    s_add_u32 s{sT1}, s{sT1}, {FO}
    v_lshl_add_u32 v13, v1, 7, s{sT1}
    s_lshl_b32 s{sT0}, s{sT0}, 15
    s_lshl_b32 s{sT1}, s{sA}, 10
    s_add_u32 s{sT0}, s{sT0}, s{sT1}
    s_add_u32 s{sT0}, s{sT0}, {OF}
    v_lshl_add_u32 v11, v1, 4, s{sT0}""")
    def set_taddr(skh):
        return [f"s_mul_i32 s{sT0}, s{skh}, {2048 + 64}", f"v_xor_b32 v2, s{sT0}, v8", "v_xor_b32 v5, 64, v2",
                "v_add_u32 v3, 0x10000, v2", "v_add_u32 v4, 0x20000, v2", "v_add_u32 v6, 0x10000, v5", "v_add_u32 v7, 0x20000, v5"]
    P0, P1 = ("O", "Y") if OFIRST else ("Y", "O")
    KH = {"Y": sB, "O": sA}; NFL = {"Y": 30, "O": 16}; VFL = {"Y": 12, "O": 13}; VL = {"Y": 10, "O": 11}; ACC1 = {"Y": A1, "O": A2}
    G0, G = 4 * FCNT[P0], 60
    emit(p, set_taddr(KH[P0]))
    p.I(f"""s_lshl_b32 s{sT0}, s{sW4}, 12
    s_add_u32 s{sT0}, s{sT0}, 49152
    v_lshl_add_u32 v9, v1, 4, s{sT0}
    v_xor_b32 v246, 8192, v9
    v_xor_b32 v247, 4096, v9""")
    XW = {"Y": (246, 0), "O": (247, 16384)}
    stamp(p, 9)
    q = VQ(p)
    q.add("XB", 5)
    if "g2" in OPT:
        p.I(f"""s_bitcmp1_b32 s2, 3
        s_cselect_b32 s{sT0}, s{sFT}, s{sRT}
        s_cselect_b32 s{sT1}, 15, 0
        s_sub_u32 s{sT0}, s{sT0}, s{sT1}
        s_cmp_ge_u32 s{sT0}, 2
        s_cbranch_scc1 F_pe_ok
        s_mov_b64 exec, 1""")
        poll(p, "F_pe", VFL[P0], 14, 1, 16)
    if opt("gd", 0): p.I(f"s_bitcmp0_b32 s2, 3\ns_cbranch_scc1 F_nogd\ns_sleep {opt('gd', 0)}\nF_nogd:")
    set_exec(p, NFL[P0])
    poll(p, "F_poll0", VFL[P0], 14, 1, opt("gsl", 2))
    stamp(p, 10)
    part_of = lambda g: (P0, g) if g < G0 else (P1, g - G0)
    def lload(g):
        part, gg = part_of(g)
        if g == G0:
            stamp(p, 11)
            q.wait("PO")
            set_exec(p, NFL[P1])
            if "nopoll" not in OPT:
                p.I(f"v_cmp_ne_u32 vcc, s{sTAG}, v14\ns_cbranch_vccz F_poll1_ok")
            poll(p, "F_poll1", VFL[P1], 14, 1, opt("gsl", 2))
            stamp(p, 12)
        if g == G0 - opt("poe", 6):
            set_exec(p, NFL[P1])
            p.I(f"buffer_load_dword v14, v{VFL[P1]}, {sr(SW,4)}, 0 offen sc1\ns_mov_b64 exec, -1")
            q.add("PO")
        if gg == 0: p.I(f"s_lshl_b32 s{sOF}, s{sROT[part]}, 13")
        elif gg % 2 == 0:
            p.I(f"s_add_u32 s{sOF}, s{sOF}, 4096")
            if gg % 4 == 0: p.I(f"s_cmp_eq_u32 s{sOF}, {FCNT[part] * 8192}\ns_cselect_b32 s{sOF}, 0, s{sOF}")
        p.I(f"buffer_load_dwordx4 {vr(LB+4*(g % NR),4)}, v{VL[part]}, {sr(SW,4)}, s{sOF} offen offset:{(gg & 1) * 2048} sc1")
        q.add(f"L{g}")
    def treads(g):
        n, i = g >> 2, g & 3
        o = fslot(n) + i * 4096
        L = set_taddr(KH[P1]) if g == G0 else []
        return L + [f"ds_read_b64_tr_b16 {vr(TB+8*(g%3)+4*b+2*tt,2)}, " + lds_ref(TA[b], o + tt * 1024) for b in range(2) for tt in range(2)]
    NR = 32
    FB1 = opt("fb1", 8)
    def upto(g):
        u = g + 1 + NL
        if OFIRST:
            if g < 0: u = G0
            elif g + 1 + NL <= G0: u = G0
            else: u = max(u, min(G0 + FB1 + (g + NL - G0), g + 1 + opt("nl2", 16)))
        return min(G, u, g + 1 + NR)
    il = 0
    while il < upto(-1): lload(il); il += 1
    q.wait("XB")
    p.I(f"v_lshlrev_b32 v{TB+8}, 16, v{TB+8}")
    for i in range(8):
        p.I(f"v_lshlrev_b32 v{A0+2*i}, 16, v{TB+i}\nv_and_b32 v{A0+2*i+1}, 0xffff0000, v{TB+i}")
    for i in range(16): p.I(f"v_add_f32 v{A0+i}, v{A0+i}, v{TB+8}")
    p.I("s_barrier")
    emit(p, treads(0) + treads(1))
    EX = 224
    for g in range(G):
        part, gg = part_of(g)
        Lr = vr(LB + 4 * (g % NR), 4)
        M = []
        for blk in range(2):
            acc = A0 if blk == 0 else ACC1[part]
            T = vr(TB + 8 * (g % 3) + 4 * blk, 4)
            a, b = (Lr, T) if part == "Y" else (T, Lr)
            c = "0" if (blk == 1 and gg == 0) else vr(acc, 16)
            M.append(f"{MFMA} {vr(acc,16)}, {a}, {b}, {c}")
        nxt = g + 2
        p.I(f"s_waitcnt lgkmcnt({4 if g + 1 < G else 0})")
        q.wait(f"L{g}")
        p.I(M[0])
        if nxt < G:
            if nxt == 52:
                for k in range(4): p.I(f"ds_write_b128 v{XW[P0][0]}, {vr(ACC1[P0]+4*k,4)} offset:{XW[P0][1] + k*1024}")
            if nxt % 4 == 0: p.I("s_waitcnt lgkmcnt(0)\ns_barrier")
            if nxt == 52:
                for k in range(4): p.I(f"ds_read_b128 {vr(EX+4*k,4)}, v9 offset:{XW[P0][1] + k*1024}")
            emit(p, treads(nxt))
        p.I(M[1])
        while il < upto(g): lload(il); il += 1
    stamp(p, 13)
    srd(p, SA, P_OUT, 0x200000)
    for k in range(4): p.I(f"ds_write_b128 v{XW[P1][0]}, {vr(ACC1[P1]+4*k,4)} offset:{XW[P1][1] + k*1024}")
    for i in range(8): p.I(f"v_pk_add_f32 {vr(A0+2*i,2)}, {vr(A0+2*i,2)}, {vr(EX+2*i,2)}")
    p.I("s_waitcnt lgkmcnt(0)\ns_barrier")
    for k in range(4): p.I(f"ds_read_b128 {vr(EX+4*k,4)}, v9 offset:{XW[P1][1] + k*1024}")
    p.I("s_waitcnt lgkmcnt(0)")
    for i in range(8): p.I(f"v_pk_add_f32 {vr(A0+2*i,2)}, {vr(A0+2*i,2)}, {vr(EX+2*i,2)}")
    for i in range(8): p.I(f"v_cvt_pk_bf16_f32 v{32+i}, v{A0+2*i}, v{A0+2*i+1}")
    p.I(f"""v_permlane32_swap_b32 v32, v34
    v_permlane32_swap_b32 v33, v35
    v_permlane32_swap_b32 v36, v38
    v_permlane32_swap_b32 v37, v39
    buffer_store_dwordx4 v[32:35], v15, {sr(SA,4)}, 0 offen{OSF}
    buffer_store_dwordx4 v[36:39], v15, {sr(SA,4)}, 0 offen offset:32{OSF}""")
    stamp_out(p, 14)
    p.I("s_endpgm")
    p.L("F_load")
    if "noF" in OPT:
        stamp_out(p, 14); p.I("s_endpgm")
    stamp(p, 9)
    p.I(f"""s_lshl_b32 s{sT0}, s2, 3
    s_add_u32 s{sT0}, s{sT0}, s{sWV}
    s_cmp_lg_u32 s{sT0}, 4
    s_cbranch_scc1 F_l_go
    v_lshlrev_b32 v2, 7, v1
    v_add_u32 v2, {FH}, v2
    v_add_u32 v3, 8192, v2
    v_lshrrev_b32 v4, 4, v1
    v_lshlrev_b32 v4, 13, v4
    v_and_b32 v5, 15, v1
    v_lshl_add_u32 v4, v5, 8, v4
    v_add_u32 v4, {FK}, v4
    v_add_u32 v5, 32768, v4""")
    for i in range(4): poll(p, f"F_ep{i}", 2 + i, 6)
    p.I(f"""v_mov_b32 v2, {FLG}
    v_mov_b32 v3, s{sTAG}
    s_mov_b64 exec, 1
    buffer_store_dword v3, v2, {sr(SW,4)}, 0 offen
    s_mov_b64 exec, -1""")
    p.L("F_l_go")
    if "aprio" in OPT: p.I("s_setprio 0")
    nf = len(FSEQ)
    p.I("s_bitcmp0_b32 s2, 3\ns_cbranch_scc1 F_l_A")
    for role, pre, burst in (("B", FPRE, opt("fbb", FND - 1)), ("A", FPA, FPA)):
        if role == "A": p.L("F_l_A")
        q = VQ(p)
        for n in range(pre): q.add(f"F{n}", 4)
        for n in range(pre, burst): emit(p, f_dma(n)); q.add(f"F{n}", 4)
        paced(p, q, "F", f_dma, burst, nf, FND, opt("fml", 2))
        if role == "B": p.I("s_branch F_l_end")
    p.L("F_l_end")
    stamp_out(p, 14)

def main():
    hdr = open("hdr.txt").read().split("; Override launch")[0]
    out = hdr + f"; @launch grid=(256,1,1) block=(512,1,1) lds={LDS}\n"
    out += '.amdgcn_target "amdgcn-amd-amdhsa--gfx950"\n.text\n'
    p = Prog(); gen(p); out += p.finalize()
    out += "CODE_END:\n.fill 1400, 4, 0xbf800000\n"
    out += f""".section .rodata,"a"
.p2align 6
.amdhsa_kernel {NAME}
  .amdhsa_next_free_vgpr 256
  .amdhsa_next_free_sgpr 102
  .amdhsa_accum_offset 256
  .amdhsa_group_segment_fixed_size 0
  .amdhsa_kernarg_size 88
  .amdhsa_user_sgpr_count 2
  .amdhsa_user_sgpr_kernarg_segment_ptr 1
  .amdhsa_system_sgpr_workgroup_id_x 1
.end_amdhsa_kernel
"""
    if "nokv" in OPT:
        out = "\n".join(l for l in out.split("\n") if not (l.strip().startswith("buffer_store_dwordx4") and (", v20," in l or ", v21," in l)))
    open(sys.argv[1], "w").write(out)
main()
```
